```python
import torch

def _softmax(x, axis=-1):
    return torch.softmax(x, dim=axis)
def _gelu(x):
    return torch.nn.functional.gelu(x, approximate="tanh")
def _silu(x):
    return torch.nn.functional.silu(x)
def _sigmoid(x):
    return torch.sigmoid(x)
def _layernorm(x, axis=-1, eps=1e-5):
    m = x.mean(dim=axis, keepdim=True)
    v = x.var(dim=axis, keepdim=True, unbiased=False)
    return (x - m) / torch.sqrt(v + eps)
def _scatter_add(tgt, idx, src, axis=0):
    return tgt.clone().index_add_(axis, idx, src)
def _segment_sum(src, seg, n):
    out = torch.zeros((n,) + src.shape[1:], dtype=src.dtype)
    return out.index_add_(0, seg, src)
def _pad(x, pw):
    flat = tuple(v for pair in reversed(pw) for v in pair)
    return torch.nn.functional.pad(x, flat)

kernel_name = 'gated_mix__softmax_full_mha__mixer_s_mlp__prompt'

def setup_inputs():

    _w = (lambda a: (lambda t: t.to(torch.bfloat16) if t.is_floating_point() else t)(torch.as_tensor(a)))
    def _A_setup():
        B, S, D = 1, 2048, 512
        return {
            "x": _w((lambda *s: torch.randn(*s, dtype=torch.bfloat16) * 0.05)(B, S, D)),
            "wqkv": _w((lambda *s: torch.randn(*s, dtype=torch.bfloat16) * 1.6)(D, 3 * D)),
            "wo": _w((lambda *s: torch.randn(*s, dtype=torch.bfloat16) * 0.1)(D, D)),
        }
    _A_in = _A_setup()

    def _B_setup():
        B, S, D, F = 1, 2048, 512, 1376
        return {
            "x":  _w((lambda *s: torch.randn(*s, dtype=torch.bfloat16) * 0.05)(B, S, D)),
            "w1": _w((lambda *s: torch.randn(*s, dtype=torch.bfloat16) * 3.2)(D, D) * (D ** -0.5)),
            "w2": _w((lambda *s: torch.randn(*s, dtype=torch.bfloat16) * 3.2)(D, D) * (D ** -0.5)),
            "w3": _w((lambda *s: torch.randn(*s, dtype=torch.bfloat16) * 3.2)(D, F) * (D ** -0.5)),
            "w4": _w((lambda *s: torch.randn(*s, dtype=torch.bfloat16) * 1.6)(F, D) * (F ** -0.5)),
        }
    _B_in = _B_setup()

    return {
        "A_x": _A_in["x"],
        "A_wqkv": _A_in["wqkv"],
        "A_wo": _A_in["wo"],
        "B_x": _B_in["x"],
        "B_w1": _B_in["w1"],
        "B_w2": _B_in["w2"],
        "B_w3": _B_in["w3"],
        "B_w4": _B_in["w4"],
        "gate_w": _w((lambda *s: torch.randn(*s, dtype=torch.bfloat16) * 0.05)(512) * 16.0),
    }

def reference(A_x, A_wqkv, A_wo, B_x, B_w1, B_w2, B_w3, B_w4, gate_w):
    def _A_ref(x, wqkv, wo):
        B, S, D = x.shape
        H = 32; Dh = D // H
        qkv = (lambda x, *d: x.permute(*d))((x @ wqkv).reshape(B, S, 3, H, Dh), 2, 0, 3, 1, 4)
        q, k, v = qkv[0], qkv[1], qkv[2]
        scale = Dh ** -0.5
        scores = torch.einsum("bhqd,bhkd->bhqk", q, k) * scale
        p = _softmax(scores, axis=-1)
        o = torch.einsum("bhqk,bhkd->bhqd", p, v)
        return (lambda x, *d: x.permute(*d))(o, 0, 2, 1, 3).reshape(B, S, D) @ wo

    def _B_ref(x, w1, w2, w3, w4):
        B, S, D = x.shape
        h = _gelu(_layernorm(x, axis=-1) @ w1)
        c = D // 4
        g0 = _pad(h[:, :, 0*c:1*c], ((0, 0), (1, 0), (0, 0)))[:, :S, :]
        g1 = _pad(h[:, :, 1*c:2*c], ((0, 0), (0, 1), (0, 0)))[:, 1:, :]
        g2 = _pad(h[:, :, 2*c:3*c], ((0, 0), (2, 0), (0, 0)))[:, :S, :]
        g3 = _pad(h[:, :, 3*c:   ], ((0, 0), (0, 2), (0, 0)))[:, 2:, :]
        hs = torch.concatenate([g0, g1, g2, g3], axis=-1) @ w2
        x1 = x + hs
        h2 = _gelu(_layernorm(x1, axis=-1) @ w3) @ w4
        return x1 + h2

    x = A_x
    g = _sigmoid((x * gate_w).sum(-1, keepdims=True))
    a = _A_ref(x, A_wqkv, A_wo)
    b = _B_ref(x, B_w1, B_w2, B_w3, B_w4)
    return g * a + (1 - g) * b
```

```python
from common import *
ATT_SLOT = 16384
ATT_XCH = 3 * ATT_SLOT
ATT_LDS = ATT_XCH + 8 * 2560
def vr(b, n=1): return f"v{b}" if n == 1 else f"v[{b}:{b+n-1}]"

def gen_attn(a, pfx, s_id, prof=False, zero_rows=True, setprio=None):
    sWS = 8
    sW, sHEAD, sT = 12, 13, 14
    sKsrc, sVsrc = 15, 16
    sSlotN, sSlotD = 17, 18
    sC = 19
    sMask = 20
    sTmp = 22
    sQoff, sOoff = 23, 24
    sK0, sV0 = 25, 26
    sKH = 27; sQP = 28; sLw = 29
    vLane16 = 1; vKa = 2; vVa = 3; vKa0 = 4; vVa0 = 5; vIdx = 6; vT0 = 7; vT1 = 8; vT2 = 9; vM = [10, 11]
    vQ = [12, 16]; vK = 20; vV0 = 24; vV1 = [28, 32]
    vS = [36, 52]; vO = [68, 84]; vC = 100
    NV = 116
    S = f"s[{sWS}:{sWS+3}]"
    a.c("==== attention role ====")
    if prof:
        a("s_memtime s[40:41]\ns_memrealtime s[42:43]\ns_getreg_b32 s48, hwreg(HW_REG_HW_ID)\ns_getreg_b32 s49, hwreg(HW_REG_XCC_ID)")
    a(f"s_load_dwordx2 s[4:5], s[0:1], {KA['ws']}")
    a(f"""
    v_lshrrev_b32 v{vT0}, 6, v0
    v_and_b32 v{vT1}, 63, v0
    v_readfirstlane_b32 s{sW}, v{vT0}
    v_lshlrev_b32 v{vLane16}, 4, v{vT1}
    s_and_b32 s{sTmp}, s{s_id}, 7
    s_lshr_b32 s{sT}, s{s_id}, 3
    s_and_b32 s{sHEAD}, s{sT}, 3
    s_lshl_b32 s{sTmp}, s{sTmp}, 2
    s_add_u32 s{sHEAD}, s{sHEAD}, s{sTmp}      ; head
    s_lshr_b32 s{sT}, s{sT}, 2                 ; qb (0..7)
    s_and_b32 s{sQP}, s{sW}, 3
    s_lshr_b32 s{sKH}, s{sW}, 2
    s_lshl_b32 s{sT}, s{sT}, 3
    s_lshl_b32 s{sTmp}, s{sQP}, 1
    s_add_u32 s{sT}, s{sT}, s{sTmp}
    s_lshl_b32 s{sTmp}, s{sHEAD}, 16           ; head*64*1024
    s_lshl_b32 s{sQoff}, s{sT}, 10
    s_add_u32 s{sQoff}, s{sQoff}, s{sTmp}
    s_lshl_b32 s{sV0}, s{sKH}, 15              ; khalf*32*1024
    s_add_u32 s{sTmp}, s{sTmp}, s{sV0}
    s_add_u32 s{sK0}, s{sTmp}, {hex(WS_KF)}
    s_add_u32 s{sV0}, s{sTmp}, {hex(WS_VF)}
    s_add_u32 s{sOoff}, s{sT}, s{sKH}
    s_lshl_b32 s{sOoff}, s{sOoff}, 15          ; *32*1024
    s_lshl_b32 s{sTmp}, s{sHEAD}, 10
    s_add_u32 s{sOoff}, s{sOoff}, s{sTmp}
    s_add_u32 s{sOoff}, s{sOoff}, {hex(WS_OF)}
    s_lshl_b32 s{sTmp}, s{sQP}, 10
    s_add_u32 s{sKsrc}, s{sK0}, s{sTmp}
    s_add_u32 s{sVsrc}, s{sV0}, s{sTmp}
    s_lshl_b32 s{sLw}, s{sKH}, 13              ; khalf*8192
    s_add_u32 s{sLw}, s{sLw}, s{sTmp}
    s_mov_b32 s{sMask}, 0xffff
    s_mov_b32 s{sMask+1}, 0xffff
    s_waitcnt lgkmcnt(0)
    """)
    srd(a, sWS, 4, 5, WS_USED)
    def dma_chunk(slot_sgpr):
        a(f"""
        s_add_u32 m0, s{slot_sgpr}, s{sLw}
        s_nop 0
        buffer_load_dwordx4 v{vLane16}, {S}, s{sKsrc} offen lds
        s_add_u32 m0, m0, 4096
        s_add_u32 s{sKsrc}, s{sKsrc}, 4096
        buffer_load_dwordx4 v{vLane16}, {S}, s{sVsrc} offen lds
        s_add_u32 s{sVsrc}, s{sVsrc}, 4096
        """)
    a(f"buffer_load_dwordx4 {vr(vQ[0],4)}, v{vLane16}, {S}, s{sQoff} offen")
    a(f"buffer_load_dwordx4 {vr(vQ[1],4)}, v{vLane16}, {S}, s{sQoff} offen offset:1024")
    a(f"s_mov_b32 s{sSlotD}, 0")
    dma_chunk(sSlotD)
    a(f"s_mov_b32 s{sSlotD}, {ATT_SLOT}")
    dma_chunk(sSlotD)
    a(f"s_mov_b32 s{sSlotD}, {2*ATT_SLOT}\ns_mov_b32 s{sSlotN}, {ATT_SLOT}\ns_mov_b32 s{sC}, 0")
    a(f"""
    s_lshl_b32 s{sTmp}, s{sKH}, 13
    v_add_u32 v{vKa0}, s{sTmp}, v{vLane16}
    v_mov_b32 v{vKa}, v{vKa0}
    v_lshrrev_b32 v{vT0}, 5, v{vT1}            ; ha
    v_and_b32 v{vT2}, 15, v{vT1}               ; m
    v_lshlrev_b32 v{vT0}, 8, v{vT0}
    v_lshlrev_b32 v{vT2}, 4, v{vT2}
    v_add_u32 v{vVa0}, v{vT0}, v{vT2}
    v_add_u32 v{vVa0}, s{sTmp}, v{vVa0}
    v_add_u32 v{vVa0}, 4096, v{vVa0}
    v_mov_b32 v{vVa}, v{vVa0}
    v_mov_b32 v{vIdx}, 0xdddddddd
    """)
    if zero_rows:
        a(f"""v_and_b32 v{vT0}, 27, v{vT1}
        v_cmp_eq_u32 vcc, 16, v{vT0}
        v_mov_b32 v{vT2}, 0x3f803f80
        s_nop 0
        v_cndmask_b32 v{vT0}, 0, v{vT2}, vcc""")
    else:
        a(f"v_mov_b32 v{vT0}, 0x3f803f80")
    for i in range(4):
        a(f"v_mov_b32 v{vV0+i}, v{vT0}\nv_mov_b32 v{vV1[0]+i}, v{vT0}\nv_mov_b32 v{vV1[1]+i}, v{vT0}")
    for i in range(16): a(f"v_mov_b32 v{vO[0]+i}, 0\nv_mov_b32 v{vO[1]+i}, 0")
    a(f"s_waitcnt vmcnt(2)\ns_barrier")
    a(f"ds_read_b128 {vr(vK,4)}, v{vKa}\ns_waitcnt lgkmcnt(0)")
    a(f"v_mfma_f32_32x32x16_bf16 {vr(vS[0],16)}, {vr(vK,4)}, {vr(vQ[0],4)}, 0")
    a(f"v_mfma_f32_32x32x16_bf16 {vr(vS[1],16)}, {vr(vK,4)}, {vr(vQ[1],4)}, 0")
    a(f"s_mov_b64 exec, s[{sMask}:{sMask+1}]")
    a(f"ds_read_b128 {vr(vV0,4)}, v{vVa}\nds_read_b128 {vr(vV1[0],4)}, v{vVa} offset:512")
    a("s_mov_b64 exec, -1\ns_nop 15")
    s0 = vS[0]
    a(f"v_max3_f32 v{vT0}, v{s0}, v{s0+1}, v{s0+2}")
    for i in range(3, 31, 2): a(f"v_max3_f32 v{vT0}, v{vT0}, v{s0+i}, v{s0+i+1}")
    a(f"v_max_f32 v{vT0}, v{vT0}, v{s0+31}")
    def cross_max(dst):
        a(f"v_mov_b32 v{vT1}, v{vT0}\ns_nop 1\nv_permlane32_swap_b32 v{vT0}, v{vT1}\ns_nop 1\nv_max_f32 v{dst}, v{vT0}, v{vT1}")
    def setC(src):
        for i in range(16): a(f"v_mul_f32 v{vC+i}, -1.0, v{src}")
    cross_max(vM[0])
    a(f"v_mov_b32 v{vM[1]}, v{vM[0]}")
    setC(vM[0])
    for i in range(8, 16): a(f"v_mov_b32 v{vS[1]+i}, 0")
    a(f"v_mfma_f32_32x32x16_bf16 {vr(vS[0],16)}, {vr(vK,4)}, {vr(vQ[0],4)}, {vr(vC,16)}")
    if setprio is not None:
        a(f"s_cmp_eq_u32 s{sKH}, {setprio}\ns_cbranch_scc0 {pfx}_noprio\ns_setprio 1")
        a.label(f"{pfx}_noprio")
    if prof: a("s_memtime s[52:53]")
    a("s_nop 15")
    a.L.append(".p2align 6")
    a.label(f"{pfx}_loop")
    def ex(b, i): a(f"v_exp_f32 v{vS[b]+i}, v{vS[b]+i}")
    def SM(o, v, s): a(f"v_smfmac_f32_32x32x32_bf16 {vr(vO[o],16)}, {vr(v,4)}, {vr(s,8)}, v{vIdx}")
    def QK(b): a(f"v_mfma_f32_32x32x16_bf16 {vr(vS[b],16)}, {vr(vK,4)}, {vr(vQ[b],4)}, {vr(vC,16)}")
    for p in range(4):
        ex(0, 0); ex(0, 1)
        SM(1, vV1[(p-1) & 1], vS[1] + 8)
        ex(0, 2); ex(0, 3); ex(0, 4)
        QK(1)
        if p == 3:
            a(f"s_waitcnt vmcnt(0)\ns_barrier")
            a(f"v_add_u32 v{vKa}, s{sSlotN}, v{vKa0}")
            a(f"s_cmp_ge_u32 s{sC}, 6\ns_cbranch_scc1 {pfx}_nodma")
            dma_chunk(sSlotD)
            a.label(f"{pfx}_nodma")
        a(f"ds_read_b128 {vr(vK,4)}, v{vKa} offset:{((p+1)&3)*1024}")
        for i in range(5, 10): ex(0, i)
        a("s_waitcnt lgkmcnt(2)")
        SM(0, vV0, vS[0])
        for i in range(10, 16): ex(0, i)
        ex(1, 0); ex(1, 1)
        a("s_waitcnt lgkmcnt(0)")
        SM(0, vV1[p & 1], vS[0] + 8)
        ex(1, 2); ex(1, 3); ex(1, 4)
        QK(0)
        for i in range(5, 10): ex(1, i)
        SM(1, vV0, vS[1])
        if p == 3:
            a(f"v_add_u32 v{vVa}, s{sSlotN}, v{vVa0}")
        voff = ((p + 1) & 3) * 1024
        a(f"s_mov_b64 exec, s[{sMask}:{sMask+1}]")
        a(f"ds_read_b128 {vr(vV0,4)}, v{vVa} offset:{voff}\nds_read_b128 {vr(vV1[(p+1)&1],4)}, v{vVa} offset:{voff+512}")
        a("s_mov_b64 exec, -1")
        for i in range(10, 16): ex(1, i)
    a(f"""
    s_mov_b32 s{sSlotN}, s{sSlotD}
    s_add_u32 s{sSlotD}, s{sSlotD}, {ATT_SLOT}
    s_cmp_eq_u32 s{sSlotD}, {3*ATT_SLOT}
    s_cselect_b32 s{sSlotD}, 0, s{sSlotD}
    s_add_u32 s{sC}, s{sC}, 1
    s_cmp_lt_u32 s{sC}, 8
    s_cbranch_scc1 {pfx}_loop
    """)
    if prof: a("s_memtime s[54:55]")
    a("s_nop 1")
    SM(1, vV1[1], vS[1] + 8)
    a("s_waitcnt lgkmcnt(0)\ns_nop 15")
    a(f"v_add_f32 v{vT0}, abs(v{vO[0]+8}), abs(v{vO[1]+8})")
    for o in range(2):
        for i in range(8): a(f"v_add_f32 v{vT0}, abs(v{vO[o]+i}), v{vT0}")
    a(f"""v_min_f32 v{vT1}, v{vO[0]+8}, v{vO[1]+8}
    s_mov_b32 s{sTmp}, 0x207
    v_cmp_class_f32 vcc, v{vT0}, s{sTmp}
    s_mov_b32 s{sTmp}, 0x2b800000
    v_cmp_gt_f32 s[30:31], s{sTmp}, v{vT1}
    s_nop 4
    s_or_b64 vcc, vcc, s[30:31]
    s_cmp_lg_u64 vcc, 0
    s_cbranch_scc1 {pfx}_fallback
    """)
    a.label(f"{pfx}_merge")
    a(f"""s_mul_i32 s{sTmp}, s{sW}, 2560
    s_add_u32 s{sTmp}, s{sTmp}, {ATT_XCH}
    v_add_u32 v{vKa}, s{sTmp}, v{vLane16}
    s_xor_b32 s{sC}, s{sW}, 4
    s_mul_i32 s{sC}, s{sC}, 2560
    s_add_u32 s{sC}, s{sC}, {ATT_XCH}
    v_add_u32 v{vVa}, s{sC}, v{vLane16}
    v_lshrrev_b32 v{vT2}, 1, v{vLane16}
    v_add_u32 v{vKa0}, s{sTmp}, v{vT2}
    v_add_u32 v{vVa0}, s{sC}, v{vT2}
    s_cmp_eq_u32 s{sKH}, 0
    s_cbranch_scc0 {pfx}_m1
    """)
    def merge(keep, give):
        a(f"v_mov_b32 v{vO[give]+9}, v{vM[give]}")
        a(f"ds_write_b128 v{vKa}, {vr(vO[give],4)}\nds_write_b128 v{vKa}, {vr(vO[give]+4,4)} offset:1024\nds_write_b64 v{vKa0}, {vr(vO[give]+8,2)} offset:2048")
        a("s_waitcnt lgkmcnt(0)\ns_barrier")
        g = vO[give]
        a(f"ds_read_b128 {vr(g,4)}, v{vVa}\nds_read_b128 {vr(g+4,4)}, v{vVa} offset:1024\nds_read_b64 {vr(g+8,2)}, v{vVa0} offset:2048")
        a("s_waitcnt lgkmcnt(0)")
        k = vO[keep]
        a(f"""v_max_f32 v{vT0}, v{vM[keep]}, v{g+9}
        v_sub_f32 v{vT1}, v{vM[keep]}, v{vT0}
        v_sub_f32 v{vT2}, v{g+9}, v{vT0}
        v_exp_f32 v{vT1}, v{vT1}
        v_exp_f32 v{vT2}, v{vT2}
        s_nop 0
        v_mul_f32 v{k+8}, v{k+8}, v{vT1}
        v_fmac_f32 v{k+8}, v{g+8}, v{vT2}
        v_rcp_f32 v{vT0}, v{k+8}
        s_nop 0
        v_mul_f32 v{vT1}, v{vT1}, v{vT0}
        v_mul_f32 v{vT2}, v{vT2}, v{vT0}""")
        for i in range(8): a(f"v_mul_f32 v{k+i}, v{k+i}, v{vT1}\nv_fmac_f32 v{k+i}, v{g+i}, v{vT2}")
        for i in range(4): a(f"v_cvt_pk_bf16_f32 v{vK+i}, v{k+2*i}, v{k+2*i+1}")
        a(f"s_branch {pfx}_store")
    merge(0, 1)
    a.label(f"{pfx}_m1")
    merge(1, 0)
    a.label(f"{pfx}_store")
    a(f"buffer_store_dwordx4 {vr(vK,4)}, v{vLane16}, {S}, s{sOoff} offen")
    if prof:
        a(f"""s_memtime s[44:45]
        s_memrealtime s[46:47]
        s_waitcnt lgkmcnt(0)
        s_sub_u32 s44, s44, s40
        v_mov_b32 v36, s44
        v_mov_b32 v37, s42
        v_mov_b32 v38, s46
        v_mov_b32 v39, s48
        v_mov_b32 v40, s49
        s_sub_u32 s52, s52, s40
        s_sub_u32 s54, s54, s40
        v_mov_b32 v42, s52
        v_mov_b32 v43, s54
        s_lshl_b32 s50, s{s_id}, 3
        s_add_u32 s50, s50, s{sW}
        s_lshl_b32 s50, s50, 5
        s_add_u32 s50, s50, 0x1490000
        v_mov_b32 v41, 0
        s_mov_b64 exec, 1
        buffer_store_dwordx4 v[36:39], v41, {S}, s50 offen
        buffer_store_dword v40, v41, {S}, s50 offen offset:16
        buffer_store_dwordx2 v[42:43], v41, {S}, s50 offen offset:24
        """)
    a("s_endpgm")
    a.label(f"{pfx}_fallback")
    a(f"s_lshl_b32 s{sTmp}, s{sKH}, 13\nv_subrev_u32 v{vVa}, s{sTmp}, v{vVa0}\nv_subrev_u32 v{vVa}, 4096, v{vVa}")
    for t in range(2):
        a(f"v_mov_b32 v{vT0}, 0xff800000\ns_mov_b32 s{sC}, 0\ns_mov_b32 s{sKsrc}, s{sK0}")
        a.label(f"{pfx}_fb1_{t}")
        a(f"buffer_load_dwordx4 {vr(vK,4)}, v{vLane16}, {S}, s{sKsrc} offen\ns_waitcnt vmcnt(0)")
        a(f"v_mfma_f32_32x32x16_bf16 {vr(vS[0],16)}, {vr(vK,4)}, {vr(vQ[t],4)}, 0\ns_nop 15")
        for i in range(0, 16, 2): a(f"v_max3_f32 v{vT0}, v{vT0}, v{s0+i}, v{s0+i+1}")
        a(f"s_add_u32 s{sKsrc}, s{sKsrc}, 1024\ns_add_u32 s{sC}, s{sC}, 1\ns_cmp_lt_u32 s{sC}, 32\ns_cbranch_scc1 {pfx}_fb1_{t}")
        cross_max(vM[t])
        setC(vM[t])
        for i in range(16): a(f"v_mov_b32 v{vO[t]+i}, 0")
        a(f"s_mov_b32 s{sC}, 0\ns_mov_b32 s{sKsrc}, s{sK0}\ns_mov_b32 s{sVsrc}, s{sV0}")
        a.label(f"{pfx}_fb2_{t}")
        a(f"buffer_load_dwordx4 {vr(vK,4)}, v{vLane16}, {S}, s{sKsrc} offen")
        a(f"s_mov_b64 exec, s[{sMask}:{sMask+1}]")
        a(f"buffer_load_dwordx4 {vr(vV0,4)}, v{vVa}, {S}, s{sVsrc} offen")
        a(f"buffer_load_dwordx4 {vr(vV1[0],4)}, v{vVa}, {S}, s{sVsrc} offen offset:512")
        a("s_mov_b64 exec, -1\ns_waitcnt vmcnt(0)")
        a(f"v_mfma_f32_32x32x16_bf16 {vr(vS[0],16)}, {vr(vK,4)}, {vr(vQ[t],4)}, {vr(vC,16)}\ns_nop 15")
        for i in range(16): ex(0, i)
        a("s_nop 3")
        SM(t, vV0, vS[0]); SM(t, vV1[0], vS[0] + 8)
        a(f"s_add_u32 s{sKsrc}, s{sKsrc}, 1024\ns_add_u32 s{sVsrc}, s{sVsrc}, 1024\ns_add_u32 s{sC}, s{sC}, 1\ns_cmp_lt_u32 s{sC}, 32\ns_cbranch_scc1 {pfx}_fb2_{t}")
    a(f"s_nop 15\ns_branch {pfx}_merge")
    return NV
```

```python
WS_QF, WS_KF, WS_VF = 0x000000, 0x200000, 0x400000
WS_H1 = 0x600000; WS_X1 = 0x800000; WS_OF = 0xA00000; WS_H2 = 0xC00000
WS_BF = 0x1200000
WS_ST = 0x1400000
WS_GP = 0x1440000
WS_FLAGS = 0x1480000
WS_USED = 0x1600000
KA = dict(x=0, wqkv=8, wo=16, bx=24, w1=32, w2=40, w3=48, w4=56, gw=64, out=72, dbg=80, ws=88)

class Asm:
    def __init__(self):
        self.L = []
    def __call__(self, s=""):
        for line in s.split("\n"):
            line = line.strip()
            if not line: continue
            if line.endswith(":") or line.startswith("."):
                self.L.append(line)
            else:
                self.L.append("    " + line)
    def label(self, l): self.L.append(l + ":")
    def c(self, s): self.L.append("    ; " + s)
    def text(self): return "\n".join(self.L) + "\n"

def srd(a, s, base_lo, base_hi, size):
    a(f"s_mov_b32 s{s}, s{base_lo}\ns_mov_b32 s{s+1}, s{base_hi}\ns_mov_b32 s{s+2}, {hex(size)}\ns_mov_b32 s{s+3}, 0x20000")

def kernel_header(a, name):
    a.L.append(f".globl {name}\n.p2align 8\n.type {name},@function\n{name}:")

def kernel_desc(name, vgpr, sgpr=96, accum=None):
    accum = accum or ((vgpr + 3) // 4 * 4)
    return f""".amdhsa_kernel {name}
  .amdhsa_next_free_vgpr {vgpr}
  .amdhsa_next_free_sgpr {sgpr}
  .amdhsa_accum_offset {accum}
  .amdhsa_group_segment_fixed_size 0
  .amdhsa_kernarg_size 96
  .amdhsa_user_sgpr_count 2
  .amdhsa_user_sgpr_kernarg_segment_ptr 1
  .amdhsa_system_sgpr_workgroup_id_x 1
  .amdhsa_float_denorm_mode_32 3
  .amdhsa_float_denorm_mode_16_64 3
.end_amdhsa_kernel
"""

WS_PROF = 0x1490000
import os
PROF = bool(int(os.environ.get('PROF', '0')))
def prof_start(a):
    if PROF: a("s_memtime s[80:81]\ns_memrealtime s[82:83]")
def prof_stamp(a, i):
    if PROF: a(f"s_memtime s[{84+2*i}:{85+2*i}]")
def prof_end(a, s_wg, s_wave, nw, srd, base=0, vtmp=2):
    if not PROF: return
    v = vtmp
    a(f"""s_memtime s[92:93]
    s_memrealtime s[94:95]
    s_waitcnt lgkmcnt(0)
    s_sub_u32 s92, s92, s80
    s_sub_u32 s84, s84, s80
    s_sub_u32 s86, s86, s80
    s_sub_u32 s88, s88, s80
    s_sub_u32 s90, s90, s80
    s_getreg_b32 s93, hwreg(HW_REG_HW_ID)
    s_getreg_b32 s95, hwreg(HW_REG_XCC_ID)
    s_lshl_b32 s95, s95, 16
    s_and_b32 s93, s93, 0xffff
    s_or_b32 s93, s93, s95
    v_mov_b32 v{v}, s92
    v_mov_b32 v{v+1}, s82
    v_mov_b32 v{v+2}, s94
    v_mov_b32 v{v+3}, s84
    v_mov_b32 v{v+4}, s86
    v_mov_b32 v{v+5}, s88
    v_mov_b32 v{v+6}, s90
    v_mov_b32 v{v+7}, s93
    s_mul_i32 s85, s{s_wg}, {nw}
    s_add_u32 s85, s85, s{s_wave}
    s_lshl_b32 s85, s85, 5
    s_add_u32 s85, s85, {hex(WS_PROF + base + globals().get('PROF_BASE', 0))}
    v_mov_b32 v{v+8}, 0
    s_mov_b64 exec, 1
    buffer_store_dwordx4 v[{v}:{v+3}], v{v+8}, s[{srd}:{srd+3}], s85 offen
    buffer_store_dwordx4 v[{v+4}:{v+7}], v{v+8}, s[{srd}:{srd+3}], s85 offen offset:16
    s_mov_b64 exec, -1""")
```

```python
from common import *
from k1 import vr, f2u
G64_RING = 65536
G64_XCH = G64_RING
G64_LDS = G64_RING + 16384
sWS = 8; sWm = 12
sW, sKH, sWR, sWC = 16, 17, 18, 19
sRB, sCB = 20, 21
sC, sT, sT2 = 22, 23, 24
sSlot, sSlotD = 25, 26
sXsrc, sWsrc, sXstep, sWstep = 27, 28, 29, 30
sLd = 31
sNC = 32
sKs = 33; sKmax = 34; sXb = 35; sWb = 36; sWrow = 37
vL = 1; vL16 = 2; vXd = 3; vWd = 4; vXa0 = 5; vWa0 = 6; vXa = 7; vWa = 8; vT = 9; vT2 = 10; vT3 = 11
vXf = [12, 16]; vWf = [20, 24]; vAcc = [32, 48]

def setup(a, s_id, xcd_map=True):
    a(f"""
    v_lshrrev_b32 v{vT}, 6, v0
    v_and_b32 v{vL}, 63, v0
    v_readfirstlane_b32 s{sW}, v{vT}
    v_lshlrev_b32 v{vL16}, 4, v{vL}
    s_and_b32 s{sT}, s{s_id}, 7
    s_lshr_b32 s{sT2}, s{s_id}, 3
    s_and_b32 s{sRB}, s{sT2}, 3
    s_lshl_b32 s{sT}, s{sT}, 2
    s_add_u32 s{sRB}, s{sRB}, s{sT}           ; rb 0..31
    s_lshr_b32 s{sCB}, s{sT2}, 2              ; cb 0..7
    s_lshr_b32 s{sKH}, s{sW}, 2
    s_bfe_u32 s{sWR}, s{sW}, 0x10001
    s_and_b32 s{sWC}, s{sW}, 1
    """)
    a(f"""
    s_lshl_b32 s{sLd}, s{sWR}, 1
    s_add_u32 s{sLd}, s{sLd}, s{sKH}
    s_lshl_b32 s{sLd}, s{sLd}, 1
    s_add_u32 s{sLd}, s{sLd}, s{sWC}
    s_lshl_b32 s{sLd}, s{sLd}, 10
    """)
    a(f"""
    s_lshl_b32 s{sT}, s{sKH}, 12
    s_lshl_b32 s{sT2}, s{sWR}, 10
    s_add_u32 s{sT2}, s{sT2}, s{sT}
    v_add_u32 v{vXa0}, s{sT2}, v{vL16}
    v_lshrrev_b32 v{vT}, 5, v{vL}             ; h
    v_lshlrev_b32 v{vT}, 8, v{vT}             ; rows 4h -> h*256
    v_bfe_u32 v{vT2}, v{vL}, 2, 2             ; r
    v_lshl_add_u32 v{vT}, v{vT2}, 6, v{vT}
    v_bfe_u32 v{vT2}, v{vL}, 4, 1             ; nhalf
    v_lshl_add_u32 v{vT}, v{vT2}, 5, v{vT}
    v_and_b32 v{vT2}, 3, v{vL}
    v_lshl_add_u32 v{vT}, v{vT2}, 3, v{vT}
    s_lshl_b32 s{sT2}, s{sWC}, 10
    s_add_u32 s{sT2}, s{sT2}, s{sT}
    s_add_u32 s{sT2}, s{sT2}, 8192
    v_add_u32 v{vWa0}, s{sT2}, v{vT}
    """)

def seg_setup(a, xbase, xks_total, khalf_steps, wstride, xlane_vgpr=None):
    a(f"""
    s_mul_i32 s{sKs}, s{sWR}, {khalf_steps}
    s_add_u32 s{sKs}, s{sKs}, s{sKH}
    s_lshl_b32 s{sT}, s{sRB}, 1
    s_add_u32 s{sT}, s{sT}, s{sWC}
    s_mul_i32 s{sXb}, s{sT}, {xks_total*1024}
    s_add_u32 s{sXb}, s{sXb}, {hex(xbase)}
    s_lshl_b32 s{sWb}, s{sCB}, 7              ; cb*64*2
    s_lshl_b32 s{sT}, s{sWC}, 6               ; strip*32*2
    s_add_u32 s{sWb}, s{sWb}, s{sT}
    s_mov_b32 s{sWrow}, {16*wstride}
    s_mov_b32 s{sKmax}, {xks_total-1}
    v_lshrrev_b32 v{vT}, 2, v{vL}
    v_mul_u32_u24 v{vT}, {wstride}, v{vT}
    v_and_b32 v{vT2}, 3, v{vL}
    v_lshl_add_u32 v{vWd}, v{vT2}, 4, v{vT}
    """)

def dma(a, xv):
    a(f"""
    s_min_u32 s{sT}, s{sKs}, s{sKmax}
    s_lshl_b32 s{sT}, s{sT}, 10
    s_add_u32 s{sT}, s{sT}, s{sXb}
    s_add_u32 m0, s{sSlotD}, s{sLd}
    s_mul_i32 s{sT2}, s{sKs}, s{sWrow}
    buffer_load_dwordx4 v{xv}, s[{sWS}:{sWS+3}], s{sT} offen lds
    s_add_u32 m0, m0, 8192
    s_add_u32 s{sT2}, s{sT2}, s{sWb}
    buffer_load_dwordx4 v{vWd}, s[{sWm}:{sWm+3}], s{sT2} offen lds
    s_add_u32 s{sKs}, s{sKs}, 2
    s_add_u32 s{sSlotD}, s{sSlotD}, 16384
    s_and_b32 s{sSlotD}, s{sSlotD}, 0xffff
    """)

def reads(ks, b):
    return [f"ds_read_b128 {vr(vXf[b],4)}, v{vXa} offset:{ks*2048}",
            f"ds_read_b64_tr_b16 {vr(vWf[b],2)}, v{vWa} offset:{ks*2048}",
            f"ds_read_b64_tr_b16 {vr(vWf[b]+2,2)}, v{vWa} offset:{ks*2048+512}"]

def main_loop(a, pfx, nchunks, acc, xv_for_chunk=None, pre_dma=None):
    A = vr(acc, 16)
    a(f"s_mov_b32 s{sC}, 0")
    a.L.append(".p2align 6")
    a.label(f"{pfx}_loop")
    a(f"""s_add_u32 s{sT}, s{sC}, 2
    s_cmp_lt_u32 s{sT}, {nchunks}
    s_cbranch_scc1 {pfx}_w4
    s_add_u32 s{sT}, s{sC}, 1
    s_cmp_lt_u32 s{sT}, {nchunks}
    s_cbranch_scc1 {pfx}_w2
    s_waitcnt vmcnt(0)
    s_branch {pfx}_wd
    {pfx}_w2:
    s_waitcnt vmcnt(2)
    s_branch {pfx}_wd
    {pfx}_w4:
    s_waitcnt vmcnt(4)
    {pfx}_wd:
    s_barrier
    v_add_u32 v{vXa}, s{sSlot}, v{vXa0}
    v_add_u32 v{vWa}, s{sSlot}, v{vWa0}
    """)
    for r in reads(0, 0) + reads(1, 1): a(r)
    a(f"s_add_u32 s{sT}, s{sC}, 3\ns_cmp_ge_u32 s{sT}, {nchunks}\ns_cbranch_scc1 {pfx}_nd")
    if pre_dma: pre_dma()
    dma(a, vXd)
    a.label(f"{pfx}_nd")
    a("s_waitcnt lgkmcnt(3)")
    a(f"v_mfma_f32_32x32x16_bf16 {A}, {vr(vWf[0],4)}, {vr(vXf[0],4)}, {A}")
    a("s_waitcnt lgkmcnt(0)")
    a(f"v_mfma_f32_32x32x16_bf16 {A}, {vr(vWf[1],4)}, {vr(vXf[1],4)}, {A}")
    a(f"""s_add_u32 s{sSlot}, s{sSlot}, 16384
    s_and_b32 s{sSlot}, s{sSlot}, 0xffff
    s_add_u32 s{sC}, s{sC}, 1
    s_cmp_lt_u32 s{sC}, {nchunks}
    s_cbranch_scc1 {pfx}_loop
    """)

def reduce_halves(a, pfx, accs):
    n = len(accs)
    a(f"""s_mul_i32 s{sT}, s{sW}, {2048*n}
    s_add_u32 s{sT}, s{sT}, {globals()['G64_XCH']}
    v_add_u32 v{vXa}, s{sT}, v{vL16}
    s_xor_b32 s{sT2}, s{sW}, 4
    s_mul_i32 s{sT2}, s{sT2}, {2048*n}
    s_add_u32 s{sT2}, s{sT2}, {globals()['G64_XCH']}
    v_add_u32 v{vWa}, s{sT2}, v{vL16}
    s_nop 7
    s_nop 3
    s_cmp_eq_u32 s{sKH}, 0
    s_cbranch_scc0 {pfx}_r1
    """)
    for i, acc in enumerate(accs):
        a(f"ds_write_b128 v{vXa}, {vr(acc+8,4)} offset:{i*2048}\nds_write_b128 v{vXa}, {vr(acc+12,4)} offset:{i*2048+1024}")
    a(f"s_branch {pfx}_r2")
    a.label(f"{pfx}_r1")
    for i, acc in enumerate(accs):
        a(f"ds_write_b128 v{vXa}, {vr(acc,4)} offset:{i*2048}\nds_write_b128 v{vXa}, {vr(acc+4,4)} offset:{i*2048+1024}")
        for j in range(8): a(f"v_mov_b32 v{acc+j}, v{acc+8+j}")
    a.label(f"{pfx}_r2")
    a("s_waitcnt lgkmcnt(0)\ns_barrier")
    for i, acc in enumerate(accs):
        a(f"ds_read_b128 {vr(acc+8,4)}, v{vWa} offset:{i*2048}\nds_read_b128 {vr(acc+12,4)}, v{vWa} offset:{i*2048+1024}")
    a("s_waitcnt lgkmcnt(0)")
    for acc in accs:
        for j in range(8): a(f"v_add_f32 v{acc+j}, v{acc+j}, v{acc+8+j}")
```

```python
from common import *
import common
K1_XS = 0
K1_WS = 65536
K1_ST = 131072
K1_LDS = K1_ST + 1024 + 128
QSCALE = 0.25 * 1.4426950408889634
def vr(b, n=1): return f"v{b}" if n == 1 else f"v[{b}:{b+n-1}]"
import struct
def f2u(x): return struct.unpack("<I", struct.pack("<f", x))[0]
GC1 = -2.0 * 1.4426950408889634 * 0.7978845608028654
GC2 = GC1 * 0.044715

def gelu_ops(a, x, t, sC1, sC2):
    return [f"v_mul_f32 v{t}, v{x}, v{x}",
            f"v_fma_f32 v{t}, v{t}, s{sC2}, v{sC1}",
            f"v_mul_f32 v{t}, v{t}, v{x}",
            f"v_exp_f32 v{t}, v{t}",
            f"v_add_f32 v{t}, 1.0, v{t}",
            f"v_rcp_f32 v{t}, v{t}",
            f"v_mul_f32 v{x}, v{x}, v{t}"]
def emit_interleaved(a, seqs):
    n = max(len(s) for s in seqs)
    for i in range(n):
        for s in seqs:
            if i < len(s): a(s[i])

def gen_k1(a, pfx, zero_flags=False, X=None):
    X = X or {}
    sX = 8; sWq = 12; sWS = 16
    sW = 20; sRB = 21; sCB = 22; sC = 23; sT = 24; sT2 = 25
    sXsrc = 26; sWsrc = 27; sWstep = 28; sWi = 29; sLX = 30; sLW = 31; sSlot = 32; sSlotD = 33
    sTB = 34; sC2 = 35
    vL = 1; vT = 2; vT2 = 3; vT3 = 4; vXd = [5, 6]; vWd = 7; vXa0 = [8, 9, 10, 11]; vWa0 = 12; vXa = [13, 14, 15, 16]; vWa = 17
    a.c("==== K1 ====")
    prof_start(a)
    a(f"""
    s_load_dwordx4 s[36:39], s[0:1], {KA['x']}        ; x, wqkv
    s_load_dwordx2 s[40:41], s[0:1], {KA['w1']}
    s_load_dwordx2 s[42:43], s[0:1], {KA['ws']}
    v_lshrrev_b32 v{vT}, 6, v0
    v_and_b32 v{vL}, 63, v0
    v_readfirstlane_b32 s{sW}, v{vT}
    s_and_b32 s{sT}, s2, 7
    s_lshr_b32 s{sT2}, s2, 3
    s_and_b32 s{sCB}, s{sT2}, 1
    s_lshl_b32 s{sT}, s{sT}, 1
    s_add_u32 s{sCB}, s{sCB}, s{sT}          ; cb
    s_lshr_b32 s{sRB}, s{sT2}, 1             ; rb
    """)
    a(f"""
    v_lshrrev_b32 v{vT}, 3, v{vL}            ; r
    v_lshrrev_b32 v{vT2}, 4, v{vL}           ; r>>1
    v_and_b32 v{vT3}, 7, v{vL}
    v_xor_b32 v{vXd[0]}, v{vT3}, v{vT2}      ; i=0 : granule ^ (r>>1)
    v_xor_b32 v{vXd[1]}, 4, v{vXd[0]}        ; i=1 : ^ (4 + (r>>1))  (r>>1 < 4)
    v_lshlrev_b32 v{vT}, 10, v{vT}
    v_lshl_add_u32 v{vXd[0]}, v{vXd[0]}, 4, v{vT}
    v_lshl_add_u32 v{vXd[1]}, v{vXd[1]}, 4, v{vT}
    v_add_u32 v{vXd[1]}, 8192, v{vXd[1]}
    s_lshl_b32 s{sXsrc}, s{sRB}, 7
    s_lshl_b32 s{sT}, s{sW}, 4
    s_add_u32 s{sXsrc}, s{sXsrc}, s{sT}
    s_lshl_b32 s{sXsrc}, s{sXsrc}, 10        ; (128 rb + 16 w)*1024
    s_lshl_b32 s{sLX}, s{sW}, 11
    s_lshr_b32 s{sT}, s{sW}, 1               ; strip j
    s_and_b32 s{sT2}, s{sW}, 1               ; k half
    s_lshl_b32 s{sLW}, s{sT}, 12
    s_lshl_b32 s{sC}, s{sT2}, 11
    s_add_u32 s{sLW}, s{sLW}, s{sC}
    s_add_u32 s{sLW}, s{sLW}, {K1_WS}
    s_waitcnt lgkmcnt(0)
    """)
    srd(a, sX, 36, 37, 2048*512*2)
    srd(a, sWS, 42, 43, WS_USED)
    a(f"""
    s_cmp_eq_u32 s{sT}, 3
    s_cselect_b32 s{sWq}, s40, s38
    s_cselect_b32 s{sWq+1}, s41, s39
    s_mov_b32 s{sWq+2}, {512*1536*2}
    s_cmov_b32 s{sWq+2}, {512*512*2}
    s_mov_b32 s{sWq+3}, 0x20000
    s_mov_b32 s{sWi}, 3072
    s_cmov_b32 s{sWi}, 1024
    s_cselect_b32 s{sC}, 0, s{sT}
    s_lshl_b32 s{sC}, s{sC}, 10
    s_lshl_b32 s{sWsrc}, s{sCB}, 6            ; 32 cb * 2
    s_add_u32 s{sWsrc}, s{sWsrc}, s{sC}
    s_lshl_b32 s{sT2}, s{sT2}, 5              ; 32 * half
    s_mul_i32 s{sT2}, s{sT2}, s{sWi}
    s_add_u32 s{sWsrc}, s{sWsrc}, s{sT2}
    s_lshl_b32 s{sWstep}, s{sWi}, 6           ; 64 rows
    s_lshl_b32 s{sT2}, s{sWi}, 4              ; 16 rows
    v_lshrrev_b32 v{vT}, 2, v{vL}
    v_mul_lo_u32 v{vT}, v{vT}, s{sWi}
    v_and_b32 v{vT2}, 3, v{vL}
    v_lshl_add_u32 v{vWd}, v{vT2}, 4, v{vT}
    s_mov_b32 s{sWi}, s{sT2}
    """)
    sCk = 44; sXb = 45; sWb = 46
    a(f"s_mov_b32 s{sXb}, s{sXsrc}\ns_mov_b32 s{sWb}, s{sWsrc}")
    rot = X.get("rot", "rb")
    if rot == "rb": a(f"s_and_b32 s{sCk}, s{sRB}, 7")
    elif rot == "j": a(f"s_lshr_b32 s{sCk}, s2, 3\ns_and_b32 s{sCk}, s{sCk}, 7")
    elif rot == "j2": a(f"s_lshr_b32 s{sCk}, s2, 5\ns_and_b32 s{sCk}, s{sCk}, 7")
    else: a(f"s_mov_b32 s{sCk}, 0")
    def dma(slot):
        a(f"""
        s_lshl_b32 s{sT}, s{sCk}, 7
        s_add_u32 s{sXsrc}, s{sXb}, s{sT}
        s_mul_i32 s{sT}, s{sCk}, s{sWstep}
        s_add_u32 s{sWsrc}, s{sWb}, s{sT}
        s_add_u32 m0, s{slot}, s{sLX}
        s_add_u32 s{sT}, s{sWsrc}, s{sWi}
        buffer_load_dwordx4 v{vXd[0]}, s[{sX}:{sX+3}], s{sXsrc} offen lds
        s_add_u32 m0, m0, 1024
        s_add_u32 s{sCk}, s{sCk}, 1
        buffer_load_dwordx4 v{vXd[1]}, s[{sX}:{sX+3}], s{sXsrc} offen lds
        s_add_u32 m0, s{slot}, s{sLW}
        s_and_b32 s{sCk}, s{sCk}, 7
        buffer_load_dwordx4 v{vWd}, s[{sWq}:{sWq+3}], s{sWsrc} offen lds
        s_add_u32 m0, m0, 1024
        s_nop 0
        buffer_load_dwordx4 v{vWd}, s[{sWq}:{sWq+3}], s{sT} offen lds
        """)
    for c in range(3):
        a(f"s_mov_b32 s{sSlotD}, {c*16384}")
        dma(sSlotD)
    a(f"s_mov_b32 s{sSlotD}, {3*16384}\ns_mov_b32 s{sSlot}, 0\ns_mov_b32 s{sC}, 0")
    a(f"""
    s_and_b32 s{sTB}, s{sW}, 3
    v_and_b32 v{vT}, 31, v{vL}               ; t
    v_lshrrev_b32 v{vT2}, 5, v{vL}           ; h
    v_lshrrev_b32 v{vT3}, 1, v{vT}
    v_and_b32 v{vT3}, 7, v{vT3}              ; f
    v_xor_b32 v{vT3}, v{vT3}, v{vT2}         ; f ^ h
    s_lshl_b32 s{sT}, s{sTB}, 12
    v_lshlrev_b32 v{vT}, 7, v{vT}
    v_add_u32 v{vT}, s{sT}, v{vT}            ; row*128
    """)
    for ks in range(4):
        a(f"v_xor_b32 v{vXa0[ks]}, {2*ks}, v{vT3}\nv_lshl_add_u32 v{vXa0[ks]}, v{vXa0[ks]}, 4, v{vT}")
    a(f"""
    v_lshlrev_b32 v{vT}, 9, v{vT2}           ; h*512
    v_bfe_u32 v{vT2}, v{vL}, 2, 2            ; r
    v_lshl_add_u32 v{vT}, v{vT2}, 6, v{vT}
    v_bfe_u32 v{vT2}, v{vL}, 4, 1            ; nhalf
    v_lshl_add_u32 v{vT}, v{vT2}, 5, v{vT}
    v_and_b32 v{vT2}, 3, v{vL}
    v_lshl_add_u32 v{vT}, v{vT2}, 3, v{vT}
    v_add_u32 v{vWa0}, {K1_WS}, v{vT}
    s_cmp_ge_u32 s{sW}, 4
    s_cbranch_scc1 {pfx}_stats
    """)
    def wait_chunk(lbl):
        a(f"""s_cmp_lt_u32 s{sC}, 6
        s_cbranch_scc1 {lbl}_w8
        s_cmp_eq_u32 s{sC}, 6
        s_cbranch_scc1 {lbl}_w4
        s_waitcnt vmcnt(0)
        s_branch {lbl}_wd
        {lbl}_w4:
        s_waitcnt vmcnt(4)
        s_branch {lbl}_wd
        {lbl}_w8:
        s_waitcnt vmcnt(8)
        {lbl}_wd:
        s_waitcnt lgkmcnt(0)
        s_barrier""")
        for ks in range(4): a(f"v_add_u32 v{vXa[ks]}, s{sSlot}, v{vXa0[ks]}")
        a(f"v_add_u32 v{vWa}, s{sSlot}, v{vWa0}")
    def next_chunk(lbl, loop):
        a(f"""s_add_u32 s{sSlot}, s{sSlot}, 16384
        s_and_b32 s{sSlot}, s{sSlot}, 0xffff
        s_add_u32 s{sC}, s{sC}, 1
        s_cmp_lt_u32 s{sC}, 8
        s_cbranch_scc1 {loop}""")
    def dma_cond(lbl):
        a(f"s_cmp_ge_u32 s{sC}, 5\ns_cbranch_scc1 {lbl}_nd")
        dma(sSlotD)
        a(f"s_add_u32 s{sSlotD}, s{sSlotD}, 16384\ns_and_b32 s{sSlotD}, s{sSlotD}, 0xffff")
        a.label(f"{lbl}_nd")
    vXf = [20, 24]; vWf = [28, 44]; vA = [64, 80, 96, 112]
    for i in range(64): a(f"v_mov_b32 v{64+i}, 0")
    for i in range(4): a(f"v_mov_b32 v{vXf[1]+i}, 0")
    for i in range(16): a(f"v_mov_b32 v{vWf[1]+i}, 0")
    def reads(ks, b):
        L = [f"ds_read_b128 {vr(vXf[b],4)}, v{vXa[ks]}"]
        for j in range(4):
            for jj in range(2):
                L.append(f"ds_read_b64_tr_b16 {vr(vWf[b]+4*j+2*jj,2)}, v{vWa} offset:{j*4096 + ks*1024 + jj*256}")
        return L
    def mfmas(b):
        L = []
        for j in range(4):
            x, w = vr(vXf[b], 4), vr(vWf[b] + 4*j, 4)
            ops = f"{x}, {w}" if j == 2 else f"{w}, {x}"
            L.append(f"v_mfma_f32_32x32x16_bf16 {vr(vA[j],16)}, {ops}, {vr(vA[j],16)}")
        return L
    def interleave(m, r):
        split = X.get("split", [3, 2, 2, 2]); k = 0
        if X.get("nomfma"): m = ["s_nop 0"] * 4
        if X.get("noread"): r = []
        for j in range(4):
            a(m[j])
            for _ in range(split[j]):
                if k < len(r): a(r[k]); k += 1
    prof_stamp(a, 0)
    a.L.append(".p2align 6")
    a.label(f"{pfx}_gl")
    wait_chunk(f"{pfx}_g")
    interleave(mfmas(1), reads(0, 0))
    dma_cond(f"{pfx}_g")
    for ks in range(1, 4):
        a("s_waitcnt lgkmcnt(0)")
        interleave(mfmas((ks - 1) & 1), reads(ks, ks & 1))
    next_chunk(f"{pfx}_g", f"{pfx}_gl")
    prof_stamp(a, 1)
    a("s_waitcnt lgkmcnt(0)")
    for m in mfmas(1): a(m)
    a("s_barrier")
    prof_stamp(a, 2)
    vLa = 2; vKo = 3; vVo = 4; vSt = 8
    sQK = 36; sVo = 37; sHo = 38; sC1 = 39
    a(f"""
    v_lshlrev_b32 v{vLa}, 4, v{vL}            ; lane*16
    v_and_b32 v5, 31, v{vL}                   ; t / n
    v_lshrrev_b32 v6, 5, v{vL}                ; h
    v_and_b32 v7, 19, v5
    v_bfe_u32 v8, v5, 2, 1
    v_lshl_or_b32 v7, v8, 3, v7
    v_bfe_u32 v8, v5, 3, 1
    v_lshl_or_b32 v7, v8, 2, v7               ; pi(t)
    v_lshl_add_u32 v7, v6, 5, v7
    v_lshlrev_b32 v{vKo}, 4, v7               ; (h*32 + pi(t))*16
    v_lshrrev_b32 v7, 4, v5                   ; n>>4
    v_lshlrev_b32 v7, 16, v7
    v_lshl_add_u32 v7, v6, 8, v7
    v_and_b32 v8, 15, v5
    v_lshl_add_u32 v{vVo}, v8, 4, v7          ; (n>>4)*65536 + h*256 + d*16
    s_lshl_b32 s{sT}, s{sRB}, 2
    s_add_u32 s{sT}, s{sT}, s{sTB}            ; tblock
    s_lshl_b32 s{sQK}, s{sCB}, 17
    s_lshl_b32 s{sT2}, s{sT}, 10
    s_add_u32 s{sQK}, s{sQK}, s{sT2}
    s_add_u32 s{sVo}, s{sQK}, {hex(WS_VF)}
    s_lshl_b32 s{sHo}, s{sT}, 15              ; tblock*32*1024
    s_lshl_b32 s{sT2}, s{sCB}, 11
    s_add_u32 s{sHo}, s{sHo}, s{sT2}
    s_add_u32 s{sHo}, s{sHo}, {hex(WS_H1)}
    s_lshl_b32 s{sT2}, s{sTB}, 8
    s_add_u32 s{sT2}, s{sT2}, {K1_ST}
    v_lshl_add_u32 v9, v5, 3, s{sT2}
    v_lshlrev_b32 v10, 4, v6
    v_add_u32 v10, {K1_ST + 1024}, v10
    ds_read_b64 v[12:13], v9
    """)
    for i in range(4): a(f"ds_read_b128 {vr(44+4*i,4)}, v10 offset:{32*i}")
    S = f"s[{sWS}:{sWS+3}]"
    a(f"s_mov_b32 s{sT2}, {hex(f2u(QSCALE))}\ns_nop 7")
    for i in range(16): a(f"v_mul_f32 v{vA[0]+i}, s{sT2}, v{vA[0]+i}")
    for i in range(8): a(f"v_cvt_pk_bf16_f32 v{20+i}, v{vA[0]+2*i}, v{vA[0]+2*i+1}")
    a(f"buffer_store_dwordx4 {vr(20,4)}, v{vLa}, {S}, s{sQK} offen")
    a(f"s_add_u32 s{sT}, s{sQK}, 65536\nbuffer_store_dwordx4 {vr(24,4)}, v{vLa}, {S}, s{sT} offen")
    for i in range(8): a(f"v_cvt_pk_bf16_f32 v{28+i}, v{vA[1]+2*i}, v{vA[1]+2*i+1}")
    a(f"s_add_u32 s{sT}, s{sQK}, {hex(WS_KF)}\nbuffer_store_dwordx4 {vr(28,4)}, v{vKo}, {S}, s{sT} offen")
    a(f"s_add_u32 s{sT}, s{sT}, 65536\nbuffer_store_dwordx4 {vr(32,4)}, v{vKo}, {S}, s{sT} offen")
    for i in range(8): a(f"v_cvt_pk_bf16_f32 v{36+i}, v{vA[2]+2*i}, v{vA[2]+2*i+1}")
    a(f"buffer_store_dwordx4 {vr(36,4)}, v{vVo}, {S}, s{sVo} offen")
    a(f"buffer_store_dwordx4 {vr(40,4)}, v{vVo}, {S}, s{sVo} offen offset:512")
    a(f"s_mov_b32 s{sC2}, {hex(f2u(GC2))}\nv_mov_b32 v14, {hex(f2u(GC1))}\ns_waitcnt lgkmcnt(0)")
    h = vA[3]
    for i in range(16): a(f"v_mul_f32 v{h+i}, v{h+i}, v12\nv_fmac_f32 v{h+i}, v13, v{44+i}")
    for g in range(0, 16, 4):
        emit_interleaved(a, [gelu_ops(a, h + g + i, 60 + i, 14, sC2) for i in range(4)])
    for i in range(8): a(f"v_cvt_pk_bf16_f32 v{44+i}, v{h+2*i}, v{h+2*i+1}")
    a(f"buffer_store_dwordx4 {vr(44,4)}, v{vLa}, {S}, s{sHo} offen")
    a(f"buffer_store_dwordx4 {vr(48,4)}, v{vLa}, {S}, s{sHo} offen offset:1024")
    prof_stamp(a, 3)
    prof_end(a, 2, sW, 8, sWS, vtmp=20)
    a("s_endpgm")
    a.label(f"{pfx}_stats")
    vs1 = [20, 21]; vs2 = [22, 23]; vc = [24, 25]; vF = 28; vG = 44; vU = 48
    for r in vs1 + vs2 + vc: a(f"v_mov_b32 v{r}, 0")
    a(f"""v_lshlrev_b32 v26, 2, v{vL}
    v_add_u32 v26, {K1_ST + 1024}, v26
    v_mov_b32 v27, 0
    s_cmp_eq_u32 s{sW}, 4
    s_cbranch_scc0 {pfx}_nz
    s_mov_b64 exec, 0xffffffff
    ds_write_b32 v26, v27
    s_mov_b64 exec, -1""")
    a.label(f"{pfx}_nz")
    prof_stamp(a, 0)
    a.label(f"{pfx}_sl")
    wait_chunk(f"{pfx}_s")
    if X.get("nostatread"): a(f"s_branch {pfx}_skipst")
    for ks in range(4): a(f"ds_read_b128 {vr(vF+4*ks,4)}, v{vXa[ks]}")
    a(f"s_lshl_b32 s{sT}, s{sTB}, 10\nv_add_u32 v26, s{sT}, v{vWa}")
    a(f"ds_read_b64_tr_b16 {vr(vG,2)}, v26 offset:{3*4096}\nds_read_b64_tr_b16 {vr(vG+2,2)}, v26 offset:{3*4096+256}")
    if X.get("nostatread"): a.label(f"{pfx}_skipst")
    dma_cond(f"{pfx}_s")
    if X.get("nostatvalu") or X.get("nostatread"): a(f"s_branch {pfx}_skipst2")
    for ks in range(4):
        a(f"s_waitcnt lgkmcnt({5-ks})")
        for i in range(4):
            x = vF + 4*ks + i
            a(f"""v_lshlrev_b32 v{vU}, 16, v{x}
            v_and_b32 v{vU+1}, 0xffff0000, v{x}
            v_add_f32 v{vs1[0]}, v{vs1[0]}, v{vU}
            v_add_f32 v{vs1[1]}, v{vs1[1]}, v{vU+1}
            v_fmac_f32 v{vs2[0]}, v{vU}, v{vU}
            v_fmac_f32 v{vs2[1]}, v{vU+1}, v{vU+1}""")
    a("s_waitcnt lgkmcnt(0)")
    for i in range(4):
        x = vG + i
        a(f"""v_lshlrev_b32 v{vU}, 16, v{x}
        v_and_b32 v{vU+1}, 0xffff0000, v{x}
        v_add_f32 v{vc[0]}, v{vc[0]}, v{vU}
        v_add_f32 v{vc[1]}, v{vc[1]}, v{vU+1}""")
    a.label(f"{pfx}_skipst2")
    next_chunk(f"{pfx}_s", f"{pfx}_sl")
    prof_stamp(a, 1)
    a(f"""
    v_add_f32 v20, v20, v21
    v_add_f32 v22, v22, v23
    v_add_f32 v24, v24, v25
    v_mov_b32 v21, v20
    v_mov_b32 v23, v22
    s_nop 1
    v_permlane32_swap_b32 v20, v21
    v_permlane32_swap_b32 v22, v23
    v_and_b32 v26, 31, v{vL}
    v_lshlrev_b32 v27, 2, v26
    v_add_u32 v27, {K1_ST + 1024}, v27
    ds_add_f32 v27, v24
    v_add_f32 v20, v20, v21                   ; sum
    v_add_f32 v22, v22, v23                   ; sumsq
    v_mul_f32 v20, {hex(f2u(1/512))}, v20     ; mean
    v_mul_f32 v22, {hex(f2u(1/512))}, v22
    v_fma_f32 v22, -v20, v20, v22             ; var
    v_max_f32 v22, 0, v22
    v_add_f32 v22, {hex(f2u(1e-5))}, v22
    v_rsq_f32 v28, v22
    s_nop 0
    v_mul_f32 v29, v20, v28
    v_sub_f32 v29, 0, v29
    s_lshl_b32 s{sT}, s{sTB}, 8
    s_add_u32 s{sT}, s{sT}, {K1_ST}
    v_lshl_add_u32 v27, v26, 3, s{sT}
    s_mov_b64 exec, 0xffffffff
    ds_write_b64 v27, v[28:29]
    s_mov_b64 exec, -1
    s_waitcnt lgkmcnt(0)
    s_barrier
    """)
    prof_stamp(a, 2); prof_stamp(a, 3)
    prof_end(a, 2, sW, 8, sWS, vtmp=20)
    a("s_endpgm")
    return 128
```

```python
from common import *
from k1 import vr, f2u, gelu_ops, emit_interleaved, GC1, GC2
W3_SLOT = 24576
W3_CS = 3 * W3_SLOT
W3_LDS = W3_CS + 1024
def gen_w3(a, pfx, s_id, wait_hook=None):
    sWS = 8; sWm = 12
    sW, sKH, sTB, sRB, sCB, sT, sT2 = 16, 17, 18, 19, 20, 21, 22
    sXs = 23; sWb = 24; sLd = 25; sS = [26, 27, 28]; sC2 = 29; sTbk = 30
    vL = 1; vL16 = 2; vWd = 3; vWa = [4, 5, 6]; vT = 7; vT2 = 8; vT3 = 9; vSt = 10
    vX = 12
    vA = [32, 48, 64]; vCS = 80; vWf = [96, 108]; vOne = 120
    a.c("==== G2: w3 ====")
    prof_start(a)
    a(f"s_load_dwordx2 s[40:41], s[0:1], {KA['ws']}\ns_load_dwordx2 s[42:43], s[0:1], {KA['w3']}")
    a(f"""
    v_lshrrev_b32 v{vT}, 6, v0
    v_and_b32 v{vL}, 63, v0
    v_readfirstlane_b32 s{sW}, v{vT}
    v_lshlrev_b32 v{vL16}, 4, v{vL}
    s_and_b32 s{sT}, s{s_id}, 7
    s_lshr_b32 s{sT2}, s{s_id}, 3
    s_lshr_b32 s{sRB}, s{sT}, 1
    s_lshl_b32 s{sRB}, s{sRB}, 2
    s_and_b32 s{sCB}, s{sT2}, 3
    s_add_u32 s{sRB}, s{sRB}, s{sCB}           ; rb 0..15
    s_and_b32 s{sCB}, s{sT}, 1
    s_lshl_b32 s{sCB}, s{sCB}, 3
    s_lshr_b32 s{sT2}, s{sT2}, 2
    s_add_u32 s{sCB}, s{sCB}, s{sT2}           ; cb 0..15
    s_cmp_ge_u32 s{sCB}, 15
    s_cbranch_scc1 {pfx}_exit
    s_lshr_b32 s{sKH}, s{sW}, 2
    s_and_b32 s{sTB}, s{sW}, 3
    s_lshl_b32 s{sTbk}, s{sRB}, 2
    s_add_u32 s{sTbk}, s{sTbk}, s{sTB}         ; tblock
    """)
    a(f"""
    s_mul_i32 s{sLd}, s{sW}, 3072
    s_lshl_b32 s{sT}, s{sKH}, 4
    s_add_u32 s{sT}, s{sT}, s{sTB}
    s_mul_i32 s{sWb}, s{sT}, {16*2752}
    s_mul_i32 s{sT}, s{sCB}, 192
    s_add_u32 s{sWb}, s{sWb}, s{sT}
    v_lshrrev_b32 v{vT}, 2, v{vL}
    v_mul_u32_u24 v{vT}, 2752, v{vT}
    v_and_b32 v{vT2}, 3, v{vL}
    v_lshl_add_u32 v{vWd}, v{vT2}, 4, v{vT}
    s_mul_i32 s{sXs}, s{sTbk}, 32768
    s_lshl_b32 s{sT}, s{sKH}, 14
    s_add_u32 s{sXs}, s{sXs}, s{sT}
    s_add_u32 s{sXs}, s{sXs}, {hex(WS_X1)}
    """)
    for p in range(3):
        a(f"""s_add_u32 s{sS[p]}, s{sTB}, {p}
        s_cmp_ge_u32 s{sS[p]}, 3
        s_cselect_b32 s{sT}, 3, 0
        s_sub_u32 s{sS[p]}, s{sS[p]}, s{sT}
        s_cmp_ge_u32 s{sS[p]}, 3
        s_cselect_b32 s{sT}, 3, 0
        s_sub_u32 s{sS[p]}, s{sS[p]}, s{sT}""")
    a(f"""
    v_lshrrev_b32 v{vT}, 5, v{vL}             ; h
    v_lshlrev_b32 v{vT}, 8, v{vT}
    v_bfe_u32 v{vT2}, v{vL}, 2, 2
    v_lshl_add_u32 v{vT}, v{vT2}, 6, v{vT}
    v_bfe_u32 v{vT2}, v{vL}, 4, 1
    v_lshl_add_u32 v{vT}, v{vT2}, 5, v{vT}
    v_and_b32 v{vT2}, 3, v{vL}
    v_lshl_add_u32 v{vT}, v{vT2}, 3, v{vT}
    s_mul_i32 s{sT2}, s{sKH}, {4*3072}
    """)
    for p in range(3):
        a(f"s_lshl_b32 s{sT}, s{sS[p]}, 10\ns_add_u32 s{sT}, s{sT}, s{sT2}\nv_add_u32 v{vWa[p]}, s{sT}, v{vT}")
    a("s_waitcnt lgkmcnt(0)")
    srd(a, sWS, 40, 41, WS_USED); srd(a, sWm, 42, 43, 512*1376*2)
    def wdma(c):
        slot = (c % 3) * W3_SLOT
        a(f"s_add_u32 m0, s{sLd}, {slot}\ns_add_u32 s{sT}, s{sWb}, {c*4*16*2752}")
        for j in range(3):
            a(f"buffer_load_dwordx4 v{vWd}, s[{sWm}:{sWm+3}], s{sT} offen lds")
            if j < 2: a(f"s_add_u32 m0, m0, 1024\ns_add_u32 s{sT}, s{sT}, 64")
    wdma(0); wdma(1)
    if wait_hook: wait_hook()
    a(f"""
    v_and_b32 v{vT}, 31, v{vL}
    v_lshlrev_b32 v{vT}, 6, v{vT}
    v_lshrrev_b32 v{vT2}, 5, v{vL}
    v_lshl_add_u32 v{vT}, v{vT2}, 5, v{vT}     ; t*64 + h*32
    s_lshl_b32 s{sT}, s{sTbk}, 11
    s_add_u32 s{sT}, s{sT}, {hex(WS_ST)}
    buffer_load_dwordx4 v[80:83], v{vT}, s[{sWS}:{sWS+3}], s{sT} offen
    buffer_load_dwordx4 v[84:87], v{vT}, s[{sWS}:{sWS+3}], s{sT} offen offset:16
    """)
    def xload(c, ks):
        a(f"s_add_u32 s{sT}, s{sXs}, {(4*c+ks)*1024}\nbuffer_load_dwordx4 {vr(vX+4*ks,4)}, v{vL16}, s[{sWS}:{sWS+3}], s{sT} offen")
    for ks in range(4): xload(0, ks)
    for i in range(48): a(f"v_mov_b32 v{32+i}, 0")
    for i in range(4): a(f"v_mov_b32 v{vOne+i}, 0x3f803f80")
    a(f"""s_waitcnt vmcnt(4)
    v_add_f32 v80, v80, v82
    v_add_f32 v81, v81, v83
    v_add_f32 v84, v84, v86
    v_add_f32 v85, v85, v87
    v_add_f32 v80, v80, v84
    v_add_f32 v82, v81, v85
    v_mov_b32 v81, v80
    v_mov_b32 v83, v82
    s_nop 1
    v_permlane32_swap_b32 v80, v81
    v_permlane32_swap_b32 v82, v83
    s_nop 1
    v_add_f32 v80, v80, v81
    v_add_f32 v82, v82, v83
    v_mul_f32 v80, {hex(f2u(1/512))}, v80
    v_mul_f32 v82, {hex(f2u(1/512))}, v82
    v_fma_f32 v82, -v80, v80, v82
    v_max_f32 v82, 0, v82
    v_add_f32 v82, {hex(f2u(1e-5))}, v82
    v_rsq_f32 v{vSt}, v82
    s_nop 0
    v_mul_f32 v{vSt+1}, v80, v{vSt}
    v_sub_f32 v{vSt+1}, 0, v{vSt+1}
    """)
    for i in range(16): a(f"v_mov_b32 v{vCS+i}, 0")
    prof_stamp(a, 0)
    def wreads(c, ks, b):
        slot = (c % 3) * W3_SLOT
        L = []
        for p in range(3):
            for jj in range(2):
                L.append(f"ds_read_b64_tr_b16 {vr(vWf[b]+4*p+2*jj,2)}, v{vWa[p]} offset:{slot + ks*3072 + jj*512}")
        return L
    NCH = 4
    for c in range(NCH):
        n = (3 if c + 1 < NCH else 0) + 4
        if c == 0: n = 3 + 2 + 4
        if c == 0: n = 7 + 2
        a(f"s_waitcnt vmcnt({7 if c + 1 < NCH else 4})\ns_barrier")
        for r in wreads(c, 0, 0): a(r)
        if c + 2 < NCH: wdma(c + 2)
        for ks in range(4):
            b = ks & 1
            nxt = wreads(c, ks + 1, b ^ 1) if ks < 3 else []
            vm = (3 - ks) + (3 if c + 2 < NCH else 0) + (ks if c + 1 < NCH else 0)
            a(f"s_waitcnt vmcnt({vm}) lgkmcnt(0)")
            x = vr(vX + 4*ks, 4)
            for p in range(3):
                a(f"v_mfma_f32_32x32x16_bf16 {vr(vA[p],16)}, {vr(vWf[b]+4*p,4)}, {x}, {vr(vA[p],16)}")
                for r in nxt[2*p:2*p+2]: a(r)
            a(f"v_mfma_f32_32x32x16_bf16 {vr(vCS,16)}, {vr(vWf[b],4)}, {vr(vOne,4)}, {vr(vCS,16)}")
            if c + 1 < NCH: xload(c + 1, ks)
    prof_stamp(a, 1)
    a(f"""s_barrier
    s_mul_i32 s{sT}, s{sW}, 6144
    v_add_u32 v{vT}, s{sT}, v{vL16}
    s_xor_b32 s{sT2}, s{sW}, 4
    s_mul_i32 s{sT2}, s{sT2}, 6144
    v_add_u32 v{vT2}, s{sT2}, v{vL16}
    s_mul_i32 s{sT}, s{sKH}, 3
    s_add_u32 s{sT}, s{sT}, s{sS[0]}
    s_lshl_b32 s{sT}, s{sT}, 7
    s_add_u32 s{sT}, s{sT}, {W3_CS}
    v_lshrrev_b32 v{vT3}, 5, v{vL}
    v_lshl_add_u32 v{vT3}, v{vT3}, 4, s{sT}
    s_nop 4
    s_cmp_eq_u32 s{sTB}, 3
    s_cbranch_scc1 {pfx}_nocs
    s_mov_b32 exec_lo, 1
    s_mov_b32 exec_hi, 1
    """)
    for i in range(4): a(f"ds_write_b128 v{vT3}, {vr(vCS+4*i,4)} offset:{32*i}")
    a("s_mov_b64 exec, -1")
    a.label(f"{pfx}_nocs")
    a(f"s_cmp_eq_u32 s{sKH}, 0\ns_cbranch_scc0 {pfx}_r1")
    for p in range(3):
        a(f"ds_write_b128 v{vT}, {vr(vA[p]+8,4)} offset:{p*2048}\nds_write_b128 v{vT}, {vr(vA[p]+12,4)} offset:{p*2048+1024}")
    a(f"s_branch {pfx}_r2")
    a.label(f"{pfx}_r1")
    for p in range(3):
        a(f"ds_write_b128 v{vT}, {vr(vA[p],4)} offset:{p*2048}\nds_write_b128 v{vT}, {vr(vA[p]+4,4)} offset:{p*2048+1024}")
        for j in range(8): a(f"v_mov_b32 v{vA[p]+j}, v{vA[p]+8+j}")
    a.label(f"{pfx}_r2")
    a("s_waitcnt lgkmcnt(0)\ns_barrier")
    for p in range(3):
        a(f"ds_read_b128 {vr(vA[p]+8,4)}, v{vT2} offset:{p*2048}\nds_read_b128 {vr(vA[p]+12,4)}, v{vT2} offset:{p*2048+1024}")
    CS = 80
    a(f"v_lshrrev_b32 v{vT3}, 5, v{vL}\nv_lshlrev_b32 v{vT3}, 4, v{vT3}\ns_lshl_b32 s{sT2}, s{sKH}, 6\ns_add_u32 s{sT2}, s{sT2}, {W3_CS}")
    for p in range(3):
        a(f"s_lshl_b32 s{sT}, s{sS[p]}, 7\ns_add_u32 s{sT}, s{sT}, s{sT2}\nv_add_u32 v{vT}, s{sT}, v{vT3}")
        a(f"ds_read_b128 {vr(CS+16*p,4)}, v{vT}\nds_read_b128 {vr(CS+16*p+4,4)}, v{vT} offset:32")
        if p < 2:
            a(f"ds_read_b128 {vr(CS+16*p+8,4)}, v{vT} offset:384\nds_read_b128 {vr(CS+16*p+12,4)}, v{vT} offset:416")
        else:
            a(f"ds_read_b128 {vr(12,4)}, v{vT} offset:384\nds_read_b128 {vr(16,4)}, v{vT} offset:416")
    a("s_waitcnt lgkmcnt(0)")
    a(f"s_mov_b32 s{sC2}, {hex(f2u(GC2))}\nv_mov_b32 v{vT3}, {hex(f2u(GC1))}")
    for p in range(3):
        o = CS + 16*p + 8 if p < 2 else 12
        for j in range(8):
            a(f"v_add_f32 v{vA[p]+j}, v{vA[p]+j}, v{vA[p]+8+j}\nv_add_f32 v{CS+16*p+j}, v{CS+16*p+j}, v{o+j}")
        for j in range(8):
            a(f"v_mul_f32 v{vA[p]+j}, v{vA[p]+j}, v{vSt}\nv_fmac_f32 v{vA[p]+j}, v{vSt+1}, v{CS+16*p+j}")
        for g in range(0, 8, 4):
            emit_interleaved(a, [gelu_ops(a, vA[p] + g + i, 24 + i, vT3, sC2) for i in range(4)])
        for i in range(4): a(f"v_cvt_pk_bf16_f32 v{vA[p]+8+i}, v{vA[p]+2*i}, v{vA[p]+2*i+1}")
        a(f"""s_mul_i32 s{sT}, s{sCB}, 6
        s_lshl_b32 s{sT2}, s{sS[p]}, 1
        s_add_u32 s{sT}, s{sT}, s{sT2}
        s_add_u32 s{sT}, s{sT}, s{sKH}
        s_cmp_ge_u32 s{sT}, 86
        s_cbranch_scc1 {pfx}_ns{p}
        s_mul_i32 s{sT2}, s{sTbk}, 86
        s_add_u32 s{sT}, s{sT}, s{sT2}
        s_lshl_b32 s{sT}, s{sT}, 10
        s_add_u32 s{sT}, s{sT}, {hex(WS_H2)}
        buffer_store_dwordx4 {vr(vA[p]+8,4)}, v{vL16}, s[{sWS}:{sWS+3}], s{sT} offen""")
        a.label(f"{pfx}_ns{p}")
    prof_stamp(a, 2); prof_stamp(a, 3)
    prof_end(a, s_id, sW, 8, sWS, vtmp=32)
    a.label(f"{pfx}_exit")
    a("s_endpgm")
    return 124
```

```python
from common import *
import gemm64 as G
from gemm64 import *
from k1 import vr, f2u

def load_ptrs(a, items):
    for i, (k, s) in enumerate(items): a(f"s_load_dwordx2 s[{s}:{s+1}], s[0:1], {KA[k]}")

def gen_w2(a, pfx, s_id):
    a.c("==== G0: w2 ====")
    prof_start(a)
    load_ptrs(a, [("ws", 40), ("w2", 42), ("x", 44), ("gw", 46)])
    setup(a, s_id)
    vXdB = 28; vXres = 64; vGw = 68
    sX = 48; sGW = 52
    a(f"""
    s_add_u32 s{sT}, s{sWR}, 1                 ; |delta|
    s_lshl_b32 s{sT2}, s{sRB}, 1
    s_add_u32 s{sT2}, s{sT2}, s{sWC}
    s_lshl_b32 s{sT2}, s{sT2}, 5
    v_and_b32 v{vT}, 31, v{vL}
    v_add_u32 v{vT}, s{sT2}, v{vT}             ; row
    v_lshrrev_b32 v{vT2}, 5, v{vL}
    v_lshlrev_b32 v{vT2}, 9, v{vT2}            ; h*512
    """)
    for dst, op in ((vXd, "v_subrev_u32"), (vXdB, "v_add_u32")):
        a(f"""
        {op} v{vT3}, s{sT}, v{vT}               ; source row r
        v_ashrrev_i32 v29, 5, v{vT3}
        v_subrev_u32 v29, s{sT2}, v{vT3}
        v_add_u32 v29, 32, v29                  ; +32
        v_lshrrev_b32 v30, 5, v29
        v_lshlrev_b32 v30, 15, v30
        v_and_b32 v29, 31, v29
        v_lshl_add_u32 v30, v29, 4, v30
        v_add_u32 v{dst}, v30, v{vT2}
        v_cmp_gt_u32 vcc, 2048, v{vT3}          ; 0 <= r < 2048 (unsigned)
        v_mov_b32 v29, 0x7ff00000
        s_nop 0
        v_cndmask_b32 v{dst}, v29, v{dst}, vcc
        """)
    a("s_waitcnt lgkmcnt(0)")
    srd(a, sWS, 40, 41, WS_USED); srd(a, sWm, 42, 43, 512*512*2); srd(a, sX, 44, 45, 2048*512*2); srd(a, sGW, 46, 47, 1024)
    sN0 = 56; sRow = 57
    a(f"""
    s_lshl_b32 s{sN0}, s{sCB}, 2
    s_lshl_b32 s{sT}, s{sWC}, 1
    s_add_u32 s{sN0}, s{sN0}, s{sT}
    s_add_u32 s{sN0}, s{sN0}, s{sKH}
    s_lshl_b32 s{sRow}, s{sRB}, 1
    s_add_u32 s{sRow}, s{sRow}, s{sWR}         ; tblock
    v_and_b32 v{vT}, 31, v{vL}
    v_lshlrev_b32 v{vT}, 10, v{vT}
    v_lshrrev_b32 v{vT2}, 5, v{vL}
    v_lshlrev_b32 v{vT2}, 3, v{vT2}            ; h*8 bytes
    v_add_u32 v{vT}, v{vT}, v{vT2}
    s_lshl_b32 s{sT}, s{sRow}, 15
    s_lshl_b32 s{sT2}, s{sN0}, 5
    s_add_u32 s{sT}, s{sT}, s{sT2}
    buffer_load_dwordx2 {vr(vXres,2)}, v{vT}, s[{sX}:{sX+3}], s{sT} offen
    buffer_load_dwordx2 {vr(vXres+2,2)}, v{vT}, s[{sX}:{sX+3}], s{sT} offen offset:16
    buffer_load_dwordx2 {vr(vGw,2)}, v{vT2}, s[{sGW}:{sGW+3}], s{sT2} offen
    buffer_load_dwordx2 {vr(vGw+2,2)}, v{vT2}, s[{sGW}:{sGW+3}], s{sT2} offen offset:16
    """)
    seg_setup(a, WS_H1 - 32768, 32, 16, 1024)
    a(f"s_mov_b32 s{sSlotD}, 0\ns_mov_b32 s{sSlot}, 0")
    for c in range(3): dma(a, vXd)
    for i in range(16): a(f"v_mov_b32 v{vAcc[0]+i}, 0")
    def pre():
        a(f"s_cmp_eq_u32 s{sC}, 1\ns_cbranch_scc0 {pfx}_nsw\nv_mov_b32 v{vXd}, v{vXdB}")
        a.label(f"{pfx}_nsw")
    prof_stamp(a, 0)
    main_loop(a, pfx, 8, vAcc[0], pre_dma=pre)
    prof_stamp(a, 1)
    reduce_halves(a, pfx, [vAcc[0]])
    prof_stamp(a, 2)
    acc = vAcc[0]; U = 72
    for i in range(4):
        a(f"v_lshlrev_b32 v{U+2*i}, 16, v{vXres+i}\nv_and_b32 v{U+2*i+1}, 0xffff0000, v{vXres+i}")
        a(f"v_lshlrev_b32 v{U+8+2*i}, 16, v{vGw+i}\nv_and_b32 v{U+8+2*i+1}, 0xffff0000, v{vGw+i}")
    a(f"v_mul_f32 v{U+16}, v{U}, v{U+8}")
    for i in range(1, 8): a(f"v_fmac_f32 v{U+16}, v{U+i}, v{U+8+i}")
    for i in range(8): a(f"v_add_f32 v{acc+i}, v{acc+i}, v{U+i}")
    for i in range(4): a(f"v_cvt_pk_bf16_f32 v{vXf[0]+i}, v{acc+2*i}, v{acc+2*i+1}")
    a(f"""s_lshl_b32 s{sT}, s{sRow}, 5
    s_add_u32 s{sT}, s{sT}, s{sN0}
    s_lshl_b32 s{sT}, s{sT}, 10
    s_add_u32 s{sT}, s{sT}, {hex(WS_X1)}
    buffer_store_dwordx4 {vr(vXf[0],4)}, v{vL16}, s[{sWS}:{sWS+3}], s{sT} offen""")
    for i in range(4):
        a(f"v_lshlrev_b32 v{U+2*i}, 16, v{vXf[0]+i}\nv_and_b32 v{U+2*i+1}, 0xffff0000, v{vXf[0]+i}")
    a(f"v_add_f32 v{U+18}, v{U}, v{U+1}\nv_mul_f32 v{U+20}, v{U}, v{U}\nv_fmac_f32 v{U+20}, v{U+1}, v{U+1}")
    for i in range(2, 8): a(f"v_add_f32 v{U+18}, v{U+18}, v{U+i}\nv_fmac_f32 v{U+20}, v{U+i}, v{U+i}")
    a(f"v_mov_b32 v{U+17}, v{U+16}\nv_mov_b32 v{U+19}, v{U+18}\nv_mov_b32 v{U+21}, v{U+20}\ns_nop 1")
    a(f"v_permlane32_swap_b32 v{U+16}, v{U+17}\nv_permlane32_swap_b32 v{U+18}, v{U+19}\nv_permlane32_swap_b32 v{U+20}, v{U+21}\ns_nop 1")
    a(f"v_add_f32 v{U+2}, v{U+16}, v{U+17}\nv_add_f32 v{U}, v{U+18}, v{U+19}\nv_add_f32 v{U+1}, v{U+20}, v{U+21}\nv_mov_b32 v{U+3}, 0")
    a(f"""v_and_b32 v{vT}, 31, v{vL}
    s_lshl_b32 s{sT}, s{sW}, 9
    v_lshl_add_u32 v{vT}, v{vT}, 4, s{sT}
    s_mov_b64 exec, 0xffffffff
    ds_write_b128 v{vT}, {vr(U,4)}
    s_mov_b64 exec, -1
    s_waitcnt lgkmcnt(0)
    s_barrier
    s_cmp_eq_u32 s{sW}, 0
    s_cbranch_scc0 {pfx}_done
    v_lshrrev_b32 v{vT}, 5, v{vL}
    v_lshlrev_b32 v{vT}, 10, v{vT}
    v_and_b32 v{vT2}, 31, v{vL}
    v_lshl_add_u32 v{vT}, v{vT2}, 4, v{vT}
    ds_read_b128 v[72:75], v{vT}
    ds_read_b128 v[76:79], v{vT} offset:512
    ds_read_b128 v[80:83], v{vT} offset:2048
    ds_read_b128 v[84:87], v{vT} offset:2560
    s_waitcnt lgkmcnt(0)
    """)
    for j in range(3): a(f"v_add_f32 v{72+j}, v{72+j}, v{76+j}\nv_add_f32 v{80+j}, v{80+j}, v{84+j}\nv_add_f32 v{72+j}, v{72+j}, v{80+j}")
    a(f"""
    s_lshl_b32 s{sT}, s{sRB}, 6
    v_add_u32 v{vT}, s{sT}, v{vL}
    v_lshlrev_b32 v{vT2}, 6, v{vT}
    s_lshl_b32 s{sT}, s{sCB}, 3
    s_add_u32 s{sT}, s{sT}, {hex(WS_ST)}
    buffer_store_dwordx2 v[72:73], v{vT2}, s[{sWS}:{sWS+3}], s{sT} offen
    v_lshlrev_b32 v{vT2}, 5, v{vT}
    s_lshl_b32 s{sT}, s{sCB}, 2
    s_add_u32 s{sT}, s{sT}, {hex(WS_GP)}
    buffer_store_dword v74, v{vT2}, s[{sWS}:{sWS+3}], s{sT} offen
    """)
    a.label(f"{pfx}_done")
    prof_stamp(a, 3)
    prof_end(a, s_id, sW, 8, sWS, vtmp=32)
    a("s_endpgm")
    return 96

def gen_final(a, pfx, s_id):
    a.c("==== final ====")
    prof_start(a)
    load_ptrs(a, [("ws", 40), ("wo", 42), ("w4", 44), ("out", 46)])
    setup(a, s_id)
    sO = 48; sN0 = 56; sRow = 57
    a("s_waitcnt lgkmcnt(0)")
    srd(a, sWS, 40, 41, WS_USED); srd(a, sWm, 42, 43, 512*512*2); srd(a, sO, 46, 47, 2048*512*2)
    vX1 = 64; vGp = 68
    a(f"""
    s_lshl_b32 s{sN0}, s{sCB}, 2
    s_lshl_b32 s{sT}, s{sWC}, 1
    s_add_u32 s{sN0}, s{sN0}, s{sT}
    s_add_u32 s{sN0}, s{sN0}, s{sKH}
    s_lshl_b32 s{sRow}, s{sRB}, 1
    s_add_u32 s{sRow}, s{sRow}, s{sWR}
    s_lshl_b32 s{sT}, s{sRow}, 5
    s_add_u32 s{sT}, s{sT}, s{sN0}
    s_lshl_b32 s{sT}, s{sT}, 10
    s_add_u32 s{sT}, s{sT}, {hex(WS_X1)}
    buffer_load_dwordx4 {vr(vX1,4)}, v{vL16}, s[{sWS}:{sWS+3}], s{sT} offen
    v_and_b32 v{vT}, 31, v{vL}
    v_lshlrev_b32 v{vT}, 5, v{vT}              ; t*32
    v_lshrrev_b32 v{vT2}, 5, v{vL}
    v_lshl_add_u32 v{vT}, v{vT2}, 4, v{vT}     ; + h*16
    s_lshl_b32 s{sT}, s{sRow}, 10
    s_add_u32 s{sT}, s{sT}, {hex(WS_GP)}
    buffer_load_dwordx4 {vr(vGp,4)}, v{vT}, s[{sWS}:{sWS+3}], s{sT} offen
    """)
    seg_setup(a, WS_OF, 32, 16, 1024)
    a(f"v_mov_b32 v{vXd}, v{vL16}\ns_mov_b32 s{sSlotD}, 0\ns_mov_b32 s{sSlot}, 0")
    for c in range(3): dma(a, vXd)
    for i in range(32): a(f"v_mov_b32 v{vAcc[0]+i}, 0")
    prof_stamp(a, 0)
    main_loop(a, pfx + "a", 8, vAcc[0])
    prof_stamp(a, 1)
    a(f"s_mov_b32 s{sWm}, s44\ns_mov_b32 s{sWm+1}, s45\ns_mov_b32 s{sWm+2}, {1376*512*2}")
    seg_setup(a, WS_H2, 86, 44, 1024)
    a("s_barrier")
    for c in range(3): dma(a, vXd)
    main_loop(a, pfx + "b", 22, vAcc[1])
    prof_stamp(a, 2)
    a("s_barrier")
    G.G64_XCH = 0
    reduce_halves(a, pfx, [vAcc[0], vAcc[1]])
    G.G64_XCH = G.G64_RING
    g = 72
    a(f"""v_add_f32 v{g}, v{vGp}, v{vGp+1}
    v_add_f32 v{g+1}, v{vGp+2}, v{vGp+3}
    v_add_f32 v{g}, v{g}, v{g+1}
    v_mov_b32 v{g+1}, v{g}
    s_nop 1
    v_permlane32_swap_b32 v{g}, v{g+1}
    s_nop 1
    v_add_f32 v{g}, v{g}, v{g+1}
    v_mul_f32 v{g}, {hex(f2u(-1.4426950408889634))}, v{g}
    v_exp_f32 v{g}, v{g}
    s_nop 0
    v_add_f32 v{g}, 1.0, v{g}
    v_rcp_f32 v{g}, v{g}                       ; g
    s_nop 0
    v_sub_f32 v{g+1}, 1.0, v{g}                ; 1-g
    """)
    U = 76
    for i in range(4): a(f"v_lshlrev_b32 v{U+2*i}, 16, v{vX1+i}\nv_and_b32 v{U+2*i+1}, 0xffff0000, v{vX1+i}")
    A, B = vAcc
    for i in range(8): a(f"v_add_f32 v{B+i}, v{B+i}, v{U+i}\nv_mul_f32 v{B+i}, v{B+i}, v{g+1}\nv_fmac_f32 v{B+i}, v{A+i}, v{g}")
    for i in range(4): a(f"v_cvt_pk_bf16_f32 v{U+i}, v{B+2*i}, v{B+2*i+1}")
    a(f"""s_nop 1
    v_permlane32_swap_b32 v{U}, v{U+2}
    v_permlane32_swap_b32 v{U+1}, v{U+3}
    v_and_b32 v{vT}, 31, v{vL}
    v_lshlrev_b32 v{vT}, 10, v{vT}
    v_lshrrev_b32 v{vT2}, 5, v{vL}
    v_lshl_add_u32 v{vT}, v{vT2}, 4, v{vT}
    s_lshl_b32 s{sT}, s{sRow}, 15
    s_lshl_b32 s{sT2}, s{sN0}, 5
    s_add_u32 s{sT}, s{sT}, s{sT2}
    buffer_store_dwordx4 {vr(U,4)}, v{vT}, s[{sO}:{sO+3}], s{sT} offen
    """)
    prof_stamp(a, 3)
    prof_end(a, s_id, sW, 8, sWS, vtmp=32)
    a("s_endpgm")
    return 96
```

```python
import sys
from common import *
import k1, attn2, roles64, role_w3, gemm64
MAIN = "gated_mix__softmax_full_mha__mixer_s_mlp__prompt_kernel"
def build(path, variant="seq5"):
    a = Asm()
    hdr = open("gated_mix__softmax_full_mha__mixer_s_mlp__prompt.s.ref").read().split("\n")
    for l in hdr:
        if l.startswith("; Override") : break
        a.L.append(l)
    ks = [("k1_kernel", 256, k1.K1_LDS, lambda p: k1.gen_k1(a, p)),
          ("attn_kernel", 256, attn2.ATT_LDS, lambda p: attn2.gen_attn(a, p, 2)),
          ("w2_kernel", 256, gemm64.G64_LDS, lambda p: roles64.gen_w2(a, p, 2)),
          ("w3_kernel", 256, role_w3.W3_LDS, lambda p: role_w3.gen_w3(a, p, 2)),
          (MAIN, 256, gemm64.G64_LDS, lambda p: roles64.gen_final(a, p, 2))]
    for n, g, lds, _ in ks:
        a.L.append(f"; @launch kernel={n} grid=({g},1,1) block=(512,1,1) lds={lds}")
    a.L.append('.amdgcn_target "amdgcn-amd-amdhsa--gfx950"\n.text')
    descs = ""
    for i, (n, g, lds, f) in enumerate(ks):
        kernel_header(a, n)
        a(f"s_cmp_ge_u32 s2, {g}\ns_cbranch_scc1 L_exit{i}")
        nv = f(f"K{i}")
        a.label(f"L_exit{i}"); a("s_endpgm")
        descs += kernel_desc(n, nv)
    s = a.text() + '.section .rodata,"a"\n.p2align 6\n' + descs
    open(path, "w").write(s)
if __name__ == "__main__":
    build(sys.argv[1] if len(sys.argv) > 1 else "all.s")
```

```python
from common import *
ATT_SLOT = 16384
ATT_XCH = 3 * ATT_SLOT
ATT_LDS = ATT_XCH + 8 * 2560
def vr(b, n=1): return f"v{b}" if n == 1 else f"v[{b}:{b+n-1}]"

def gen_attn(a, pfx, s_id, prof=False, zero_rows=True, setprio=None):
    sWS = 8
    sW, sHEAD, sT = 12, 13, 14
    sKsrc, sVsrc = 15, 16
    sSlotN, sSlotD = 17, 18
    sC = 19
    sMask = 20
    sTmp = 22
    sQoff, sOoff = 23, 24
    sK0, sV0 = 25, 26
    sKH = 27; sQP = 28; sLw = 29
    vLane16 = 1; vKa = 2; vVa = 3; vKa0 = 4; vVa0 = 5; vIdx = 6; vT0 = 7; vT1 = 8; vT2 = 9; vM = [10, 11]
    vQ = [12, 16]; vK = 20; vV0 = 24; vV1 = [28, 32]
    vS = [36, 52]; vO = [68, 84]; vC = 100
    NV = 116
    S = f"s[{sWS}:{sWS+3}]"
    a.c("==== attention role ====")
    prof_start(a)
    a(f"s_load_dwordx2 s[4:5], s[0:1], {KA['ws']}")
    a(f"""
    v_lshrrev_b32 v{vT0}, 6, v0
    v_and_b32 v{vT1}, 63, v0
    v_readfirstlane_b32 s{sW}, v{vT0}
    v_lshlrev_b32 v{vLane16}, 4, v{vT1}
    s_and_b32 s{sTmp}, s{s_id}, 7
    s_lshr_b32 s{sT}, s{s_id}, 3
    s_and_b32 s{sHEAD}, s{sT}, 3
    s_lshl_b32 s{sTmp}, s{sTmp}, 2
    s_add_u32 s{sHEAD}, s{sHEAD}, s{sTmp}      ; head
    s_lshr_b32 s{sT}, s{sT}, 2                 ; qb (0..7)
    s_and_b32 s{sQP}, s{sW}, 3
    s_lshr_b32 s{sKH}, s{sW}, 2
    s_lshl_b32 s{sT}, s{sT}, 3
    s_lshl_b32 s{sTmp}, s{sQP}, 1
    s_add_u32 s{sT}, s{sT}, s{sTmp}
    s_lshl_b32 s{sTmp}, s{sHEAD}, 16           ; head*64*1024
    s_lshl_b32 s{sQoff}, s{sT}, 10
    s_add_u32 s{sQoff}, s{sQoff}, s{sTmp}
    s_lshl_b32 s{sV0}, s{sKH}, 15              ; khalf*32*1024
    s_add_u32 s{sTmp}, s{sTmp}, s{sV0}
    s_add_u32 s{sK0}, s{sTmp}, {hex(WS_KF)}
    s_add_u32 s{sV0}, s{sTmp}, {hex(WS_VF)}
    s_add_u32 s{sOoff}, s{sT}, s{sKH}
    s_lshl_b32 s{sOoff}, s{sOoff}, 15          ; *32*1024
    s_lshl_b32 s{sTmp}, s{sHEAD}, 10
    s_add_u32 s{sOoff}, s{sOoff}, s{sTmp}
    s_add_u32 s{sOoff}, s{sOoff}, {hex(WS_OF)}
    s_lshl_b32 s{sTmp}, s{sQP}, 10
    s_add_u32 s{sKsrc}, s{sK0}, s{sTmp}
    s_add_u32 s{sVsrc}, s{sV0}, s{sTmp}
    s_lshl_b32 s{sLw}, s{sKH}, 13              ; khalf*8192
    s_add_u32 s{sLw}, s{sLw}, s{sTmp}
    s_mov_b32 s{sMask}, 0xffff
    s_mov_b32 s{sMask+1}, 0xffff
    s_waitcnt lgkmcnt(0)
    """)
    srd(a, sWS, 4, 5, WS_USED)
    def dma_chunk(slot_sgpr):
        a(f"""
        s_add_u32 m0, s{slot_sgpr}, s{sLw}
        s_nop 0
        buffer_load_dwordx4 v{vLane16}, {S}, s{sKsrc} offen lds
        s_add_u32 m0, m0, 4096
        s_add_u32 s{sKsrc}, s{sKsrc}, 4096
        buffer_load_dwordx4 v{vLane16}, {S}, s{sVsrc} offen lds
        s_add_u32 s{sVsrc}, s{sVsrc}, 4096
        """)
    a(f"buffer_load_dwordx4 {vr(vQ[0],4)}, v{vLane16}, {S}, s{sQoff} offen")
    a(f"buffer_load_dwordx4 {vr(vQ[1],4)}, v{vLane16}, {S}, s{sQoff} offen offset:1024")
    a(f"s_mov_b32 s{sSlotD}, 0")
    dma_chunk(sSlotD)
    a(f"s_mov_b32 s{sSlotD}, {ATT_SLOT}")
    dma_chunk(sSlotD)
    a(f"s_mov_b32 s{sSlotD}, {2*ATT_SLOT}\ns_mov_b32 s{sSlotN}, {ATT_SLOT}\ns_mov_b32 s{sC}, 0")
    a(f"""
    s_lshl_b32 s{sTmp}, s{sKH}, 13
    v_add_u32 v{vKa0}, s{sTmp}, v{vLane16}
    v_mov_b32 v{vKa}, v{vKa0}
    v_lshrrev_b32 v{vT0}, 5, v{vT1}            ; ha
    v_and_b32 v{vT2}, 15, v{vT1}               ; m
    v_lshlrev_b32 v{vT0}, 8, v{vT0}
    v_lshlrev_b32 v{vT2}, 4, v{vT2}
    v_add_u32 v{vVa0}, v{vT0}, v{vT2}
    v_add_u32 v{vVa0}, s{sTmp}, v{vVa0}
    v_add_u32 v{vVa0}, 4096, v{vVa0}
    v_mov_b32 v{vVa}, v{vVa0}
    v_mov_b32 v{vIdx}, 0xdddddddd
    """)
    if zero_rows:
        a(f"""v_and_b32 v{vT0}, 27, v{vT1}
        v_cmp_eq_u32 vcc, 16, v{vT0}
        v_mov_b32 v{vT2}, 0x3f803f80
        s_nop 0
        v_cndmask_b32 v{vT0}, 0, v{vT2}, vcc""")
    else:
        a(f"v_mov_b32 v{vT0}, 0x3f803f80")
    for i in range(4):
        a(f"v_mov_b32 v{vV0+i}, v{vT0}\nv_mov_b32 v{vV1[0]+i}, v{vT0}\nv_mov_b32 v{vV1[1]+i}, v{vT0}")
    for i in range(16): a(f"v_mov_b32 v{vO[0]+i}, 0\nv_mov_b32 v{vO[1]+i}, 0")
    a(f"s_waitcnt vmcnt(2)\ns_barrier")
    a(f"ds_read_b128 {vr(vK,4)}, v{vKa}\ns_waitcnt lgkmcnt(0)")
    a(f"v_mfma_f32_32x32x16_bf16 {vr(vS[0],16)}, {vr(vK,4)}, {vr(vQ[0],4)}, 0")
    a(f"v_mfma_f32_32x32x16_bf16 {vr(vS[1],16)}, {vr(vK,4)}, {vr(vQ[1],4)}, 0")
    a(f"s_mov_b64 exec, s[{sMask}:{sMask+1}]")
    a(f"ds_read_b128 {vr(vV0,4)}, v{vVa}\nds_read_b128 {vr(vV1[0],4)}, v{vVa} offset:512")
    a("s_mov_b64 exec, -1\ns_nop 15")
    s0 = vS[0]
    a(f"v_max3_f32 v{vT0}, v{s0}, v{s0+1}, v{s0+2}")
    for i in range(3, 31, 2): a(f"v_max3_f32 v{vT0}, v{vT0}, v{s0+i}, v{s0+i+1}")
    a(f"v_max_f32 v{vT0}, v{vT0}, v{s0+31}")
    def cross_max(dst):
        a(f"v_mov_b32 v{vT1}, v{vT0}\ns_nop 1\nv_permlane32_swap_b32 v{vT0}, v{vT1}\ns_nop 1\nv_max_f32 v{dst}, v{vT0}, v{vT1}")
    def setC(src):
        for i in range(16): a(f"v_mul_f32 v{vC+i}, -1.0, v{src}")
    cross_max(vM[0])
    a(f"v_mov_b32 v{vM[1]}, v{vM[0]}")
    setC(vM[0])
    for i in range(8, 16): a(f"v_mov_b32 v{vS[1]+i}, 0")
    a(f"v_mfma_f32_32x32x16_bf16 {vr(vS[0],16)}, {vr(vK,4)}, {vr(vQ[0],4)}, {vr(vC,16)}")
    if setprio is not None:
        a(f"s_cmp_eq_u32 s{sKH}, {setprio}\ns_cbranch_scc0 {pfx}_noprio\ns_setprio 1")
        a.label(f"{pfx}_noprio")
    prof_stamp(a, 0)
    a("s_nop 15")
    a.L.append(".p2align 6")
    a.label(f"{pfx}_loop")
    def ex(b, i): a(f"v_exp_f32 v{vS[b]+i}, v{vS[b]+i}")
    def SM(o, v, s): a(f"v_smfmac_f32_32x32x32_bf16 {vr(vO[o],16)}, {vr(v,4)}, {vr(s,8)}, v{vIdx}")
    def QK(b): a(f"v_mfma_f32_32x32x16_bf16 {vr(vS[b],16)}, {vr(vK,4)}, {vr(vQ[b],4)}, {vr(vC,16)}")
    for p in range(4):
        ex(0, 0); ex(0, 1)
        SM(1, vV1[(p-1) & 1], vS[1] + 8)
        ex(0, 2); ex(0, 3); ex(0, 4)
        QK(1)
        if p == 3:
            a(f"s_waitcnt vmcnt(0)\ns_barrier")
            a(f"v_add_u32 v{vKa}, s{sSlotN}, v{vKa0}")
            a(f"s_cmp_ge_u32 s{sC}, 6\ns_cbranch_scc1 {pfx}_nodma")
            dma_chunk(sSlotD)
            a.label(f"{pfx}_nodma")
        a(f"ds_read_b128 {vr(vK,4)}, v{vKa} offset:{((p+1)&3)*1024}")
        for i in range(5, 10): ex(0, i)
        a("s_waitcnt lgkmcnt(2)")
        SM(0, vV0, vS[0])
        for i in range(10, 16): ex(0, i)
        ex(1, 0); ex(1, 1)
        a("s_waitcnt lgkmcnt(0)")
        SM(0, vV1[p & 1], vS[0] + 8)
        ex(1, 2); ex(1, 3); ex(1, 4)
        QK(0)
        for i in range(5, 10): ex(1, i)
        SM(1, vV0, vS[1])
        if p == 3:
            a(f"v_add_u32 v{vVa}, s{sSlotN}, v{vVa0}")
        voff = ((p + 1) & 3) * 1024
        a(f"s_mov_b64 exec, s[{sMask}:{sMask+1}]")
        a(f"ds_read_b128 {vr(vV0,4)}, v{vVa} offset:{voff}\nds_read_b128 {vr(vV1[(p+1)&1],4)}, v{vVa} offset:{voff+512}")
        a("s_mov_b64 exec, -1")
        for i in range(10, 16): ex(1, i)
    a(f"""
    s_mov_b32 s{sSlotN}, s{sSlotD}
    s_add_u32 s{sSlotD}, s{sSlotD}, {ATT_SLOT}
    s_cmp_eq_u32 s{sSlotD}, {3*ATT_SLOT}
    s_cselect_b32 s{sSlotD}, 0, s{sSlotD}
    s_add_u32 s{sC}, s{sC}, 1
    s_cmp_lt_u32 s{sC}, 8
    s_cbranch_scc1 {pfx}_loop
    """)
    prof_stamp(a, 1)
    a("s_nop 1")
    SM(1, vV1[1], vS[1] + 8)
    a("s_waitcnt lgkmcnt(0)\ns_nop 15")
    a(f"v_add_f32 v{vT0}, abs(v{vO[0]+8}), abs(v{vO[1]+8})")
    for o in range(2):
        for i in range(8): a(f"v_add_f32 v{vT0}, abs(v{vO[o]+i}), v{vT0}")
    a(f"""v_min_f32 v{vT1}, v{vO[0]+8}, v{vO[1]+8}
    s_mov_b32 s{sTmp}, 0x207
    v_cmp_class_f32 vcc, v{vT0}, s{sTmp}
    s_mov_b32 s{sTmp}, 0x2b800000
    v_cmp_gt_f32 s[30:31], s{sTmp}, v{vT1}
    s_nop 4
    s_or_b64 vcc, vcc, s[30:31]
    s_cmp_lg_u64 vcc, 0
    s_cbranch_scc1 {pfx}_fallback
    """)
    a.label(f"{pfx}_merge")
    prof_stamp(a, 2)
    a(f"""s_mul_i32 s{sTmp}, s{sW}, 2560
    s_add_u32 s{sTmp}, s{sTmp}, {ATT_XCH}
    v_add_u32 v{vKa}, s{sTmp}, v{vLane16}
    s_xor_b32 s{sC}, s{sW}, 4
    s_mul_i32 s{sC}, s{sC}, 2560
    s_add_u32 s{sC}, s{sC}, {ATT_XCH}
    v_add_u32 v{vVa}, s{sC}, v{vLane16}
    v_lshrrev_b32 v{vT2}, 1, v{vLane16}
    v_add_u32 v{vKa0}, s{sTmp}, v{vT2}
    v_add_u32 v{vVa0}, s{sC}, v{vT2}
    s_cmp_eq_u32 s{sKH}, 0
    s_cbranch_scc0 {pfx}_m1
    """)
    def merge(keep, give):
        a(f"v_mov_b32 v{vO[give]+9}, v{vM[give]}")
        a(f"ds_write_b128 v{vKa}, {vr(vO[give],4)}\nds_write_b128 v{vKa}, {vr(vO[give]+4,4)} offset:1024\nds_write_b64 v{vKa0}, {vr(vO[give]+8,2)} offset:2048")
        a("s_waitcnt lgkmcnt(0)\ns_barrier")
        g = vO[give]
        a(f"ds_read_b128 {vr(g,4)}, v{vVa}\nds_read_b128 {vr(g+4,4)}, v{vVa} offset:1024\nds_read_b64 {vr(g+8,2)}, v{vVa0} offset:2048")
        a("s_waitcnt lgkmcnt(0)")
        k = vO[keep]
        a(f"""v_max_f32 v{vT0}, v{vM[keep]}, v{g+9}
        v_sub_f32 v{vT1}, v{vM[keep]}, v{vT0}
        v_sub_f32 v{vT2}, v{g+9}, v{vT0}
        v_exp_f32 v{vT1}, v{vT1}
        v_exp_f32 v{vT2}, v{vT2}
        s_nop 0
        v_mul_f32 v{k+8}, v{k+8}, v{vT1}
        v_fmac_f32 v{k+8}, v{g+8}, v{vT2}
        v_rcp_f32 v{vT0}, v{k+8}
        s_nop 0
        v_mul_f32 v{vT1}, v{vT1}, v{vT0}
        v_mul_f32 v{vT2}, v{vT2}, v{vT0}""")
        for i in range(8): a(f"v_mul_f32 v{k+i}, v{k+i}, v{vT1}\nv_fmac_f32 v{k+i}, v{g+i}, v{vT2}")
        for i in range(4): a(f"v_cvt_pk_bf16_f32 v{vK+i}, v{k+2*i}, v{k+2*i+1}")
        a(f"s_branch {pfx}_store")
    merge(0, 1)
    a.label(f"{pfx}_m1")
    merge(1, 0)
    a.label(f"{pfx}_store")
    a(f"buffer_store_dwordx4 {vr(vK,4)}, v{vLane16}, {S}, s{sOoff} offen")
    prof_stamp(a, 3)
    prof_end(a, s_id, sW, 8, sWS, vtmp=36)
    a("s_endpgm")
    a.label(f"{pfx}_fallback")
    a(f"s_lshl_b32 s{sTmp}, s{sKH}, 13\nv_subrev_u32 v{vVa}, s{sTmp}, v{vVa0}\nv_subrev_u32 v{vVa}, 4096, v{vVa}")
    for t in range(2):
        a(f"v_mov_b32 v{vT0}, 0xff800000\ns_mov_b32 s{sC}, 0\ns_mov_b32 s{sKsrc}, s{sK0}")
        a.label(f"{pfx}_fb1_{t}")
        a(f"buffer_load_dwordx4 {vr(vK,4)}, v{vLane16}, {S}, s{sKsrc} offen\ns_waitcnt vmcnt(0)")
        a(f"v_mfma_f32_32x32x16_bf16 {vr(vS[0],16)}, {vr(vK,4)}, {vr(vQ[t],4)}, 0\ns_nop 15")
        for i in range(0, 16, 2): a(f"v_max3_f32 v{vT0}, v{vT0}, v{s0+i}, v{s0+i+1}")
        a(f"s_add_u32 s{sKsrc}, s{sKsrc}, 1024\ns_add_u32 s{sC}, s{sC}, 1\ns_cmp_lt_u32 s{sC}, 32\ns_cbranch_scc1 {pfx}_fb1_{t}")
        cross_max(vM[t])
        setC(vM[t])
        for i in range(16): a(f"v_mov_b32 v{vO[t]+i}, 0")
        a(f"s_mov_b32 s{sC}, 0\ns_mov_b32 s{sKsrc}, s{sK0}\ns_mov_b32 s{sVsrc}, s{sV0}")
        a.label(f"{pfx}_fb2_{t}")
        a(f"buffer_load_dwordx4 {vr(vK,4)}, v{vLane16}, {S}, s{sKsrc} offen")
        a(f"s_mov_b64 exec, s[{sMask}:{sMask+1}]")
        a(f"buffer_load_dwordx4 {vr(vV0,4)}, v{vVa}, {S}, s{sVsrc} offen")
        a(f"buffer_load_dwordx4 {vr(vV1[0],4)}, v{vVa}, {S}, s{sVsrc} offen offset:512")
        a("s_mov_b64 exec, -1\ns_waitcnt vmcnt(0)")
        a(f"v_mfma_f32_32x32x16_bf16 {vr(vS[0],16)}, {vr(vK,4)}, {vr(vQ[t],4)}, {vr(vC,16)}\ns_nop 15")
        for i in range(16): ex(0, i)
        a("s_nop 3")
        SM(t, vV0, vS[0]); SM(t, vV1[0], vS[0] + 8)
        a(f"s_add_u32 s{sKsrc}, s{sKsrc}, 1024\ns_add_u32 s{sVsrc}, s{sVsrc}, 1024\ns_add_u32 s{sC}, s{sC}, 1\ns_cmp_lt_u32 s{sC}, 32\ns_cbranch_scc1 {pfx}_fb2_{t}")
    a(f"s_nop 15\ns_branch {pfx}_merge")
    return NV
```

```python
import sys
from common import *
import k1, attn2, roles64, role_w3, gemm64
MAIN = "gated_mix__softmax_full_mha__mixer_s_mlp__prompt_kernel"
def build(path, variant="seq5", nempty=0):
    a = Asm()
    hdr = open("gated_mix__softmax_full_mha__mixer_s_mlp__prompt.s.ref").read().split("\n")
    for l in hdr:
        if l.startswith("; Override") : break
        a.L.append(l)
    ks = [("k1_kernel", 256, k1.K1_LDS, lambda p: k1.gen_k1(a, p)),
          ("attn_kernel", 256, attn2.ATT_LDS, lambda p: attn2.gen_attn(a, p, 2)),
          ("w2_kernel", 256, gemm64.G64_LDS, lambda p: roles64.gen_w2(a, p, 2)),
          ("w3_kernel", 256, role_w3.W3_LDS, lambda p: role_w3.gen_w3(a, p, 2)),
          (MAIN, 256, gemm64.G64_LDS, lambda p: roles64.gen_final(a, p, 2))]
    for e in range(nempty):
        ks.insert(1, ("empty_kernel", 256, 0, None))
    for n, g, lds, _ in ks:
        a.L.append(f"; @launch kernel={n} grid=({g},1,1) block=(512,1,1) lds={lds}")
    a.L.append('.amdgcn_target "amdgcn-amd-amdhsa--gfx950"\n.text')
    descs = ""
    done = set()
    for i, (n, g, lds, f) in enumerate(ks):
        if n in done: continue
        done.add(n)
        if f is None:
            kernel_header(a, n); a("s_endpgm"); descs += kernel_desc(n, 8); continue
        kernel_header(a, n)
        a(f"s_cmp_ge_u32 s2, {g}\ns_cbranch_scc1 L_exit{i}")
        import common
        common.PROF_BASE = i * 0x10000
        nv = f(f"K{i}")
        a.label(f"L_exit{i}"); a("s_endpgm")
        descs += kernel_desc(n, nv)
    s = a.text() + '.section .rodata,"a"\n.p2align 6\n' + descs
    open(path, "w").write(s)
if __name__ == "__main__":
    build(sys.argv[1] if len(sys.argv) > 1 else "all.s", nempty=int(sys.argv[2]) if len(sys.argv) > 2 else 0)
```

```python
from common import *
ATT_SLOT = 16384
ATT_NS = 5
ATT_XCH = 0
ATT_LDS = ATT_NS * ATT_SLOT
def vr(b, n=1): return f"v{b}" if n == 1 else f"v[{b}:{b+n-1}]"

def gen_attn(a, pfx, s_id, prof=False, zero_rows=True, setprio=None, prefetch=False, setprio0=None):
    sWS = 8
    sW, sHEAD, sT = 12, 13, 14
    sKsrc, sVsrc = 15, 16
    sSlotN, sSlotD = 17, 18
    sC = 19
    sMask = 20
    sTmp = 22
    sQoff, sOoff = 23, 24
    sK0, sV0 = 25, 26
    sKH = 27; sQP = 28; sLw = 29
    vLane16 = 1; vKa = 2; vVa = 3; vKa0 = 4; vVa0 = 5; vIdx = 6; vT0 = 7; vT1 = 8; vT2 = 9; vM = [10, 11]
    vQ = [12, 16]; vK = 20; vV0 = 24; vV1 = [28, 32]
    vS = [36, 52]; vO = [68, 84]; vC = 100
    NV = 116
    S = f"s[{sWS}:{sWS+3}]"
    a.c("==== attention role ====")
    prof_start(a)
    if setprio0: a(f"s_setprio {setprio0}")
    a(f"s_load_dwordx2 s[4:5], s[0:1], {KA['ws']}")
    a(f"""
    v_lshrrev_b32 v{vT0}, 6, v0
    v_and_b32 v{vT1}, 63, v0
    v_readfirstlane_b32 s{sW}, v{vT0}
    v_lshlrev_b32 v{vLane16}, 4, v{vT1}
    s_and_b32 s{sTmp}, s{s_id}, 7
    s_lshr_b32 s{sT}, s{s_id}, 3
    s_and_b32 s{sHEAD}, s{sT}, 3
    s_lshl_b32 s{sTmp}, s{sTmp}, 2
    s_add_u32 s{sHEAD}, s{sHEAD}, s{sTmp}      ; head
    s_lshr_b32 s{sT}, s{sT}, 2                 ; qb (0..7)
    s_and_b32 s{sQP}, s{sW}, 3
    s_lshr_b32 s{sKH}, s{sW}, 2
    s_lshl_b32 s{sT}, s{sT}, 3
    s_lshl_b32 s{sTmp}, s{sQP}, 1
    s_add_u32 s{sT}, s{sT}, s{sTmp}
    s_lshl_b32 s{sTmp}, s{sHEAD}, 16           ; head*64*1024
    s_lshl_b32 s{sQoff}, s{sT}, 10
    s_add_u32 s{sQoff}, s{sQoff}, s{sTmp}
    s_lshl_b32 s{sV0}, s{sKH}, 15              ; khalf*32*1024
    s_add_u32 s{sTmp}, s{sTmp}, s{sV0}
    s_add_u32 s{sK0}, s{sTmp}, {hex(WS_KF)}
    s_add_u32 s{sV0}, s{sTmp}, {hex(WS_VF)}
    s_add_u32 s{sOoff}, s{sT}, s{sKH}
    s_lshl_b32 s{sOoff}, s{sOoff}, 15          ; *32*1024
    s_lshl_b32 s{sTmp}, s{sHEAD}, 10
    s_add_u32 s{sOoff}, s{sOoff}, s{sTmp}
    s_add_u32 s{sOoff}, s{sOoff}, {hex(WS_OF)}
    s_lshl_b32 s{sTmp}, s{sQP}, 10
    s_add_u32 s{sKsrc}, s{sK0}, s{sTmp}
    s_add_u32 s{sVsrc}, s{sV0}, s{sTmp}
    s_lshl_b32 s{sLw}, s{sKH}, 13              ; khalf*8192
    s_add_u32 s{sLw}, s{sLw}, s{sTmp}
    s_mov_b32 s{sMask}, 0xffff
    s_mov_b32 s{sMask+1}, 0xffff
    s_waitcnt lgkmcnt(0)
    """)
    srd(a, sWS, 4, 5, WS_USED)
    if prefetch:
        a(f"s_load_dwordx2 s[32:33], s[0:1], {KA['w4']}\ns_load_dwordx2 s[34:35], s[0:1], {KA['wo']}")
        a(f"""s_lshr_b32 s{sTmp}, s{s_id}, 3
        s_lshl_b32 s{sTmp}, s{sTmp}, 3
        s_add_u32 s{sTmp}, s{sTmp}, s{sW}
        s_lshl_b32 s36, s{sTmp}, 10
        s_waitcnt lgkmcnt(0)""")
        srd(a, 56, 32, 33, 1376*512*2); srd(a, 60, 34, 35, 512*512*2)
    def dma_chunk(slot_sgpr):
        a(f"""
        s_add_u32 m0, s{slot_sgpr}, s{sLw}
        s_nop 0
        buffer_load_dwordx4 v{vLane16}, {S}, s{sKsrc} offen lds
        s_add_u32 m0, m0, 4096
        s_add_u32 s{sKsrc}, s{sKsrc}, 4096
        buffer_load_dwordx4 v{vLane16}, {S}, s{sVsrc} offen lds
        s_add_u32 s{sVsrc}, s{sVsrc}, 4096
        """)
    a(f"buffer_load_dwordx4 {vr(vQ[0],4)}, v{vLane16}, {S}, s{sQoff} offen")
    a(f"buffer_load_dwordx4 {vr(vQ[1],4)}, v{vLane16}, {S}, s{sQoff} offen offset:1024")
    for c in range(ATT_NS - 1):
        a(f"s_mov_b32 s{sSlotD}, {c*ATT_SLOT}")
        dma_chunk(sSlotD)
    a(f"s_mov_b32 s{sSlotD}, {(ATT_NS-1)*ATT_SLOT}\ns_mov_b32 s{sSlotN}, {ATT_SLOT}\ns_mov_b32 s{sC}, 0")
    a(f"""
    s_lshl_b32 s{sTmp}, s{sKH}, 13
    v_add_u32 v{vKa0}, s{sTmp}, v{vLane16}
    v_mov_b32 v{vKa}, v{vKa0}
    v_lshrrev_b32 v{vT0}, 5, v{vT1}            ; ha
    v_and_b32 v{vT2}, 15, v{vT1}               ; m
    v_lshlrev_b32 v{vT0}, 8, v{vT0}
    v_lshlrev_b32 v{vT2}, 4, v{vT2}
    v_add_u32 v{vVa0}, v{vT0}, v{vT2}
    v_add_u32 v{vVa0}, s{sTmp}, v{vVa0}
    v_add_u32 v{vVa0}, 4096, v{vVa0}
    v_mov_b32 v{vVa}, v{vVa0}
    v_mov_b32 v{vIdx}, 0xdddddddd
    """)
    if zero_rows:
        a(f"""v_and_b32 v{vT0}, 27, v{vT1}
        v_cmp_eq_u32 vcc, 16, v{vT0}
        v_mov_b32 v{vT2}, 0x3f803f80
        s_nop 0
        v_cndmask_b32 v{vT0}, 0, v{vT2}, vcc""")
    else:
        a(f"v_mov_b32 v{vT0}, 0x3f803f80")
    for i in range(4):
        a(f"v_mov_b32 v{vV0+i}, v{vT0}\nv_mov_b32 v{vV1[0]+i}, v{vT0}\nv_mov_b32 v{vV1[1]+i}, v{vT0}")
    for i in range(16): a(f"v_mov_b32 v{vO[0]+i}, 0\nv_mov_b32 v{vO[1]+i}, 0")
    a(f"s_waitcnt vmcnt({2*(ATT_NS-2)})\ns_barrier")
    a(f"ds_read_b128 {vr(vK,4)}, v{vKa}\ns_waitcnt lgkmcnt(0)")
    a(f"v_mfma_f32_32x32x16_bf16 {vr(vS[0],16)}, {vr(vK,4)}, {vr(vQ[0],4)}, 0")
    a(f"v_mfma_f32_32x32x16_bf16 {vr(vS[1],16)}, {vr(vK,4)}, {vr(vQ[1],4)}, 0")
    a(f"s_mov_b64 exec, s[{sMask}:{sMask+1}]")
    a(f"ds_read_b128 {vr(vV0,4)}, v{vVa}\nds_read_b128 {vr(vV1[0],4)}, v{vVa} offset:512")
    a("s_mov_b64 exec, -1\ns_nop 15")
    s0 = vS[0]
    a(f"v_max3_f32 v{vT0}, v{s0}, v{s0+1}, v{s0+2}")
    for i in range(3, 31, 2): a(f"v_max3_f32 v{vT0}, v{vT0}, v{s0+i}, v{s0+i+1}")
    a(f"v_max_f32 v{vT0}, v{vT0}, v{s0+31}")
    def cross_max(dst):
        a(f"v_mov_b32 v{vT1}, v{vT0}\ns_nop 1\nv_permlane32_swap_b32 v{vT0}, v{vT1}\ns_nop 1\nv_max_f32 v{dst}, v{vT0}, v{vT1}")
    def setC(src):
        for i in range(16): a(f"v_mul_f32 v{vC+i}, -1.0, v{src}")
    cross_max(vM[0])
    a(f"v_mov_b32 v{vM[1]}, v{vM[0]}")
    setC(vM[0])
    for i in range(8, 16): a(f"v_mov_b32 v{vS[1]+i}, 0")
    a(f"v_mfma_f32_32x32x16_bf16 {vr(vS[0],16)}, {vr(vK,4)}, {vr(vQ[0],4)}, {vr(vC,16)}")
    if setprio is not None:
        a(f"s_cmp_eq_u32 s{sKH}, {setprio}\ns_cbranch_scc0 {pfx}_noprio\ns_setprio 1")
        a.label(f"{pfx}_noprio")
    import os
    IT = os.environ.get("ATT_ITST")
    if not IT: prof_stamp(a, 0)
    if setprio0: a("s_setprio 0")
    a("s_nop 15")
    a.L.append(".p2align 6")
    a.label(f"{pfx}_loop")
    def ex(b, i): a(f"v_exp_f32 v{vS[b]+i}, v{vS[b]+i}")
    def SM(o, v, s): a(f"v_smfmac_f32_32x32x32_bf16 {vr(vO[o],16)}, {vr(v,4)}, {vr(s,8)}, v{vIdx}")
    def QK(b): a(f"v_mfma_f32_32x32x16_bf16 {vr(vS[b],16)}, {vr(vK,4)}, {vr(vQ[b],4)}, {vr(vC,16)}")
    for p in range(4):
        ex(0, 0); ex(0, 1)
        SM(1, vV1[(p-1) & 1], vS[1] + 8)
        ex(0, 2); ex(0, 3); ex(0, 4)
        QK(1)
        if p == 3:
            LAST = 8 - ATT_NS + 1
            steady = 2 * (ATT_NS - 3)
            npf = 8 if prefetch else 0
            a(f"s_cmp_le_u32 s{sC}, {LAST}\ns_cbranch_scc1 {pfx}_ws")
            for c in range(LAST + 1, 8):
                rem = max(0, 7 - (c + 1))
                if c < 7:
                    a(f"s_cmp_eq_u32 s{sC}, {c}\ns_cbranch_scc0 {pfx}_w{c}n\ns_waitcnt vmcnt({2*min(rem, ATT_NS-3) + npf})\ns_branch {pfx}_wd")
                    a.label(f"{pfx}_w{c}n")
            a(f"s_branch {pfx}_wd")
            a.label(f"{pfx}_ws")
            a(f"s_waitcnt vmcnt({steady})")
            a.label(f"{pfx}_wd")
            import os
            if os.environ.get("ATT_ITST"):
                lst = [int(x) for x in os.environ["ATT_ITST"].split(",")]
                pre = os.environ.get("ATT_PRE")
                if pre:
                    for i, c in enumerate(lst):
                        a(f"s_cmp_eq_u32 s{sC}, {c}\ns_cbranch_scc0 {pfx}_isp{i}")
                        prof_stamp(a, 2*i) if i < 2 else None
                        a.label(f"{pfx}_isp{i}")
            a("s_barrier")
            if os.environ.get("ATT_ITST"):
                for i, c in enumerate(lst):
                    a(f"s_cmp_eq_u32 s{sC}, {c}\ns_cbranch_scc0 {pfx}_is{i}")
                    if pre:
                        if i < 2: prof_stamp(a, 2*i+1)
                    else: prof_stamp(a, i)
                    a.label(f"{pfx}_is{i}")
            a(f"v_add_u32 v{vKa}, s{sSlotN}, v{vKa0}")
        a(f"ds_read_b128 {vr(vK,4)}, v{vKa} offset:{((p+1)&3)*1024}")
        for i in range(5, 10): ex(0, i)
        a("s_waitcnt lgkmcnt(2)")
        SM(0, vV0, vS[0])
        if p == 3:
            a(f"s_cmp_ge_u32 s{sC}, {LAST}\ns_cbranch_scc1 {pfx}_nodma")
            dma_chunk(sSlotD)
            a(f"s_branch {pfx}_nopf")
            a.label(f"{pfx}_nodma")
            if prefetch:
                a(f"s_cmp_eq_u32 s{sC}, {LAST}\ns_cbranch_scc0 {pfx}_nopf")
                for j in range(6):
                    a(f"buffer_load_dwordx4 v[116:119], v{vLane16}, s[56:59], s36 offen\ns_add_u32 s36, s36, 0x40000")
                a(f"s_sub_u32 s36, s36, 0x180000\ns_nop 0\nbuffer_load_dwordx4 v[116:119], v{vLane16}, s[60:63], s36 offen\ns_add_u32 s36, s36, 0x40000\ns_nop 0")
                a(f"buffer_load_dwordx4 v[116:119], v{vLane16}, s[60:63], s36 offen")
            a.label(f"{pfx}_nopf")
        for i in range(10, 16): ex(0, i)
        ex(1, 0); ex(1, 1)
        a("s_waitcnt lgkmcnt(0)")
        SM(0, vV1[p & 1], vS[0] + 8)
        ex(1, 2); ex(1, 3); ex(1, 4)
        QK(0)
        for i in range(5, 10): ex(1, i)
        SM(1, vV0, vS[1])
        if p == 3:
            a(f"v_add_u32 v{vVa}, s{sSlotN}, v{vVa0}")
        voff = ((p + 1) & 3) * 1024
        a(f"s_mov_b64 exec, s[{sMask}:{sMask+1}]")
        a(f"ds_read_b128 {vr(vV0,4)}, v{vVa} offset:{voff}\nds_read_b128 {vr(vV1[(p+1)&1],4)}, v{vVa} offset:{voff+512}")
        a("s_mov_b64 exec, -1")
        for i in range(10, 16): ex(1, i)
    a(f"""
    s_add_u32 s{sSlotN}, s{sSlotN}, {ATT_SLOT}
    s_cmp_eq_u32 s{sSlotN}, {ATT_NS*ATT_SLOT}
    s_cselect_b32 s{sSlotN}, 0, s{sSlotN}
    s_add_u32 s{sSlotD}, s{sSlotD}, {ATT_SLOT}
    s_cmp_eq_u32 s{sSlotD}, {ATT_NS*ATT_SLOT}
    s_cselect_b32 s{sSlotD}, 0, s{sSlotD}
    s_add_u32 s{sC}, s{sC}, 1
    s_cmp_lt_u32 s{sC}, 8
    s_cbranch_scc1 {pfx}_loop
    """)
    if not IT: prof_stamp(a, 1)
    a("s_nop 1")
    SM(1, vV1[1], vS[1] + 8)
    a("s_waitcnt lgkmcnt(0)\ns_nop 15")
    a(f"v_add_f32 v{vT0}, abs(v{vO[0]+8}), abs(v{vO[1]+8})")
    for o in range(2):
        for i in range(8): a(f"v_add_f32 v{vT0}, abs(v{vO[o]+i}), v{vT0}")
    a(f"""v_min_f32 v{vT1}, v{vO[0]+8}, v{vO[1]+8}
    s_mov_b32 s{sTmp}, 0x207
    v_cmp_class_f32 vcc, v{vT0}, s{sTmp}
    s_mov_b32 s{sTmp}, 0x2b800000
    v_cmp_gt_f32 s[30:31], s{sTmp}, v{vT1}
    s_nop 4
    s_or_b64 vcc, vcc, s[30:31]
    s_cmp_lg_u64 vcc, 0
    s_cbranch_scc1 {pfx}_fallback
    """)
    a.label(f"{pfx}_merge")
    if not IT: prof_stamp(a, 2)
    a("s_barrier")
    a(f"""s_mul_i32 s{sTmp}, s{sW}, 2560
    s_add_u32 s{sTmp}, s{sTmp}, {ATT_XCH}
    v_add_u32 v{vKa}, s{sTmp}, v{vLane16}
    s_xor_b32 s{sC}, s{sW}, 4
    s_mul_i32 s{sC}, s{sC}, 2560
    s_add_u32 s{sC}, s{sC}, {ATT_XCH}
    v_add_u32 v{vVa}, s{sC}, v{vLane16}
    v_lshrrev_b32 v{vT2}, 1, v{vLane16}
    v_add_u32 v{vKa0}, s{sTmp}, v{vT2}
    v_add_u32 v{vVa0}, s{sC}, v{vT2}
    s_cmp_eq_u32 s{sKH}, 0
    s_cbranch_scc0 {pfx}_m1
    """)
    def merge(keep, give):
        a(f"v_mov_b32 v{vO[give]+9}, v{vM[give]}")
        a(f"ds_write_b128 v{vKa}, {vr(vO[give],4)}\nds_write_b128 v{vKa}, {vr(vO[give]+4,4)} offset:1024\nds_write_b64 v{vKa0}, {vr(vO[give]+8,2)} offset:2048")
        a("s_waitcnt lgkmcnt(0)\ns_barrier")
        g = vO[give]
        a(f"ds_read_b128 {vr(g,4)}, v{vVa}\nds_read_b128 {vr(g+4,4)}, v{vVa} offset:1024\nds_read_b64 {vr(g+8,2)}, v{vVa0} offset:2048")
        a("s_waitcnt lgkmcnt(0)")
        k = vO[keep]
        a(f"""v_max_f32 v{vT0}, v{vM[keep]}, v{g+9}
        v_sub_f32 v{vT1}, v{vM[keep]}, v{vT0}
        v_sub_f32 v{vT2}, v{g+9}, v{vT0}
        v_exp_f32 v{vT1}, v{vT1}
        v_exp_f32 v{vT2}, v{vT2}
        s_nop 0
        v_mul_f32 v{k+8}, v{k+8}, v{vT1}
        v_fmac_f32 v{k+8}, v{g+8}, v{vT2}
        v_rcp_f32 v{vT0}, v{k+8}
        s_nop 0
        v_mul_f32 v{vT1}, v{vT1}, v{vT0}
        v_mul_f32 v{vT2}, v{vT2}, v{vT0}""")
        for i in range(8): a(f"v_mul_f32 v{k+i}, v{k+i}, v{vT1}\nv_fmac_f32 v{k+i}, v{g+i}, v{vT2}")
        for i in range(4): a(f"v_cvt_pk_bf16_f32 v{vK+i}, v{k+2*i}, v{k+2*i+1}")
        a(f"s_branch {pfx}_store")
    merge(0, 1)
    a.label(f"{pfx}_m1")
    merge(1, 0)
    a.label(f"{pfx}_store")
    a(f"buffer_store_dwordx4 {vr(vK,4)}, v{vLane16}, {S}, s{sOoff} offen")
    if not IT: prof_stamp(a, 3)
    prof_end(a, s_id, sW, 8, sWS, vtmp=36)
    a("s_endpgm")
    a.label(f"{pfx}_fallback")
    a(f"s_lshl_b32 s{sTmp}, s{sKH}, 13\nv_subrev_u32 v{vVa}, s{sTmp}, v{vVa0}\nv_subrev_u32 v{vVa}, 4096, v{vVa}")
    for t in range(2):
        a(f"v_mov_b32 v{vT0}, 0xff800000\ns_mov_b32 s{sC}, 0\ns_mov_b32 s{sKsrc}, s{sK0}")
        a.label(f"{pfx}_fb1_{t}")
        a(f"buffer_load_dwordx4 {vr(vK,4)}, v{vLane16}, {S}, s{sKsrc} offen\ns_waitcnt vmcnt(0)")
        a(f"v_mfma_f32_32x32x16_bf16 {vr(vS[0],16)}, {vr(vK,4)}, {vr(vQ[t],4)}, 0\ns_nop 15")
        for i in range(0, 16, 2): a(f"v_max3_f32 v{vT0}, v{vT0}, v{s0+i}, v{s0+i+1}")
        a(f"s_add_u32 s{sKsrc}, s{sKsrc}, 1024\ns_add_u32 s{sC}, s{sC}, 1\ns_cmp_lt_u32 s{sC}, 32\ns_cbranch_scc1 {pfx}_fb1_{t}")
        cross_max(vM[t])
        setC(vM[t])
        for i in range(16): a(f"v_mov_b32 v{vO[t]+i}, 0")
        a(f"s_mov_b32 s{sC}, 0\ns_mov_b32 s{sKsrc}, s{sK0}\ns_mov_b32 s{sVsrc}, s{sV0}")
        a.label(f"{pfx}_fb2_{t}")
        a(f"buffer_load_dwordx4 {vr(vK,4)}, v{vLane16}, {S}, s{sKsrc} offen")
        a(f"s_mov_b64 exec, s[{sMask}:{sMask+1}]")
        a(f"buffer_load_dwordx4 {vr(vV0,4)}, v{vVa}, {S}, s{sVsrc} offen")
        a(f"buffer_load_dwordx4 {vr(vV1[0],4)}, v{vVa}, {S}, s{sVsrc} offen offset:512")
        a("s_mov_b64 exec, -1\ns_waitcnt vmcnt(0)")
        a(f"v_mfma_f32_32x32x16_bf16 {vr(vS[0],16)}, {vr(vK,4)}, {vr(vQ[t],4)}, {vr(vC,16)}\ns_nop 15")
        for i in range(16): ex(0, i)
        a("s_nop 3")
        SM(t, vV0, vS[0]); SM(t, vV1[0], vS[0] + 8)
        a(f"s_add_u32 s{sKsrc}, s{sKsrc}, 1024\ns_add_u32 s{sVsrc}, s{sVsrc}, 1024\ns_add_u32 s{sC}, s{sC}, 1\ns_cmp_lt_u32 s{sC}, 32\ns_cbranch_scc1 {pfx}_fb2_{t}")
    a(f"s_nop 15\ns_branch {pfx}_merge")
    return 120 if prefetch else NV
```

```python
WS_QF, WS_KF, WS_VF = 0x000000, 0x200000, 0x400000
WS_H1 = 0x608000
WS_X1 = 0x820000; WS_OF = 0xA20000; WS_H2 = 0xC20000
WS_BF = 0x1200000
WS_ST = 0x1400000
WS_GP = 0x1440000
WS_XST = 0x1460000
WS_G = 0x1468000
WS_FLAGS = 0x1480000
WS_USED = 0x1600000
KA = dict(x=0, wqkv=8, wo=16, bx=24, w1=32, w2=40, w3=48, w4=56, gw=64, out=72, dbg=80, ws=88)

class Asm:
    def __init__(self):
        self.L = []
    def __call__(self, s=""):
        for line in s.split("\n"):
            line = line.strip()
            if not line: continue
            if line.endswith(":") or line.startswith("."):
                self.L.append(line)
            else:
                self.L.append("    " + line)
    def label(self, l): self.L.append(l + ":")
    def c(self, s): self.L.append("    ; " + s)
    def text(self): return "\n".join(self.L) + "\n"

def srd(a, s, base_lo, base_hi, size):
    a(f"s_mov_b32 s{s}, s{base_lo}\ns_mov_b32 s{s+1}, s{base_hi}\ns_mov_b32 s{s+2}, {hex(size)}\ns_mov_b32 s{s+3}, 0x20000")

def kernel_header(a, name):
    a.L.append(f".globl {name}\n.p2align 8\n.type {name},@function\n{name}:")

def kernel_desc(name, vgpr, sgpr=96, accum=None):
    accum = accum or ((vgpr + 3) // 4 * 4)
    return f""".amdhsa_kernel {name}
  .amdhsa_next_free_vgpr {vgpr}
  .amdhsa_next_free_sgpr {sgpr}
  .amdhsa_accum_offset {accum}
  .amdhsa_group_segment_fixed_size 0
  .amdhsa_kernarg_size 96
  .amdhsa_user_sgpr_count 2
  .amdhsa_user_sgpr_kernarg_segment_ptr 1
  .amdhsa_system_sgpr_workgroup_id_x 1
  .amdhsa_float_denorm_mode_32 3
  .amdhsa_float_denorm_mode_16_64 3
.end_amdhsa_kernel
"""

WS_PROF = 0x1490000
import os
PROF = bool(int(os.environ.get('PROF', '0')))
def prof_start(a):
    if PROF: a("s_memtime s[80:81]\ns_memrealtime s[82:83]")
def prof_stamp(a, i):
    if PROF: a(f"s_memtime s[{84+2*i}:{85+2*i}]")
def prof_end(a, s_wg, s_wave, nw, srd, base=0, vtmp=2):
    if not PROF: return
    v = vtmp
    a(f"""s_memtime s[92:93]
    s_memrealtime s[94:95]
    s_waitcnt lgkmcnt(0)
    s_sub_u32 s92, s92, s80
    s_sub_u32 s84, s84, s80
    s_sub_u32 s86, s86, s80
    s_sub_u32 s88, s88, s80
    s_sub_u32 s90, s90, s80
    s_getreg_b32 s93, hwreg(HW_REG_HW_ID)
    s_getreg_b32 s95, hwreg(HW_REG_XCC_ID)
    s_lshl_b32 s95, s95, 16
    s_and_b32 s93, s93, 0xffff
    s_or_b32 s93, s93, s95
    v_mov_b32 v{v}, s92
    v_mov_b32 v{v+1}, s82
    v_mov_b32 v{v+2}, s94
    v_mov_b32 v{v+3}, s84
    v_mov_b32 v{v+4}, s86
    v_mov_b32 v{v+5}, s88
    v_mov_b32 v{v+6}, s90
    v_mov_b32 v{v+7}, s93
    s_mul_i32 s85, s{s_wg}, {nw}
    s_add_u32 s85, s85, s{s_wave}
    s_lshl_b32 s85, s85, 5
    s_add_u32 s85, s85, {hex(WS_PROF + base + globals().get('PROF_BASE', 0))}
    v_mov_b32 v{v+8}, 0
    s_mov_b64 exec, 1
    buffer_store_dwordx4 v[{v}:{v+3}], v{v+8}, s[{srd}:{srd+3}], s85 offen
    buffer_store_dwordx4 v[{v+4}:{v+7}], v{v+8}, s[{srd}:{srd+3}], s85 offen offset:16
    s_mov_b64 exec, -1""")

def prof_on(): return PROF
```

```python
from common import *
from k1 import vr, f2u
sWS = 8; sWm = 12
sW, sKH, sWR, sWC = 16, 17, 18, 19
sRB, sCB = 20, 21
sC, sT, sT2 = 22, 23, 24
sSlot, sSlotD = 25, 26
sLd = 31
sKs = 33; sKmax = 34; sXb = 35; sWb = 36; sWrow = 37; sNleft = 38
vL = 1; vL16 = 2; vXd = 3; vWd = 4; vXa0 = 5; vWa0 = 6; vXa = 7; vWa = 8; vT = 9; vT2 = 10; vT3 = 11
vXf = [12, 16]; vWf = [20, 24]; vAcc = [32, 48]

def setup(a, s_id):
    a(f"""
    v_lshrrev_b32 v{vT}, 6, v0
    v_and_b32 v{vL}, 63, v0
    v_readfirstlane_b32 s{sW}, v{vT}
    v_lshlrev_b32 v{vL16}, 4, v{vL}
    s_and_b32 s{sT}, s{s_id}, 7
    s_lshr_b32 s{sT2}, s{s_id}, 3
    s_and_b32 s{sRB}, s{sT2}, 3
    s_lshl_b32 s{sT}, s{sT}, 2
    s_add_u32 s{sRB}, s{sRB}, s{sT}           ; rb 0..31
    s_lshr_b32 s{sCB}, s{sT2}, 2              ; cb 0..7
    s_lshr_b32 s{sKH}, s{sW}, 2
    s_bfe_u32 s{sWR}, s{sW}, 0x10001
    s_and_b32 s{sWC}, s{sW}, 1
    s_lshl_b32 s{sLd}, s{sWR}, 1
    s_add_u32 s{sLd}, s{sLd}, s{sKH}
    s_lshl_b32 s{sLd}, s{sLd}, 1
    s_add_u32 s{sLd}, s{sLd}, s{sWC}
    s_lshl_b32 s{sLd}, s{sLd}, 10
    """)
    a(f"""
    v_lshrrev_b32 v{vT}, 3, v{vL}
    v_bfe_u32 v{vT2}, v{vL}, 4, 1
    v_lshlrev_b32 v{vT2}, 2, v{vT2}
    v_and_b32 v{vT3}, 7, v{vL}
    v_xor_b32 v{vT2}, v{vT2}, v{vT3}
    v_lshlrev_b32 v{vT2}, 4, v{vT2}
    v_lshl_add_u32 v{vWd}, v{vT}, 10, v{vT2}
    """)
    a(f"""
    s_lshl_b32 s{sT}, s{sKH}, 12
    s_lshl_b32 s{sT2}, s{sWR}, 10
    s_add_u32 s{sT2}, s{sT2}, s{sT}
    v_add_u32 v{vXa0}, s{sT2}, v{vL16}
    v_lshrrev_b32 v{vT}, 5, v{vL}             ; h
    v_lshlrev_b32 v{vT}, 9, v{vT}             ; rows 4h -> h*4*128
    v_bfe_u32 v{vT2}, v{vL}, 2, 2             ; r
    v_lshl_add_u32 v{vT}, v{vT2}, 7, v{vT}
    v_lshrrev_b32 v{vT2}, 1, v{vT2}
    v_xor_b32 v{vT2}, s{sWC}, v{vT2}          ; wc ^ (r>>1)
    v_lshl_add_u32 v{vT}, v{vT2}, 6, v{vT}
    v_bfe_u32 v{vT2}, v{vL}, 4, 1             ; nhalf
    v_lshl_add_u32 v{vT}, v{vT2}, 5, v{vT}
    v_and_b32 v{vT2}, 3, v{vL}
    v_lshl_add_u32 v{vT}, v{vT2}, 3, v{vT}
    s_add_u32 s{sT}, s{sT}, 8192
    v_add_u32 v{vWa0}, s{sT}, v{vT}
    """)

def seg_setup(a, xbase, xks_total, khalf_steps):
    a(f"""
    s_mul_i32 s{sKs}, s{sWR}, {khalf_steps}
    s_add_u32 s{sKs}, s{sKs}, s{sKH}
    s_lshl_b32 s{sT}, s{sRB}, 1
    s_add_u32 s{sT}, s{sT}, s{sWC}
    s_mul_i32 s{sXb}, s{sT}, {xks_total*1024}
    s_add_u32 s{sXb}, s{sXb}, {hex(xbase)}
    s_lshl_b32 s{sWb}, s{sCB}, 7              ; cb*64*2
    s_lshl_b32 s{sT}, s{sWC}, 13              ; 8 rows * 1024
    s_add_u32 s{sWb}, s{sWb}, s{sT}
    s_mov_b32 s{sKmax}, {xks_total-1}
    """)

def dma(a, xv, nslots, xflags=""):
    a(f"""
    s_min_u32 s{sT}, s{sKs}, s{sKmax}
    s_lshl_b32 s{sT}, s{sT}, 10
    s_add_u32 s{sT}, s{sT}, s{sXb}
    s_add_u32 m0, s{sSlotD}, s{sLd}
    s_lshl_b32 s{sT2}, s{sKs}, 14             ; 16 rows * 1024
    buffer_load_dwordx4 v{xv}, s[{sWS}:{sWS+3}], s{sT} offen {xflags} lds
    s_add_u32 m0, m0, 8192
    s_add_u32 s{sT2}, s{sT2}, s{sWb}
    buffer_load_dwordx4 v{vWd}, s[{sWm}:{sWm+3}], s{sT2} offen lds
    s_add_u32 s{sKs}, s{sKs}, 2
    s_add_u32 s{sSlotD}, s{sSlotD}, 16384
    s_cmp_eq_u32 s{sSlotD}, {nslots*16384}
    s_cselect_b32 s{sSlotD}, 0, s{sSlotD}
    """)

def reads(ks, b):
    return [f"ds_read_b128 {vr(vXf[b],4)}, v{vXa} offset:{ks*2048}",
            f"ds_read_b64_tr_b16 {vr(vWf[b],2)}, v{vWa} offset:{ks*2048}",
            f"ds_read_b64_tr_b16 {vr(vWf[b]+2,2)}, v{vWa} offset:{ks*2048+1024}"]

def chunk_compute(a, acc, nslots):
    A = vr(acc, 16)
    a(f"v_add_u32 v{vXa}, s{sSlot}, v{vXa0}\nv_add_u32 v{vWa}, s{sSlot}, v{vWa0}")
    for r in reads(0, 0) + reads(1, 1): a(r)
    return A
def chunk_mfma(a, A, nslots):
    a("s_waitcnt lgkmcnt(3)")
    a(f"v_mfma_f32_32x32x16_bf16 {A}, {vr(vWf[0],4)}, {vr(vXf[0],4)}, {A}")
    a(f"s_add_u32 s{sSlot}, s{sSlot}, 16384\ns_cmp_eq_u32 s{sSlot}, {nslots*16384}\ns_cselect_b32 s{sSlot}, 0, s{sSlot}")
    a("s_waitcnt lgkmcnt(0)")
    a(f"v_mfma_f32_32x32x16_bf16 {A}, {vr(vWf[1],4)}, {vr(vXf[1],4)}, {A}")

def loop(a, pfx, n, acc, nslots, depth, issue, xv=None, pre_dma=None, xflags=""):
    a(f"s_mov_b32 s{sC}, {n}")
    a.L.append(".p2align 6")
    a.label(f"{pfx}_loop")
    a(f"s_waitcnt vmcnt({2*(depth-1)})\ns_barrier")
    A = chunk_compute(a, acc, nslots)
    if pre_dma: pre_dma()
    dma(a, xv if xv is not None else vXd, nslots, xflags)
    chunk_mfma(a, A, nslots)
    a(f"s_sub_u32 s{sC}, s{sC}, 1\ns_cmp_lg_u32 s{sC}, 0\ns_cbranch_scc1 {pfx}_loop")
def drain(a, n, acc, nslots):
    for i in range(n):
        a(f"s_waitcnt vmcnt({2*(n-1-i)})\ns_barrier")
        A = chunk_compute(a, acc, nslots)
        chunk_mfma(a, A, nslots)

def reduce_halves(a, pfx, accs, xch):
    n = len(accs)
    a(f"""s_mul_i32 s{sT}, s{sW}, {2048*n}
    s_add_u32 s{sT}, s{sT}, {xch}
    v_add_u32 v{vXa}, s{sT}, v{vL16}
    s_xor_b32 s{sT2}, s{sW}, 4
    s_mul_i32 s{sT2}, s{sT2}, {2048*n}
    s_add_u32 s{sT2}, s{sT2}, {xch}
    v_add_u32 v{vWa}, s{sT2}, v{vL16}
    s_nop 7
    s_nop 3
    s_cmp_eq_u32 s{sKH}, 0
    s_cbranch_scc0 {pfx}_r1
    """)
    for i, acc in enumerate(accs):
        a(f"ds_write_b128 v{vXa}, {vr(acc+8,4)} offset:{i*2048}\nds_write_b128 v{vXa}, {vr(acc+12,4)} offset:{i*2048+1024}")
    a(f"s_branch {pfx}_r2")
    a.label(f"{pfx}_r1")
    for i, acc in enumerate(accs):
        a(f"ds_write_b128 v{vXa}, {vr(acc,4)} offset:{i*2048}\nds_write_b128 v{vXa}, {vr(acc+4,4)} offset:{i*2048+1024}")
        for j in range(8): a(f"v_mov_b32 v{acc+j}, v{acc+8+j}")
    a.label(f"{pfx}_r2")
    a("s_waitcnt lgkmcnt(0)\ns_barrier")
    for i, acc in enumerate(accs):
        a(f"ds_read_b128 {vr(acc+8,4)}, v{vWa} offset:{i*2048}\nds_read_b128 {vr(acc+12,4)}, v{vWa} offset:{i*2048+1024}")
    a("s_waitcnt lgkmcnt(0)")
    for acc in accs:
        for j in range(8): a(f"v_add_f32 v{acc+j}, v{acc+j}, v{acc+8+j}")
```

```python
from common import *
import struct
K1_XS = 0
K1_WS = 65536
K1_ST = 131072
K1_LDS = K1_ST + 1024 + 256 + 1024
QSCALE = 0.25 * 1.4426950408889634
def vr(b, n=1): return f"v{b}" if n == 1 else f"v[{b}:{b+n-1}]"
def f2u(x): return struct.unpack("<I", struct.pack("<f", x))[0]
GC1 = -2.0 * 1.4426950408889634 * 0.7978845608028654
GC2 = GC1 * 0.044715

def gelu_ops(a, x, t, vC1, sC2):
    return [f"v_mul_f32 v{t}, v{x}, v{x}",
            f"v_fma_f32 v{t}, v{t}, s{sC2}, v{vC1}",
            f"v_mul_f32 v{t}, v{t}, v{x}",
            f"v_exp_f32 v{t}, v{t}",
            f"v_add_f32 v{t}, 1.0, v{t}",
            f"v_rcp_f32 v{t}, v{t}",
            f"v_mul_f32 v{x}, v{x}, v{t}"]
def gelu_pk(x, t, vC, vOne=None):
    P = lambda r: f"v[{r}:{r+1}]"
    return [f"v_pk_mul_f32 {P(t)}, {P(x)}, {P(x)}",
            f"v_pk_fma_f32 {P(t)}, {P(t)}, {P(vC+2)}, {P(vC)}",
            f"v_pk_mul_f32 {P(t)}, {P(t)}, {P(x)}",
            f"v_exp_f32 v{t}, v{t}", f"v_exp_f32 v{t+1}, v{t+1}",
            f"v_pk_add_f32 {P(t)}, {P(t)}, {P(vC+4)}",
            f"v_rcp_f32 v{t}, v{t}", f"v_rcp_f32 v{t+1}, v{t+1}",
            f"v_pk_mul_f32 {P(x)}, {P(x)}, {P(t)}"]
def gelu_consts(a, vC):
    a(f"v_mov_b32 v{vC}, {hex(f2u(GC1))}\nv_mov_b32 v{vC+1}, v{vC}\nv_mov_b32 v{vC+2}, {hex(f2u(GC2))}\nv_mov_b32 v{vC+3}, v{vC+2}\nv_mov_b32 v{vC+4}, 1.0\nv_mov_b32 v{vC+5}, 1.0")
def ln_pk(x, cs, vS):
    P = lambda r: f"v[{r}:{r+1}]"
    return [f"v_pk_mul_f32 {P(x)}, {P(x)}, {P(vS)} op_sel_hi:[1,0]",
            f"v_pk_fma_f32 {P(x)}, {P(cs)}, {P(vS)}, {P(x)} op_sel:[0,1,0] op_sel_hi:[1,1,1]"]
def emit_interleaved(a, seqs):
    n = max(len(s) for s in seqs)
    for i in range(n):
        for s in seqs:
            if i < len(s): a(s[i])


def gen_k1(a, pfx, X=None):
    X = X or {}
    sX = 8; sWq = 12; sWS = 16; sDB = 52
    sW = 20; sRB = 21; sWR = 22; sC = 23; sT = 24; sT2 = 25
    sXsrc = 26; sWsrc = 27; sWstep = 28; sWi = 29; sLX = 30; sLW = 31; sSlot = 32; sSlotD = 33
    sTB = 34; sC2 = 35; sJ = 44; sXb = 45; sWb = 46; sX2 = 47; sCk = 48; sTyp = 49; sWC = 50
    vL = 1; vT = 2; vT2 = 3; vT3 = 4
    a.c("==== K1 ====")
    prof_start(a)
    a(f"""
    s_load_dwordx4 s[36:39], s[0:1], {KA['x']}        ; x, wqkv
    s_load_dwordx2 s[40:41], s[0:1], {KA['w1']}
    s_load_dwordx2 s[42:43], s[0:1], {KA['ws']}
    s_load_dwordx2 s[56:57], s[0:1], {KA['dbg']}
    s_load_dwordx2 s[58:59], s[0:1], {KA['gw']}
    v_lshrrev_b32 v{vT}, 6, v0
    v_and_b32 v{vL}, 63, v0
    v_readfirstlane_b32 s{sW}, v{vT}
    s_and_b32 s{sT}, s2, 7                   ; xcd
    s_lshr_b32 s{sT2}, s2, 3                 ; j
    s_lshr_b32 s{sRB}, s{sT}, 1
    s_lshl_b32 s{sRB}, s{sRB}, 2
    s_and_b32 s{sTB}, s{sT2}, 3
    s_add_u32 s{sRB}, s{sRB}, s{sTB}
    s_and_b32 s{sTyp}, s{sT}, 1
    s_lshr_b32 s{sJ}, s{sT2}, 2
    s_and_b32 s{sTB}, s{sW}, 3
    s_cmp_lt_u32 s{sW}, 4
    s_cbranch_scc1 {pfx}_gemm
    """)
    vXd = [5, 6]; vWd = 7; vWa = [8, 9]; vWa0 = [10, 11]
    a(f"""
    v_lshrrev_b32 v{vT}, 3, v{vL}            ; r
    v_lshrrev_b32 v{vT2}, 4, v{vL}           ; r>>1
    v_and_b32 v{vT3}, 7, v{vL}
    v_xor_b32 v{vXd[0]}, v{vT3}, v{vT2}
    v_xor_b32 v{vXd[1]}, 4, v{vXd[0]}
    v_lshlrev_b32 v{vWd}, 10, v{vT}
    v_lshl_add_u32 v{vXd[0]}, v{vXd[0]}, 4, v{vWd}
    v_lshl_add_u32 v{vXd[1]}, v{vXd[1]}, 4, v{vWd}
    v_add_u32 v{vXd[1]}, 8192, v{vXd[1]}
    v_and_b32 v{vT2}, 1, v{vT2}              ; (r>>1)&1
    v_lshlrev_b32 v{vT2}, 2, v{vT2}
    v_xor_b32 v{vT3}, v{vT3}, v{vT2}
    s_lshl_b32 s{sXsrc}, s{sRB}, 7
    s_lshl_b32 s{sT}, s{sTB}, 5
    s_add_u32 s{sXsrc}, s{sXsrc}, s{sT}
    s_lshl_b32 s{sXb}, s{sXsrc}, 10
    s_lshl_b32 s{sLX}, s{sTB}, 12
    s_lshl_b32 s{sLW}, s{sTB}, 12
    s_add_u32 s{sLW}, s{sLW}, {K1_WS}
    s_lshr_b32 s{sT}, s{sTB}, 1              ; strip s
    s_lshl_b32 s{sT2}, s{sTyp}, 1
    s_add_u32 s{sT2}, s{sT2}, s{sT}          ; matrix: 0 Q, 1 K, 2 V, 3 h
    s_cmp_eq_u32 s{sT2}, 3
    s_mov_b32 s{sWi}, 3072
    s_cmov_b32 s{sWi}, 1024
    s_cselect_b32 s{sT2}, 0, s{sT2}
    s_lshl_b32 s{sT2}, s{sT2}, 10
    s_lshl_b32 s{sWb}, s{sJ}, 7              ; 64 j * 2
    s_add_u32 s{sWb}, s{sWb}, s{sT2}
    s_and_b32 s{sT}, s{sTB}, 1
    s_lshl_b32 s{sT}, s{sT}, 5
    s_mul_i32 s{sT}, s{sT}, s{sWi}
    s_add_u32 s{sWb}, s{sWb}, s{sT}
    s_lshl_b32 s{sWstep}, s{sWi}, 6          ; 64 rows
    v_mul_lo_u32 v{vT}, v{vT}, s{sWi}
    v_lshl_add_u32 v{vWd}, v{vT3}, 4, v{vT}
    s_lshl_b32 s{sT2}, s{sWi}, 3
    s_cmp_eq_u32 s{sWi}, 1024
    s_mov_b32 s{sWi}, s{sT2}
    s_waitcnt lgkmcnt(0)
    s_cselect_b32 s{sWq}, s40, s38
    s_cselect_b32 s{sWq+1}, s41, s39
    s_mov_b32 s{sWq+2}, {512*1536*2}
    s_cmov_b32 s{sWq+2}, {512*512*2}
    s_mov_b32 s{sWq+3}, 0x20000
    s_and_b32 s{sCk}, s{sRB}, 3
    s_lshl_b32 s{sCk}, s{sCk}, 1
    s_add_u32 s{sCk}, s{sCk}, s{sJ}
    s_and_b32 s{sCk}, s{sCk}, {0 if X.get("norot") else 7}
    """)
    srd(a, sX, 36, 37, 2048*512*2)
    a(f"s_cmp_eq_u32 s{sTyp}, 0\ns_cbranch_scc0 {pfx}_norow")
    srd(a, 60, 58, 59, 1024)
    a(f"""s_lshl_b32 s{sT}, s{sRB}, 7
    s_lshl_b32 s{sT2}, s{sJ}, 4
    s_add_u32 s{sT}, s{sT}, s{sT2}
    s_lshl_b32 s{sT2}, s{sTB}, 2
    s_add_u32 s51, s{sT}, s{sT2}
    s_lshl_b32 s{sT}, s51, 10
    v_lshlrev_b32 v{vT}, 4, v{vL}
    buffer_load_dwordx4 v[20:23], v{vT}, s[{sX}:{sX+3}], s{sT} offen
    buffer_load_dwordx4 v[24:27], v{vT}, s[{sX}:{sX+3}], s{sT} offen offset:1024
    buffer_load_dwordx4 v[28:31], v{vT}, s[{sX}:{sX+3}], s{sT} offen offset:2048
    buffer_load_dwordx4 v[32:35], v{vT}, s[{sX}:{sX+3}], s{sT} offen offset:3072
    buffer_load_dwordx4 v[36:39], v{vT}, s[60:63], 0 offen
    """)
    a.label(f"{pfx}_norow")
    def dma_begin():
        return [f"s_lshl_b32 s{sT}, s{sCk}, 7", f"s_add_u32 s{sXsrc}, s{sXb}, s{sT}", f"s_add_u32 s{sX2}, s{sXsrc}, 16384",
                f"s_mul_i32 s{sT}, s{sCk}, s{sWstep}", f"s_add_u32 s{sWsrc}, s{sWb}, s{sT}", f"s_add_u32 s{sCk}, s{sCk}, 1", f"s_and_b32 s{sCk}, s{sCk}, 7",
                f"s_add_u32 s{sT}, s{sSlotD}, s{sLX}", f"s_add_u32 s{sT2}, s{sSlotD}, s{sLW}"]
    def dma_one(i):
        j = i >> 1
        if i & 1 == 0:
            return [f"s_add_u32 m0, s{sT}, {j*1024}", "s_nop 0",
                    f"buffer_load_dwordx4 v{vXd[j&1]}, s[{sX}:{sX+3}], s{sXsrc if j < 2 else sX2} offen lds"]
        L = [f"s_add_u32 m0, s{sT2}, {j*1024}", "s_nop 0",
             f"buffer_load_dwordx4 v{vWd}, s[{sWq}:{sWq+3}], s{sWsrc} offen lds"]
        if j < 3: L.append(f"s_add_u32 s{sWsrc}, s{sWsrc}, s{sWi}")
        return L
    def dma_all():
        if X.get("nodma"): return
        for x in dma_begin(): a(x)
        for i in range(8):
            for x in dma_one(i): a(x)
    for c in range(2):
        a(f"s_mov_b32 s{sSlotD}, {c*16384}")
        dma_all()
    a(f"s_mov_b32 s{sSlotD}, {2*16384}\ns_mov_b32 s{sSlot}, 0\ns_mov_b32 s{sC}, 0")
    srd(a, sWS, 42, 43, WS_USED)
    def w_addrs(dst, nbs, strip_off):
        a(f"""
        v_lshrrev_b32 v{vT2}, 5, v{vL}
        v_lshlrev_b32 v{vT}, 10, v{vT2}          ; h*8*128
        v_bfe_u32 v{vT2}, v{vL}, 2, 2            ; r
        v_lshl_add_u32 v{vT}, v{vT2}, 7, v{vT}
        v_bfe_u32 v{vT3}, v{vL}, 4, 1            ; nhalf
        v_lshl_add_u32 v{vT}, v{vT3}, 5, v{vT}
        v_and_b32 v{vT3}, 3, v{vL}
        v_lshl_add_u32 v{vT}, v{vT3}, 3, v{vT}
        v_add_u32 v{vT}, {K1_WS + strip_off}, v{vT}
        v_lshrrev_b32 v{vT2}, 1, v{vT2}          ; r>>1
        """)
        for d, nb in zip(dst, nbs):
            if isinstance(nb, int):
                a(f"v_xor_b32 v{vT3}, {nb}, v{vT2}\nv_lshl_add_u32 v{d}, v{vT3}, 6, v{vT}")
            else:
                a(f"v_xor_b32 v{vT3}, s{nb[1:]}, v{vT2}\nv_lshl_add_u32 v{d}, v{vT3}, 6, v{vT}")
    def loader_wait(lbl, tail=(8, 0)):
        a(f"""s_cmp_lt_u32 s{sC}, 6
        s_cbranch_scc1 {lbl}_w8
        s_cmp_eq_u32 s{sC}, 6
        s_cbranch_scc1 {lbl}_w4
        s_waitcnt vmcnt({tail[1]})
        s_branch {lbl}_wd
        {lbl}_w4:
        s_waitcnt vmcnt({tail[0]})
        s_branch {lbl}_wd
        {lbl}_w8:
        s_waitcnt vmcnt(16)
        {lbl}_wd:
        s_waitcnt lgkmcnt(0)
        s_barrier""")
    a(f"s_cmp_eq_u32 s{sTyp}, 0\ns_cbranch_scc0 {pfx}_lb")
    a(f"s_cmp_eq_u32 s2, 0\ns_cbranch_scc0 {pfx}_nzf\ns_cmp_eq_u32 s{sW}, 4\ns_cbranch_scc0 {pfx}_nzf")
    a(f"""v_mov_b32 v12, 0
    v_mov_b32 v13, 0
    v_mov_b32 v14, 0
    v_mov_b32 v15, 0
    v_lshlrev_b32 v16, 4, v{vL}
    s_mov_b32 s{sT}, {hex(WS_FLAGS)}
    buffer_store_dwordx4 v[12:15], v16, s[{sWS}:{sWS+3}], s{sT} offen
    buffer_store_dwordx4 v[12:15], v16, s[{sWS}:{sWS+3}], s{sT} offen offset:1024
    buffer_store_dwordx4 v[12:15], v16, s[{sWS}:{sWS+3}], s{sT} offen offset:2048
    buffer_store_dwordx4 v[12:15], v16, s[{sWS}:{sWS+3}], s{sT} offen offset:3072
    s_waitcnt vmcnt(0)""")
    a.label(f"{pfx}_nzf")
    srd(a, sDB, 56, 57, 256)
    G = 40
    st = []
    def S_(x): st.extend([l.strip() for l in x.split("\n") if l.strip()])
    for p in range(4): S_(f"v_lshlrev_b32 v{G+2*p}, 16, v{36+p}\nv_and_b32 v{G+2*p+1}, 0xffff0000, v{36+p}")
    for i in range(4):
        for p in range(4):
            x = 20 + 4*i + p
            S_(f"v_lshlrev_b32 v60, 16, v{x}\nv_and_b32 v61, 0xffff0000, v{x}")
            if p == 0:
                S_(f"v_add_f32 v{48+i}, v60, v61\nv_mul_f32 v{52+i}, v60, v60\nv_mul_f32 v{56+i}, v60, v{G}")
                S_(f"v_fmac_f32 v{52+i}, v61, v61\nv_fmac_f32 v{56+i}, v61, v{G+1}")
            else:
                S_(f"v_add_f32 v{48+i}, v{48+i}, v60\nv_fmac_f32 v{52+i}, v60, v60\nv_fmac_f32 v{56+i}, v60, v{G+2*p}")
                S_(f"v_add_f32 v{48+i}, v{48+i}, v61\nv_fmac_f32 v{52+i}, v61, v61\nv_fmac_f32 v{56+i}, v61, v{G+2*p+1}")
    n1 = len(st)
    S_("s_nop 1")
    for mod in ["row_shr:1 row_mask:0xf bank_mask:0xf bound_ctrl:1", "row_shr:2 row_mask:0xf bank_mask:0xf bound_ctrl:1",
                "row_shr:4 row_mask:0xf bank_mask:0xf bound_ctrl:1", "row_shr:8 row_mask:0xf bank_mask:0xf bound_ctrl:1",
                "row_bcast:15 row_mask:0xa bank_mask:0xf", "row_bcast:31 row_mask:0xc bank_mask:0xf"]:
        for r in range(48, 60): S_(f"v_add_f32_dpp v{r}, v{r}, v{r} {mod}")
    S_("s_nop 1")
    for i in range(4):
        S_(f"""v_mul_f32 v{48+i}, {hex(f2u(1/512))}, v{48+i}
        v_mul_f32 v{52+i}, {hex(f2u(1/512))}, v{52+i}
        v_mul_f32 v{56+i}, {hex(f2u(-1.4426950408889634))}, v{56+i}""")
    for i in range(4): S_(f"v_fma_f32 v{52+i}, -v{48+i}, v{48+i}, v{52+i}\nv_exp_f32 v{56+i}, v{56+i}")
    for i in range(4): S_(f"v_max_f32 v{52+i}, 0, v{52+i}\nv_add_f32 v{56+i}, 1.0, v{56+i}")
    for i in range(4): S_(f"v_add_f32 v{52+i}, {hex(f2u(1e-5))}, v{52+i}\nv_rcp_f32 v{56+i}, v{56+i}")
    for i in range(4): S_(f"v_rsq_f32 v{60+2*i}, v{52+i}")
    S_("s_nop 0")
    for i in range(4): S_(f"v_mul_f32 v{61+2*i}, v{48+i}, v{60+2*i}")
    for i in range(4): S_(f"v_sub_f32 v{61+2*i}, 0, v{61+2*i}")
    S_(f"""s_lshl_b32 s61, s51, 3
    s_add_u32 s61, s61, {hex(WS_XST)}
    s_lshl_b32 s62, s51, 2
    s_add_u32 s62, s62, {hex(WS_G)}
    v_mov_b32 v{vT}, 0
    s_mov_b32 exec_lo, 0
    s_mov_b32 exec_hi, 0x80000000
    buffer_store_dwordx4 v[60:63], v{vT}, s[{sWS}:{sWS+3}], s61 offen sc1
    buffer_store_dwordx4 v[64:67], v{vT}, s[{sWS}:{sWS+3}], s61 offen offset:16 sc1
    buffer_store_dwordx4 v[56:59], v{vT}, s[{sWS}:{sWS+3}], s62 offen sc1
    s_mov_b64 exec, -1""")
    prof_stamp(a, 0)
    def la_iter(c, extra=None, vm=16):
        a(f"s_waitcnt vmcnt({vm})\ns_barrier")
        if c < 5:
            dma_all()
            a(f"s_add_u32 s{sSlotD}, s{sSlotD}, 16384\ns_and_b32 s{sSlotD}, s{sSlotD}, 0xffff")
        for x in (extra or []): a(x)
    a("s_waitcnt vmcnt(16)")
    for x in st: a(x)
    a("s_waitcnt vmcnt(11)\ns_barrier")
    for _ in range(2):
        dma_all()
        a(f"s_add_u32 s{sSlotD}, s{sSlotD}, 16384\ns_and_b32 s{sSlotD}, s{sSlotD}, 0xffff")
    la_iter(1, vm=16)
    a(f"""s_cmp_eq_u32 s{sW}, 4
    s_cbranch_scc0 {pfx}_la_nf
    s_lshl_b32 s{sT}, s{sRB}, 4
    s_add_u32 s{sT}, s{sT}, s{sJ}
    v_mov_b32 v{vT}, 0
    v_mov_b32 v{vT2}, 1
    s_mov_b64 exec, 1
    buffer_store_byte v{vT2}, v{vT}, s[{sDB}:{sDB+3}], s{sT} offen sc1
    s_mov_b64 exec, -1""")
    a.label(f"{pfx}_la_nf")
    la_iter(2, vm=16)
    la_iter(3, vm=16)
    la_iter(4, vm=16)
    la_iter(5, vm=16)
    la_iter(6, vm=8)
    la_iter(7, vm=0)
    prof_stamp(a, 1); prof_stamp(a, 2); prof_stamp(a, 3)
    prof_end(a, 2, sW, 8, sWS, vtmp=20)
    a("s_endpgm")
    a.label(f"{pfx}_lb")
    w_addrs(vWa0, [0, 1], 8192)
    vc = [24, 25, 26, 27]; vG = 44; vU = 52
    for r in vc: a(f"v_mov_b32 v{r}, 0")
    srd(a, sDB, 56, 57, 256)
    a(f"s_lshl_b32 s60, s{sRB}, 4\nv_mov_b32 v30, 0")
    a(f"""s_lshl_b32 s62, s{sRB}, 10
    s_add_u32 s62, s62, {hex(WS_XST)}
    v_lshlrev_b32 v34, 4, v{vL}
    s_mov_b32 s63, 0""")
    prof_stamp(a, 0)
    a("s_waitcnt vmcnt(8) lgkmcnt(0)\ns_barrier")
    dma_all()
    a(f"s_add_u32 s{sSlotD}, s{sSlotD}, 16384\ns_branch {pfx}_sl0")
    a.label(f"{pfx}_sl")
    loader_wait(f"{pfx}_s", tail=(8, 0))
    a.label(f"{pfx}_sl0")
    a(f"s_lshl_b32 s{sT}, s{sTB}, 11\ns_add_u32 s{sT}, s{sT}, s{sSlot}")
    for nb in range(2):
        a(f"v_add_u32 v54, s{sT}, v{vWa0[nb]}")
        a(f"ds_read_b64_tr_b16 {vr(vG+4*nb,2)}, v54\nds_read_b64_tr_b16 {vr(vG+4*nb+2,2)}, v54 offset:512")
    ops = ["s_waitcnt lgkmcnt(0)"]
    for nb in range(2):
        for i in range(4):
            x = vG + 4*nb + i
            ops += [f"v_lshlrev_b32 v{vU}, 16, v{x}", f"v_and_b32 v{vU+1}, 0xffff0000, v{x}",
                    f"v_add_f32 v{vc[2*nb]}, v{vc[2*nb]}, v{vU}", f"v_add_f32 v{vc[2*nb+1]}, v{vc[2*nb+1]}, v{vU+1}"]
    a(f"s_cmp_ge_u32 s{sC}, 5\ns_cbranch_scc1 {pfx}_s_nd")
    for x in dma_begin(): a(x)
    step = max(1, len(ops) // 8); k = 0
    for i in range(8):
        for x in (dma_one(i) if not X.get("nodma") else []): a(x)
        hi = len(ops) if i == 7 else min(len(ops), k + step)
        for x in ops[k:hi]: a(x)
        k = hi
    a(f"s_add_u32 s{sSlotD}, s{sSlotD}, 16384\ns_and_b32 s{sSlotD}, s{sSlotD}, 0xffff\ns_branch {pfx}_s_nx")
    a.label(f"{pfx}_s_nd")
    a(f"s_cmp_eq_u32 s{sC}, {X.get('fc', 6)}\ns_cbranch_scc0 {pfx}_s_nf\ns_cmp_eq_u32 s{sW}, 4\ns_cbranch_scc0 {pfx}_s_nf")
    a(f"buffer_load_dwordx2 v[32:33], v30, s[{sDB}:{sDB+3}], s60 offen sc1")
    a.label(f"{pfx}_s_nf")
    a(f"""s_cmp_eq_u32 s{sC}, {X.get('fc', 6) + 1}
    s_cbranch_scc0 {pfx}_s_ng
    s_cmp_eq_u32 s{sW}, 4
    s_cbranch_scc0 {pfx}_s_ng
    s_waitcnt vmcnt(0)
    v_and_b32 v32, v32, v33
    s_nop 0
    v_readfirstlane_b32 s{sT}, v32
    s_cmp_eq_u32 s{sT}, 0x01010101
    s_cbranch_scc0 {pfx}_s_ng
    s_mov_b32 s63, 1
    buffer_load_dwordx4 v[28:31], v34, s[{sWS}:{sWS+3}], s62 offen sc1""")
    a.label(f"{pfx}_s_ng")
    for x in ops: a(x)
    a.label(f"{pfx}_s_nx")
    a(f"""s_add_u32 s{sSlot}, s{sSlot}, 16384
    s_and_b32 s{sSlot}, s{sSlot}, 0xffff
    s_add_u32 s{sC}, s{sC}, 1
    s_cmp_lt_u32 s{sC}, 8
    s_cbranch_scc1 {pfx}_sl""")
    prof_stamp(a, 1)
    a(f"""
    v_add_f32 v24, v24, v25
    v_add_f32 v26, v26, v27
    v_lshlrev_b32 v55, 2, v{vL}
    s_lshl_b32 s{sT}, s{sTB}, 8
    s_add_u32 s{sT}, s{sT}, {K1_ST + 1280}
    v_permlane32_swap_b32 v24, v26
    v_add_u32 v54, s{sT}, v55
    s_nop 0
    v_add_f32 v24, v24, v26
    s_nop 0
    ds_write_b32 v54, v24
    s_waitcnt lgkmcnt(0)
    s_barrier                                  ; F1
    s_cmp_eq_u32 s{sW}, 4
    s_cbranch_scc0 {pfx}_pdone
    v_add_u32 v54, {K1_ST + 1280}, v55
    ds_read_b32 v36, v54
    ds_read_b32 v37, v54 offset:256
    ds_read_b32 v38, v54 offset:512
    ds_read_b32 v39, v54 offset:768
    s_cmp_eq_u32 s63, 1
    s_cbranch_scc1 {pfx}_pdone0
    s_branch {pfx}_pchk
    """)
    a.label(f"{pfx}_poll")
    a(f"""s_sleep 1
    buffer_load_dwordx2 v[32:33], v30, s[{sDB}:{sDB+3}], s60 offen sc1
    s_waitcnt vmcnt(0)""")
    a.label(f"{pfx}_pchk")
    a(f"""v_and_b32 v32, v32, v33
    s_nop 0
    v_readfirstlane_b32 s{sT}, v32
    s_cmp_eq_u32 s{sT}, 0x01010101
    s_cbranch_scc0 {pfx}_poll
    buffer_load_dwordx4 v[28:31], v34, s[{sWS}:{sWS+3}], s62 offen sc1""")
    a.label(f"{pfx}_pdone0")
    a(f"""s_waitcnt lgkmcnt(0)
    v_add_f32 v36, v36, v37
    v_add_f32 v38, v38, v39
    v_add_u32 v54, {K1_ST + 1024}, v55
    v_add_f32 v36, v36, v38
    v_add_u32 v55, {K1_ST}, v34
    ds_write_b32 v54, v36
    s_waitcnt vmcnt(0)
    ds_write_b128 v55, v[28:31]""")
    a.label(f"{pfx}_pdone")
    a("s_waitcnt lgkmcnt(0)\ns_barrier")
    prof_stamp(a, 2); prof_stamp(a, 3)
    prof_end(a, 2, sW, 8, sWS, vtmp=20)
    a("s_endpgm")
    a.label(f"{pfx}_gemm")
    vXa0 = [8, 9, 10, 11]; vWa0 = 12; vXa = [13, 14, 15, 16]; vWa = 17
    vXf = [20, 28, 36, 44]; vWf = [52, 60, 68, 76]; vA = [[84, 100], [116, 132]]
    a(f"""s_lshr_b32 s{sWR}, s{sW}, 1
    s_and_b32 s{sWC}, s{sW}, 1
    s_waitcnt lgkmcnt(0)""")
    srd(a, sX, 36, 37, 2048*512*2)
    srd(a, sWS, 42, 43, WS_USED)
    a(f"""
    v_and_b32 v{vT}, 31, v{vL}               ; t
    v_lshrrev_b32 v{vT2}, 5, v{vL}           ; h
    v_lshrrev_b32 v{vT3}, 1, v{vT}
    v_and_b32 v{vT3}, 7, v{vT3}              ; f
    v_xor_b32 v{vT3}, v{vT3}, v{vT2}         ; f ^ h
    s_lshl_b32 s{sT}, s{sWR}, 13
    v_lshlrev_b32 v{vT}, 7, v{vT}
    v_add_u32 v{vT}, s{sT}, v{vT}            ; row*128
    """)
    for ks in range(4):
        a(f"v_xor_b32 v{vXa0[ks]}, {2*ks}, v{vT3}\nv_lshl_add_u32 v{vXa0[ks]}, v{vXa0[ks]}, 4, v{vT}")
    w_addrs([vWa0], [f"s{sWC}"], 0)
    for i in range(64): a(f"v_mov_b32 v{84+i}, 0")
    for b in (2, 3):
        for i in range(8): a(f"v_mov_b32 v{vXf[b]+i}, 0\nv_mov_b32 v{vWf[b]+i}, 0")
    a(f"s_mov_b32 s{sC}, 0")
    def reads(ks, slot):
        L = [f"ds_read_b128 {vr(vXf[ks]+4*t,4)}, v{vXa0[ks]} offset:{slot*16384 + t*4096}" for t in range(2)]
        for s_ in range(2):
            for jj in range(2):
                L.append(f"ds_read_b64_tr_b16 {vr(vWf[ks]+4*s_+2*jj,2)}, v{vWa0} offset:{slot*16384 + s_*8192 + ks*2048 + jj*512}")
        return L
    def mfmas(ks, typ):
        L = []
        for t in range(2):
            for s_ in range(2):
                x, w = vr(vXf[ks] + 4*t, 4), vr(vWf[ks] + 4*s_, 4)
                ops = f"{x}, {w}" if (typ == 1 and s_ == 0) else f"{w}, {x}"
                L.append(f"v_mfma_f32_32x32x16_bf16 {vr(vA[t][s_],16)}, {ops}, {vr(vA[t][s_],16)}")
        return L
    def interleave(m, r, split):
        k = 0
        if X.get("nomfma"): m = ["s_nop 0"] * 4
        if X.get("noread"): r = []
        for j in range(4):
            a(m[j])
            for _ in range(split[j]):
                if k < len(r): a(r[k]); k += 1
    def gemm_loop(typ):
        p = f"{pfx}_g{typ}"
        sp = X.get("split", [2, 2, 2, 0]); spl = X.get("splitl", [3, 3, 0, 0])
        prof_stamp(a, 0)
        a.L.append(".p2align 6")
        a.label(p)
        for slot in range(4):
            a("s_waitcnt lgkmcnt(0)\ns_barrier")
            interleave(mfmas(2, typ), reads(0, slot), sp)
            interleave(mfmas(3, typ), reads(1, slot), sp)
            a("s_waitcnt lgkmcnt(6)")
            interleave(mfmas(0, typ), reads(2, slot), sp)
            a("s_waitcnt lgkmcnt(6)")
            m = mfmas(1, typ)
            if slot == 3:
                interleave(m[:4], reads(3, slot), spl) if False else None
                a(m[0] if not X.get("nomfma") else "s_nop 0")
                rr = [] if X.get("noread") else reads(3, slot)
                for r in rr[:3]: a(r)
                a(m[1] if not X.get("nomfma") else "s_nop 0")
                for r in rr[3:]: a(r)
                a(f"s_add_u32 s{sC}, s{sC}, 1\ns_cmp_lt_u32 s{sC}, 2")
                a(m[2] if not X.get("nomfma") else "s_nop 0")
                a(m[3] if not X.get("nomfma") else "s_nop 0")
                a(f"s_cbranch_scc1 {p}")
            else:
                interleave(m, reads(3, slot), spl)
        prof_stamp(a, 1)
        a("s_waitcnt lgkmcnt(0)")
        if typ == 1: a("s_barrier")
        for m in mfmas(2, typ) + mfmas(3, typ): a(m)
    S = f"s[{sWS}:{sWS+3}]"
    vLa = 2; vKo = 3; vVo = 4
    def epi_common():
        a(f"""
        v_lshlrev_b32 v{vLa}, 4, v{vL}            ; lane*16
        v_and_b32 v5, 31, v{vL}                   ; t / n
        v_lshrrev_b32 v6, 5, v{vL}                ; h
        s_lshl_b32 s36, s{sRB}, 2
        s_lshl_b32 s{sT}, s{sWR}, 1
        s_add_u32 s36, s36, s{sT}
        s_lshl_b32 s37, s{sJ}, 2
        s_lshl_b32 s{sT}, s{sWC}, 1
        s_add_u32 s37, s37, s{sT}
        s_lshl_b32 s38, s37, 16
        s_lshl_b32 s{sT2}, s36, 10
        s_add_u32 s38, s38, s{sT2}
        """)
    a(f"s_cmp_eq_u32 s{sTyp}, 0\ns_cbranch_scc0 {pfx}_gB")
    gemm_loop(0)
    epi_common()
    a(f"""
    v_and_b32 v7, 19, v5
    v_bfe_u32 v8, v5, 2, 1
    v_lshl_or_b32 v7, v8, 3, v7
    v_bfe_u32 v8, v5, 3, 1
    v_lshl_or_b32 v7, v8, 2, v7               ; pi(t)
    v_lshl_add_u32 v7, v6, 5, v7
    v_lshlrev_b32 v{vKo}, 4, v7               ; (h*32 + pi(t))*16
    s_mov_b32 s{sT2}, {hex(f2u(QSCALE))}
    s_nop 7
    """)
    prof_stamp(a, 2)
    for t in range(2):
        A = vA[t][1]
        for i in range(8): a(f"v_cvt_pk_bf16_f32 v{20+8*t+i}, v{A+2*i}, v{A+2*i+1}")
        for hh in range(2):
            a(f"s_add_u32 s{sT}, s38, {hex(WS_KF + hh*65536 + t*1024)}\nbuffer_store_dwordx4 {vr(20+8*t+4*hh,4)}, v{vKo}, {S}, s{sT} offen")
    for t in range(2):
        A = vA[t][0]
        for i in range(16): a(f"v_mul_f32 v{A+i}, s{sT2}, v{A+i}")
        for i in range(8): a(f"v_cvt_pk_bf16_f32 v{36+8*t+i}, v{A+2*i}, v{A+2*i+1}")
        for hh in range(2):
            a(f"s_add_u32 s{sT}, s38, {hh*65536 + t*1024}\nbuffer_store_dwordx4 {vr(36+8*t+4*hh,4)}, v{vLa}, {S}, s{sT} offen")
    prof_stamp(a, 3)
    prof_end(a, 2, sW, 8, sWS, vtmp=20)
    a("s_endpgm")
    a.label(f"{pfx}_gB")
    gemm_loop(1)
    epi_common()
    a(f"""
    v_lshrrev_b32 v7, 4, v5                   ; n>>4
    v_lshlrev_b32 v7, 16, v7
    v_lshl_add_u32 v7, v6, 8, v7
    v_and_b32 v8, 15, v5
    v_lshl_add_u32 v{vVo}, v8, 4, v7          ; (n>>4)*65536 + h*256 + d*16
    s_lshl_b32 s39, s36, 15                   ; tblock*32*1024
    s_lshl_b32 s{sT2}, s37, 10
    s_add_u32 s39, s39, s{sT2}
    s_add_u32 s39, s39, {hex(WS_H1)}
    s_lshl_b32 s{sT2}, s{sWR}, 9
    s_add_u32 s{sT2}, s{sT2}, {K1_ST}
    v_lshl_add_u32 v9, v5, 3, s{sT2}
    s_lshl_b32 s{sT2}, s{sWC}, 7
    s_add_u32 s{sT2}, s{sT2}, {K1_ST + 1024}
    v_lshl_add_u32 v10, v6, 4, s{sT2}
    s_nop 4
    """)
    for t in range(2):
        A = vA[t][0]
        for i in range(8): a(f"v_cvt_pk_bf16_f32 v{20+8*t+i}, v{A+2*i}, v{A+2*i+1}")
        a(f"s_add_u32 s{sT}, s38, {hex(WS_VF + t*1024)}")
        a(f"buffer_store_dwordx4 {vr(20+8*t,4)}, v{vVo}, {S}, s{sT} offen")
        a(f"buffer_store_dwordx4 {vr(24+8*t,4)}, v{vVo}, {S}, s{sT} offen offset:512")
    a("s_barrier")
    prof_stamp(a, 2)
    a("ds_read_b64 v[12:13], v9\nds_read_b64 v[14:15], v9 offset:256")
    for i in range(4): a(f"ds_read_b128 {vr(36+4*i,4)}, v10 offset:{32*i}")
    gelu_consts(a, 52)
    a("s_waitcnt lgkmcnt(0)")
    for t in range(2):
        h = vA[t][1]
        emit_interleaved(a, [ln_pk(h + 2*i, 36 + 2*i, 12 + 2*t) for i in range(8)])
        for g in range(0, 16, 8):
            emit_interleaved(a, [gelu_pk(h + g + 2*i, 60 + 2*i, 52) for i in range(4)])
        for i in range(8): a(f"v_cvt_pk_bf16_f32 v{72+i}, v{h+2*i}, v{h+2*i+1}")
        a(f"s_add_u32 s{sT}, s39, {t*32768}")
        a(f"buffer_store_dwordx4 {vr(72,4)}, v{vLa}, {S}, s{sT} offen")
        a(f"buffer_store_dwordx4 {vr(76,4)}, v{vLa}, {S}, s{sT} offen offset:1024")
        a("s_nop 1")
    prof_stamp(a, 3)
    prof_end(a, 2, sW, 8, sWS, vtmp=20)
    a("s_endpgm")
    return 148
```

```python
from common import *
from k1 import vr, f2u, gelu_ops, gelu_pk, gelu_consts, ln_pk, emit_interleaved, GC1, GC2
W3_SLOT = 24576
W3_CS = 3 * W3_SLOT
W3_LDS = W3_CS + 1024
def gen_w3(a, pfx, s_id, merged=False, prio=None):
    sc = 'sc1' if merged else ''
    sWS = 8; sWm = 12
    sW, sKH, sTB, sRB, sCB, sT, sT2 = 16, 17, 18, 19, 20, 21, 22
    sXs = 23; sWb = 24; sLd = 25; sS = [26, 27, 28]; sC2 = 29; sTbk = 30
    vL = 1; vL16 = 2; vWd = 3; vWa = [4, 5, 6]; vT = 7; vT2 = 8; vT3 = 9; vSt = 10
    vX = 12
    vA = [32, 48, 64]; vCS = 80; vWf = [96, 108]; vOne = 120
    a.c("==== G2: w3 ====")
    prof_start(a)
    a(f"s_load_dwordx2 s[40:41], s[0:1], {KA['ws']}\ns_load_dwordx2 s[42:43], s[0:1], {KA['w3']}")
    a(f"""
    v_lshrrev_b32 v{vT}, 6, v0
    v_and_b32 v{vL}, 63, v0
    v_readfirstlane_b32 s{sW}, v{vT}
    v_lshlrev_b32 v{vL16}, 4, v{vL}
    s_and_b32 s{sT}, s{s_id}, 7
    s_lshr_b32 s{sT2}, s{s_id}, 3
    s_lshr_b32 s{sRB}, s{sT}, 1
    s_lshl_b32 s{sRB}, s{sRB}, 2
    s_and_b32 s{sCB}, s{sT2}, 3
    s_add_u32 s{sRB}, s{sRB}, s{sCB}           ; rb 0..15
    s_and_b32 s{sCB}, s{sT}, 1
    s_lshl_b32 s{sCB}, s{sCB}, 3
    s_lshr_b32 s{sT2}, s{sT2}, 2
    s_add_u32 s{sCB}, s{sCB}, s{sT2}           ; cb 0..15
    s_cmp_ge_u32 s{sCB}, 15
    s_cbranch_scc1 {pfx}_exit
    s_lshr_b32 s{sKH}, s{sW}, 2
    s_and_b32 s{sTB}, s{sW}, 3
    s_lshl_b32 s{sTbk}, s{sRB}, 2
    s_add_u32 s{sTbk}, s{sTbk}, s{sTB}         ; tblock
    """)
    a(f"""
    s_mul_i32 s{sLd}, s{sW}, 3072
    s_lshl_b32 s{sT}, s{sKH}, 4
    s_add_u32 s{sT}, s{sT}, s{sTB}
    s_mul_i32 s{sWb}, s{sT}, {16*2752}
    s_mul_i32 s{sT}, s{sCB}, 192
    s_add_u32 s{sWb}, s{sWb}, s{sT}
    v_lshrrev_b32 v{vT}, 2, v{vL}
    v_mul_u32_u24 v{vT}, 2752, v{vT}
    v_and_b32 v{vT2}, 3, v{vL}
    v_lshl_add_u32 v{vWd}, v{vT2}, 4, v{vT}
    s_mul_i32 s{sXs}, s{sTbk}, 32768
    s_lshl_b32 s{sT}, s{sKH}, 14
    s_add_u32 s{sXs}, s{sXs}, s{sT}
    s_add_u32 s{sXs}, s{sXs}, {hex(WS_X1)}
    """)
    for p in range(3):
        a(f"""s_add_u32 s{sS[p]}, s{sTB}, {p}
        s_cmp_ge_u32 s{sS[p]}, 3
        s_cselect_b32 s{sT}, 3, 0
        s_sub_u32 s{sS[p]}, s{sS[p]}, s{sT}
        s_cmp_ge_u32 s{sS[p]}, 3
        s_cselect_b32 s{sT}, 3, 0
        s_sub_u32 s{sS[p]}, s{sS[p]}, s{sT}""")
    a(f"""
    v_lshrrev_b32 v{vT}, 5, v{vL}             ; h
    v_lshlrev_b32 v{vT}, 8, v{vT}
    v_bfe_u32 v{vT2}, v{vL}, 2, 2
    v_lshl_add_u32 v{vT}, v{vT2}, 6, v{vT}
    v_bfe_u32 v{vT2}, v{vL}, 4, 1
    v_lshl_add_u32 v{vT}, v{vT2}, 5, v{vT}
    v_and_b32 v{vT2}, 3, v{vL}
    v_lshl_add_u32 v{vT}, v{vT2}, 3, v{vT}
    s_mul_i32 s{sT2}, s{sKH}, {4*3072}
    """)
    for p in range(3):
        a(f"s_lshl_b32 s{sT}, s{sS[p]}, 10\ns_add_u32 s{sT}, s{sT}, s{sT2}\nv_add_u32 v{vWa[p]}, s{sT}, v{vT}")
    a("s_waitcnt lgkmcnt(0)")
    srd(a, sWS, 40, 41, WS_USED); srd(a, sWm, 42, 43, 512*1376*2)
    def wdma(c):
        slot = (c % 3) * W3_SLOT
        a(f"s_add_u32 m0, s{sLd}, {slot}\ns_add_u32 s{sT}, s{sWb}, {c*4*16*2752}")
        for j in range(3):
            a(f"buffer_load_dwordx4 v{vWd}, s[{sWm}:{sWm+3}], s{sT} offen lds")
            if j < 2: a(f"s_add_u32 m0, m0, 1024\ns_add_u32 s{sT}, s{sT}, 64")
    wdma(0); wdma(1)
    if prio is not None: a(f"s_setprio {prio}")
    if merged:
        a(f"""s_cmp_eq_u32 s{sW}, 0
        s_cbranch_scc0 {pfx}_wb
        s_lshl_b32 s{sT2}, s{sRB}, 7
        s_add_u32 s{sT2}, s{sT2}, {hex(WS_FLAGS)}
        v_and_b32 v{vT}, 15, v{vL}
        v_lshlrev_b32 v{vT}, 2, v{vT}""")
        a.label(f"{pfx}_poll")
        a(f"""buffer_load_dword v{vT2}, v{vT}, s[{sWS}:{sWS+3}], s{sT2} offen sc1
        s_waitcnt vmcnt(0)
        v_cmp_ne_u32 vcc, 1, v{vT2}
        s_nop 4
        s_cmp_eq_u64 vcc, 0
        s_cbranch_scc1 {pfx}_pok
        s_sleep 8
        s_branch {pfx}_poll""")
        a.label(f"{pfx}_pok")
        a("buffer_inv sc1\ns_waitcnt vmcnt(0)")
        a.label(f"{pfx}_wb")
        a("s_barrier")
    a(f"""
    v_and_b32 v{vT}, 31, v{vL}
    v_lshlrev_b32 v{vT}, 6, v{vT}
    v_lshrrev_b32 v{vT2}, 5, v{vL}
    v_lshl_add_u32 v{vT}, v{vT2}, 5, v{vT}     ; t*64 + h*32
    s_lshl_b32 s{sT}, s{sTbk}, 11
    s_add_u32 s{sT}, s{sT}, {hex(WS_ST)}
    buffer_load_dwordx4 v[80:83], v{vT}, s[{sWS}:{sWS+3}], s{sT} offen {sc}
    buffer_load_dwordx4 v[84:87], v{vT}, s[{sWS}:{sWS+3}], s{sT} offen offset:16 {sc}
    """)
    def xload(c, ks):
        a(f"s_add_u32 s{sT}, s{sXs}, {(4*c+ks)*1024}\nbuffer_load_dwordx4 {vr(vX+4*ks,4)}, v{vL16}, s[{sWS}:{sWS+3}], s{sT} offen {sc}")
    for ks in range(4): xload(0, ks)
    for i in range(48): a(f"v_mov_b32 v{32+i}, 0")
    for i in range(4): a(f"v_mov_b32 v{vOne+i}, 0x3f803f80")
    a(f"""s_waitcnt vmcnt(4)
    v_add_f32 v80, v80, v82
    v_add_f32 v81, v81, v83
    v_add_f32 v84, v84, v86
    v_add_f32 v85, v85, v87
    v_add_f32 v80, v80, v84
    v_add_f32 v82, v81, v85
    v_mov_b32 v81, v80
    v_mov_b32 v83, v82
    s_nop 1
    v_permlane32_swap_b32 v80, v81
    v_permlane32_swap_b32 v82, v83
    s_nop 1
    v_add_f32 v80, v80, v81
    v_add_f32 v82, v82, v83
    v_mul_f32 v80, {hex(f2u(1/512))}, v80
    v_mul_f32 v82, {hex(f2u(1/512))}, v82
    v_fma_f32 v82, -v80, v80, v82
    v_max_f32 v82, 0, v82
    v_add_f32 v82, {hex(f2u(1e-5))}, v82
    v_rsq_f32 v{vSt}, v82
    s_nop 0
    v_mul_f32 v{vSt+1}, v80, v{vSt}
    v_sub_f32 v{vSt+1}, 0, v{vSt+1}
    """)
    for i in range(16): a(f"v_mov_b32 v{vCS+i}, 0")
    prof_stamp(a, 0)
    def wreads(c, ks, b):
        slot = (c % 3) * W3_SLOT
        L = []
        for p in range(3):
            for jj in range(2):
                L.append(f"ds_read_b64_tr_b16 {vr(vWf[b]+4*p+2*jj,2)}, v{vWa[p]} offset:{slot + ks*3072 + jj*512}")
        return L
    NCH = 4
    for c in range(NCH):
        n = (3 if c + 1 < NCH else 0) + 4
        if c == 0: n = 3 + 2 + 4
        if c == 0: n = 7 + 2
        a(f"s_waitcnt vmcnt({7 if c + 1 < NCH else 4})\ns_barrier")
        for r in wreads(c, 0, 0): a(r)
        if c + 2 < NCH: wdma(c + 2)
        for ks in range(4):
            b = ks & 1
            nxt = wreads(c, ks + 1, b ^ 1) if ks < 3 else []
            vm = (3 - ks) + (3 if c + 2 < NCH else 0) + (ks if c + 1 < NCH else 0)
            a(f"s_waitcnt vmcnt({vm}) lgkmcnt(0)")
            x = vr(vX + 4*ks, 4)
            for p in range(3):
                a(f"v_mfma_f32_32x32x16_bf16 {vr(vA[p],16)}, {vr(vWf[b]+4*p,4)}, {x}, {vr(vA[p],16)}")
                for r in nxt[2*p:2*p+2]: a(r)
            a(f"v_mfma_f32_32x32x16_bf16 {vr(vCS,16)}, {vr(vWf[b],4)}, {vr(vOne,4)}, {vr(vCS,16)}")
            if c + 1 < NCH: xload(c + 1, ks)
    prof_stamp(a, 1)
    a(f"""s_barrier
    s_mul_i32 s{sT}, s{sW}, 6144
    v_add_u32 v{vT}, s{sT}, v{vL16}
    s_xor_b32 s{sT2}, s{sW}, 4
    s_mul_i32 s{sT2}, s{sT2}, 6144
    v_add_u32 v{vT2}, s{sT2}, v{vL16}
    s_mul_i32 s{sT}, s{sKH}, 3
    s_add_u32 s{sT}, s{sT}, s{sS[0]}
    s_lshl_b32 s{sT}, s{sT}, 7
    s_add_u32 s{sT}, s{sT}, {W3_CS}
    v_lshrrev_b32 v{vT3}, 5, v{vL}
    v_lshl_add_u32 v{vT3}, v{vT3}, 4, s{sT}
    s_nop 4
    s_cmp_eq_u32 s{sTB}, 3
    s_cbranch_scc1 {pfx}_nocs
    s_mov_b32 exec_lo, 1
    s_mov_b32 exec_hi, 1
    """)
    for i in range(4): a(f"ds_write_b128 v{vT3}, {vr(vCS+4*i,4)} offset:{32*i}")
    a("s_mov_b64 exec, -1")
    a.label(f"{pfx}_nocs")
    a(f"s_cmp_eq_u32 s{sKH}, 0\ns_cbranch_scc0 {pfx}_r1")
    for p in range(3):
        a(f"ds_write_b128 v{vT}, {vr(vA[p]+8,4)} offset:{p*2048}\nds_write_b128 v{vT}, {vr(vA[p]+12,4)} offset:{p*2048+1024}")
    a(f"s_branch {pfx}_r2")
    a.label(f"{pfx}_r1")
    for p in range(3):
        a(f"ds_write_b128 v{vT}, {vr(vA[p],4)} offset:{p*2048}\nds_write_b128 v{vT}, {vr(vA[p]+4,4)} offset:{p*2048+1024}")
        for j in range(8): a(f"v_mov_b32 v{vA[p]+j}, v{vA[p]+8+j}")
    a.label(f"{pfx}_r2")
    a("s_waitcnt lgkmcnt(0)\ns_barrier")
    for p in range(3):
        a(f"ds_read_b128 {vr(vA[p]+8,4)}, v{vT2} offset:{p*2048}\nds_read_b128 {vr(vA[p]+12,4)}, v{vT2} offset:{p*2048+1024}")
    CS = 80
    a(f"v_lshrrev_b32 v{vT3}, 5, v{vL}\nv_lshlrev_b32 v{vT3}, 4, v{vT3}\ns_lshl_b32 s{sT2}, s{sKH}, 6\ns_add_u32 s{sT2}, s{sT2}, {W3_CS}")
    for p in range(3):
        a(f"s_lshl_b32 s{sT}, s{sS[p]}, 7\ns_add_u32 s{sT}, s{sT}, s{sT2}\nv_add_u32 v{vT}, s{sT}, v{vT3}")
        a(f"ds_read_b128 {vr(CS+16*p,4)}, v{vT}\nds_read_b128 {vr(CS+16*p+4,4)}, v{vT} offset:32")
        if p < 2:
            a(f"ds_read_b128 {vr(CS+16*p+8,4)}, v{vT} offset:384\nds_read_b128 {vr(CS+16*p+12,4)}, v{vT} offset:416")
        else:
            a(f"ds_read_b128 {vr(12,4)}, v{vT} offset:384\nds_read_b128 {vr(16,4)}, v{vT} offset:416")
    a("s_waitcnt lgkmcnt(0)")
    gelu_consts(a, 120)
    P = lambda r: f"v[{r}:{r+1}]"
    for p in range(3):
        o = CS + 16*p + 8 if p < 2 else 12
        for j in range(0, 8, 2):
            a(f"v_pk_add_f32 {P(vA[p]+j)}, {P(vA[p]+j)}, {P(vA[p]+8+j)}\nv_pk_add_f32 {P(CS+16*p+j)}, {P(CS+16*p+j)}, {P(o+j)}")
        emit_interleaved(a, [ln_pk(vA[p] + 2*i, CS + 16*p + 2*i, vSt) for i in range(4)])
        emit_interleaved(a, [gelu_pk(vA[p] + 2*i, 22 + 2*i, 120) for i in range(4)])
        for i in range(4): a(f"v_cvt_pk_bf16_f32 v{vA[p]+8+i}, v{vA[p]+2*i}, v{vA[p]+2*i+1}")
        a(f"""s_mul_i32 s{sT}, s{sCB}, 6
        s_lshl_b32 s{sT2}, s{sS[p]}, 1
        s_add_u32 s{sT}, s{sT}, s{sT2}
        s_add_u32 s{sT}, s{sT}, s{sKH}
        s_cmp_ge_u32 s{sT}, 86
        s_cbranch_scc1 {pfx}_ns{p}
        s_mul_i32 s{sT2}, s{sTbk}, 86
        s_add_u32 s{sT}, s{sT}, s{sT2}
        s_lshl_b32 s{sT}, s{sT}, 10
        s_add_u32 s{sT}, s{sT}, {hex(WS_H2)}
        buffer_store_dwordx4 {vr(vA[p]+8,4)}, v{vL16}, s[{sWS}:{sWS+3}], s{sT} offen""")
        a.label(f"{pfx}_ns{p}")
    prof_stamp(a, 2); prof_stamp(a, 3)
    prof_end(a, s_id, sW, 8, sWS, vtmp=32)
    a.label(f"{pfx}_exit")
    a("s_endpgm")
    return 126
```

```python
from common import *
import gemm64 as G
from gemm64 import *
from k1 import vr, f2u

def load_ptrs(a, items):
    for i, (k, s) in enumerate(items): a(f"s_load_dwordx2 s[{s}:{s+1}], s[0:1], {KA[k]}")

W2_NS = 4
W2_XCH = W2_NS * 16384
W2_LDS = W2_XCH + 16384
def gen_w2(a, pfx, s_id, publish=False, prio=None, cont=None):
    st = "sc1" if publish else ""
    a.c("==== G0: w2 ====")
    prof_start(a)
    load_ptrs(a, [("ws", 40), ("w2", 42), ("x", 44)])
    setup(a, s_id)
    vXdB = 28; vXres = 64
    sX = 48
    a(f"""
    s_add_u32 s{sT}, s{sWR}, 1                 ; |delta|
    s_lshl_b32 s{sT2}, s{sRB}, 1
    s_add_u32 s{sT2}, s{sT2}, s{sWC}
    s_lshl_b32 s{sT2}, s{sT2}, 5
    v_and_b32 v{vT}, 31, v{vL}
    v_add_u32 v{vT}, s{sT2}, v{vT}             ; row
    v_lshrrev_b32 v{vT2}, 5, v{vL}
    v_lshlrev_b32 v{vT2}, 9, v{vT2}            ; h*512
    """)
    for dst, op in ((vXd, "v_subrev_u32"), (vXdB, "v_add_u32")):
        a(f"""
        {op} v{vT3}, s{sT}, v{vT}               ; source row r
        v_subrev_u32 v29, s{sT2}, v{vT3}
        v_add_u32 v29, 32, v29                  ; +32
        v_lshrrev_b32 v30, 5, v29
        v_lshlrev_b32 v30, 15, v30
        v_and_b32 v29, 31, v29
        v_lshl_add_u32 v30, v29, 4, v30
        v_add_u32 v{dst}, v30, v{vT2}
        v_cmp_gt_u32 vcc, 2048, v{vT3}          ; 0 <= r < 2048 (unsigned)
        v_mov_b32 v29, 0x7ff00000
        s_nop 0
        v_cndmask_b32 v{dst}, v29, v{dst}, vcc
        """)
    sN0 = 56; sRow = 57
    a(f"""
    s_lshl_b32 s{sN0}, s{sCB}, 2
    s_lshl_b32 s{sT}, s{sWC}, 1
    s_add_u32 s{sN0}, s{sN0}, s{sT}
    s_add_u32 s{sN0}, s{sN0}, s{sKH}
    s_lshl_b32 s{sRow}, s{sRB}, 1
    s_add_u32 s{sRow}, s{sRow}, s{sWR}         ; tblock
    v_lshrrev_b32 v{vT}, 3, v{vL}
    v_and_b32 v{vT2}, 7, v{vL}
    v_lshlrev_b32 v{vT2}, 4, v{vT2}
    v_lshl_add_u32 v29, v{vT}, 10, v{vT2}
    s_waitcnt lgkmcnt(0)
    """)
    srd(a, sWS, 40, 41, WS_USED); srd(a, sWm, 42, 43, 512*512*2); srd(a, sX, 44, 45, 2048*512*2)
    a(f"""
    s_lshl_b32 s{sT}, s{sRB}, 6
    s_lshl_b32 s{sT2}, s{sW}, 3
    s_add_u32 s{sT}, s{sT}, s{sT2}
    s_lshl_b32 s{sT}, s{sT}, 10
    s_lshl_b32 s{sT2}, s{sCB}, 7
    s_add_u32 s{sT}, s{sT}, s{sT2}
    s_lshl_b32 s{sT2}, s{sW}, 10
    s_add_u32 m0, s{sT2}, {W2_XCH}
    s_nop 0
    buffer_load_dwordx4 v29, s[{sX}:{sX+3}], s{sT} offen lds
    """)
    seg_setup(a, WS_H1 - 32768, 32, 16)
    a(f"s_mov_b32 s{sSlotD}, 0\ns_mov_b32 s{sSlot}, 0")
    for c in range(3): dma(a, vXd, W2_NS)
    if prio is not None: a(f"s_setprio {prio}")
    for i in range(16): a(f"v_mov_b32 v{vAcc[0]+i}, 0")
    prof_stamp(a, 0)
    loop(a, pfx + "a", 1, vAcc[0], W2_NS, 3, True, xv=vXd)
    loop(a, pfx + "b", 4, vAcc[0], W2_NS, 3, True, xv=vXdB)
    drain(a, 3, vAcc[0], W2_NS)
    prof_stamp(a, 1)
    a(f"""
    v_and_b32 v{vT}, 31, v{vL}
    s_lshl_b32 s{sT}, s{sWR}, 12
    v_lshl_add_u32 v{vT}, v{vT}, 7, s{sT}
    v_lshrrev_b32 v{vT2}, 5, v{vL}
    v_lshl_add_u32 v{vT}, v{vT2}, 3, v{vT}
    s_lshl_b32 s{sT}, s{sWC}, 6
    s_lshl_b32 s{sT2}, s{sKH}, 5
    s_add_u32 s{sT}, s{sT}, s{sT2}
    s_add_u32 s{sT}, s{sT}, {W2_XCH}
    v_add_u32 v{vT}, s{sT}, v{vT}
    ds_read_b64 {vr(vXres,2)}, v{vT}
    ds_read_b64 {vr(vXres+2,2)}, v{vT} offset:16
    s_waitcnt lgkmcnt(0)
    s_barrier
    """)
    reduce_halves(a, pfx, [vAcc[0]], W2_XCH)
    prof_stamp(a, 2)
    acc = vAcc[0]; U = 72
    for i in range(4):
        a(f"v_lshlrev_b32 v{U+2*i}, 16, v{vXres+i}\nv_and_b32 v{U+2*i+1}, 0xffff0000, v{vXres+i}")
    for i in range(8): a(f"v_add_f32 v{acc+i}, v{acc+i}, v{U+i}")
    for i in range(4): a(f"v_cvt_pk_bf16_f32 v{vXf[0]+i}, v{acc+2*i}, v{acc+2*i+1}")
    a(f"""s_lshl_b32 s{sT}, s{sRow}, 5
    s_add_u32 s{sT}, s{sT}, s{sN0}
    s_lshl_b32 s{sT}, s{sT}, 10
    s_add_u32 s{sT}, s{sT}, {hex(WS_X1)}
    buffer_store_dwordx4 {vr(vXf[0],4)}, v{vL16}, s[{sWS}:{sWS+3}], s{sT} offen {st}""")
    for i in range(4):
        a(f"v_lshlrev_b32 v{U+2*i}, 16, v{vXf[0]+i}\nv_and_b32 v{U+2*i+1}, 0xffff0000, v{vXf[0]+i}")
    a(f"v_add_f32 v{U+18}, v{U}, v{U+1}\nv_mul_f32 v{U+20}, v{U}, v{U}\nv_fmac_f32 v{U+20}, v{U+1}, v{U+1}")
    for i in range(2, 8): a(f"v_add_f32 v{U+18}, v{U+18}, v{U+i}\nv_fmac_f32 v{U+20}, v{U+i}, v{U+i}")
    a(f"v_mov_b32 v{U+19}, v{U+18}\nv_mov_b32 v{U+21}, v{U+20}\ns_nop 1")
    a(f"v_permlane32_swap_b32 v{U+18}, v{U+19}\nv_permlane32_swap_b32 v{U+20}, v{U+21}\ns_nop 1")
    a(f"v_add_f32 v{U}, v{U+18}, v{U+19}\nv_add_f32 v{U+1}, v{U+20}, v{U+21}")
    a(f"""v_and_b32 v{vT}, 31, v{vL}
    s_lshl_b32 s{sT}, s{sW}, 8
    v_lshl_add_u32 v{vT}, v{vT}, 3, s{sT}
    s_mov_b64 exec, 0xffffffff
    ds_write_b64 v{vT}, {vr(U,2)}
    s_mov_b64 exec, -1
    s_waitcnt {"vmcnt(0) " if publish else ""}lgkmcnt(0)
    s_barrier
    s_cmp_eq_u32 s{sW}, 0
    s_cbranch_scc0 {pfx}_done
    v_lshrrev_b32 v{vT}, 5, v{vL}
    v_lshlrev_b32 v{vT}, 9, v{vT}
    v_and_b32 v{vT2}, 31, v{vL}
    v_lshl_add_u32 v{vT}, v{vT2}, 3, v{vT}
    ds_read_b64 v[72:73], v{vT}
    ds_read_b64 v[74:75], v{vT} offset:256
    ds_read_b64 v[76:77], v{vT} offset:1024
    ds_read_b64 v[78:79], v{vT} offset:1280
    s_waitcnt lgkmcnt(0)
    """)
    for j in range(2): a(f"v_add_f32 v{72+j}, v{72+j}, v{74+j}\nv_add_f32 v{76+j}, v{76+j}, v{78+j}\nv_add_f32 v{72+j}, v{72+j}, v{76+j}")
    a(f"""
    s_lshl_b32 s{sT}, s{sRB}, 6
    v_add_u32 v{vT}, s{sT}, v{vL}
    v_lshlrev_b32 v{vT2}, 6, v{vT}
    s_lshl_b32 s{sT}, s{sCB}, 3
    s_add_u32 s{sT}, s{sT}, {hex(WS_ST)}
    buffer_store_dwordx2 v[72:73], v{vT2}, s[{sWS}:{sWS+3}], s{sT} offen {st}
    """)
    if publish:
        a(f"""s_waitcnt vmcnt(0)
        s_lshr_b32 s{sT}, s{sRB}, 1
        s_lshl_b32 s{sT}, s{sT}, 7             ; R * 128 bytes
        s_and_b32 s{sT2}, s{sRB}, 1
        s_lshl_b32 s{sT2}, s{sT2}, 3
        s_add_u32 s{sT2}, s{sT2}, s{sCB}
        s_lshl_b32 s{sT2}, s{sT2}, 2
        s_add_u32 s{sT}, s{sT}, s{sT2}
        s_add_u32 s{sT}, s{sT}, {hex(WS_FLAGS)}
        v_mov_b32 v72, 1
        v_mov_b32 v73, 0
        s_mov_b64 exec, 1
        buffer_store_dword v72, v73, s[{sWS}:{sWS+3}], s{sT} offen sc1
        s_mov_b64 exec, -1""")
    a.label(f"{pfx}_done")
    prof_stamp(a, 3)
    prof_end(a, s_id, sW, 8, sWS, vtmp=32)
    if cont:
        a(f"s_barrier\ns_branch {cont}")
    else:
        a("s_endpgm")
    return 96

FIN_NS = 9
FIN_LDS = FIN_NS * 16384
def gen_final(a, pfx, s_id):
    a.c("==== final ====")
    prof_start(a)
    load_ptrs(a, [("ws", 40), ("wo", 42), ("w4", 44), ("out", 46)])
    setup(a, s_id)
    sO = 48; sN0 = 56; sRow = 57
    NS = FIN_NS; D = NS - 1
    a("s_waitcnt lgkmcnt(0)")
    srd(a, sWS, 40, 41, WS_USED); srd(a, sWm, 44, 45, 1376*512*2); srd(a, sO, 46, 47, 2048*512*2)
    vX1 = 64; vG = 68
    seg_setup(a, WS_H2, 86, 44)
    a(f"v_mov_b32 v{vXd}, v{vL16}\ns_mov_b32 s{sSlotD}, 0\ns_mov_b32 s{sSlot}, 0")
    for c in range(D): dma(a, vXd, NS)
    a(f"""
    s_lshl_b32 s{sN0}, s{sCB}, 2
    s_lshl_b32 s{sT}, s{sWC}, 1
    s_add_u32 s{sN0}, s{sN0}, s{sT}
    s_add_u32 s{sN0}, s{sN0}, s{sKH}
    s_lshl_b32 s{sRow}, s{sRB}, 1
    s_add_u32 s{sRow}, s{sRow}, s{sWR}
    """)
    for i in range(32): a(f"v_mov_b32 v{vAcc[0]+i}, 0")
    prof_stamp(a, 0)
    B, A_ = vAcc[0], vAcc[1]
    loop(a, pfx + "a", 22 - D, B, NS, D, True)
    a(f"s_mov_b32 s{sWm}, s42\ns_mov_b32 s{sWm+1}, s43\ns_mov_b32 s{sWm+2}, {512*512*2}")
    seg_setup(a, WS_OF, 32, 16)
    loop(a, pfx + "b", D, B, NS, D, True)
    prof_stamp(a, 1)
    a(f"""
    s_lshl_b32 s{sT}, s{sRow}, 5
    s_add_u32 s{sT}, s{sT}, s{sN0}
    s_lshl_b32 s{sT}, s{sT}, 10
    s_add_u32 s{sT}, s{sT}, {hex(WS_X1)}
    v_and_b32 v{vT}, 31, v{vL}
    v_lshlrev_b32 v{vT}, 2, v{vT}
    s_lshl_b32 s{sT2}, s{sRow}, 7
    s_add_u32 s{sT2}, s{sT2}, {hex(WS_G)}
    """)
    for i in range(8):
        a(f"s_waitcnt vmcnt({2*(7-i) + (2 if i > 0 else 0)})\ns_barrier")
        Ac = chunk_compute(a, A_, NS)
        if i == 0:
            a(f"buffer_load_dwordx4 {vr(vX1,4)}, v{vL16}, s[{sWS}:{sWS+3}], s{sT} offen")
            a(f"buffer_load_dword v{vG}, v{vT}, s[{sWS}:{sWS+3}], s{sT2} offen")
        chunk_mfma(a, Ac, NS)
    prof_stamp(a, 2)
    a("s_barrier")
    reduce_halves(a, pfx, [vAcc[0], vAcc[1]], 0)
    a("s_waitcnt vmcnt(0)")
    g = 72
    a(f"v_sub_f32 v{g}, 1.0, v{vG}")
    U = 76
    for i in range(4): a(f"v_lshlrev_b32 v{U+2*i}, 16, v{vX1+i}\nv_and_b32 v{U+2*i+1}, 0xffff0000, v{vX1+i}")
    for i in range(8): a(f"v_add_f32 v{B+i}, v{B+i}, v{U+i}\nv_mul_f32 v{B+i}, v{B+i}, v{g}\nv_fmac_f32 v{B+i}, v{A_+i}, v{vG}")
    for i in range(4): a(f"v_cvt_pk_bf16_f32 v{U+i}, v{B+2*i}, v{B+2*i+1}")
    a(f"""s_nop 1
    v_permlane32_swap_b32 v{U}, v{U+2}
    v_permlane32_swap_b32 v{U+1}, v{U+3}
    v_and_b32 v{vT}, 31, v{vL}
    v_lshlrev_b32 v{vT}, 10, v{vT}
    v_lshrrev_b32 v{vT2}, 5, v{vL}
    v_lshl_add_u32 v{vT}, v{vT2}, 4, v{vT}
    s_lshl_b32 s{sT}, s{sRow}, 15
    s_lshl_b32 s{sT2}, s{sN0}, 5
    s_add_u32 s{sT}, s{sT}, s{sT2}
    buffer_store_dwordx4 {vr(U,4)}, v{vT}, s[{sO}:{sO+3}], s{sT} offen
    """)
    prof_stamp(a, 3)
    prof_end(a, s_id, sW, 8, sWS, vtmp=32)
    a("s_endpgm")
    return 96
```

```python
import sys, os
from common import *
import k1, attn2, roles64, role_w3, gemm64
MAIN = "gated_mix__softmax_full_mha__mixer_s_mlp__prompt_kernel"
def build(path, variant="seq5", nempty=0):
    a = Asm()
    hdr = open("gated_mix__softmax_full_mha__mixer_s_mlp__prompt.s.ref").read().split("\n")
    for l in hdr:
        if l.startswith("; Override") : break
        a.L.append(l)
    ks = [("k1_kernel", 256, k1.K1_LDS, lambda p: k1.gen_k1(a, p)),
          ("attn_kernel", 256, attn2.ATT_LDS, lambda p: attn2.gen_attn(a, p, 2)),
          ("w2_kernel", 256, roles64.W2_LDS, lambda p: roles64.gen_w2(a, p, 2)),
          ("w3_kernel", 256, role_w3.W3_LDS, lambda p: role_w3.gen_w3(a, p, 2)),
          (MAIN, 256, roles64.FIN_LDS, lambda p: roles64.gen_final(a, p, 2))]
    if variant == "merge3":
        def mid(p):
            import common
            a(f"s_cmp_lt_u32 s2, 256\ns_cbranch_scc1 {p}_att")
            a(f"s_cmp_lt_u32 s2, 512\ns_cbranch_scc1 {p}_w2")
            a("s_sub_u32 s3, s2, 512")
            common.PROF_BASE = 3 * 0x10000
            n3 = role_w3.gen_w3(a, p + "C", 3, merged=True, prio=int(os.environ.get("PRIO3", "2")))
            a.label(f"{p}_w2")
            a("s_sub_u32 s3, s2, 256")
            common.PROF_BASE = 2 * 0x10000
            n2 = roles64.gen_w2(a, p + "B", 3, publish=True, prio=int(os.environ.get("PRIO2", "2")))
            a.label(f"{p}_att")
            common.PROF_BASE = 1 * 0x10000
            n1 = attn2.gen_attn(a, p + "A", 2, prefetch=True)
            return max(n1, n2, n3)
        ks = [ks[0], ("mid_kernel", 768, max(attn2.ATT_LDS, roles64.W2_LDS, role_w3.W3_LDS), mid), ks[4]]
    if variant == "chain3":
        def mid(p):
            import common
            a(f"s_cmp_lt_u32 s2, 256\ns_cbranch_scc0 {p}_att")
            a("s_mov_b32 s3, s2")
            syn = os.environ.get("SYN")
            if syn == "exit": a("s_endpgm")
            if syn == "sleep": a("\n".join(["s_sleep 127"]*4) + "\ns_endpgm")
            if syn and syn.startswith("valu"):
                n = int(syn[4:])
                a(f"s_mov_b32 s10, {n}\nL_syn:\n" + "\n".join(["v_add_f32 v8, v8, v8"]*8) + "\ns_sleep 2\ns_sub_u32 s10, s10, 1\ns_cmp_lg_u32 s10, 0\ns_cbranch_scc1 L_syn\ns_endpgm")
            if syn and syn.startswith("mfma"):
                n = int(syn[4:])
                a(f"s_mov_b32 s10, {n}\nL_syn:\n" + "\n".join(["v_mfma_f32_32x32x16_bf16 v[16:31], v[8:11], v[12:15], v[16:31]"]*4) + "\ns_sleep 4\ns_sub_u32 s10, s10, 1\ns_cmp_lg_u32 s10, 0\ns_cbranch_scc1 L_syn\ns_endpgm")
            if syn and syn.startswith("dsrd"):
                n = int(syn[4:])
                a(f"v_and_b32 v1, 63, v0\nv_lshlrev_b32 v1, 4, v1\ns_mov_b32 s10, {n}\nL_syn:\n" + "\n".join(["ds_read_b64_tr_b16 v[16:17], v1"]*6) + "\ns_waitcnt lgkmcnt(0)\ns_sleep 2\ns_sub_u32 s10, s10, 1\ns_cmp_lg_u32 s10, 0\ns_cbranch_scc1 L_syn\ns_endpgm")
            common.PROF_BASE = 2 * 0x10000
            pr = os.environ.get("PRIOC")
            n2 = roles64.gen_w2(a, p + "B", 3, publish=True, prio=int(pr) if pr else None, cont=p + "C_start")
            a.label(p + "C_start")
            common.PROF_BASE = 3 * 0x10000
            n3 = role_w3.gen_w3(a, p + "C", 3, merged=True)
            a.label(f"{p}_att")
            a("s_sub_u32 s3, s2, 256")
            common.PROF_BASE = 1 * 0x10000
            n1 = attn2.gen_attn(a, p + "A", 3, prefetch=True, setprio0=os.environ.get("PRIOA"))
            return max(n1, n2, n3)
        ks = [ks[0], ("mid_kernel", 512, max(attn2.ATT_LDS, roles64.W2_LDS, role_w3.W3_LDS), mid), ks[4]]
    for e in range(nempty):
        ks.insert(1, ("empty_kernel", 256, 0, None))
    for n, g, lds, _ in ks:
        a.L.append(f"; @launch kernel={n} grid=({g},1,1) block=(512,1,1) lds={lds}")
    a.L.append('.amdgcn_target "amdgcn-amd-amdhsa--gfx950"\n.text')
    descs = ""
    done = set()
    for i, (n, g, lds, f) in enumerate(ks):
        if n in done: continue
        done.add(n)
        if f is None:
            kernel_header(a, n); a("s_endpgm"); descs += kernel_desc(n, 8); continue
        kernel_header(a, n)
        a(f"s_cmp_ge_u32 s2, {g}\ns_cbranch_scc1 L_exit{i}")
        import common
        common.PROF_BASE = (i if variant == "seq5" else [0, 1, 4][i]) * 0x10000
        nv = f(f"K{i}")
        a.label(f"L_exit{i}"); a("s_endpgm")
        descs += kernel_desc(n, nv)
    s = a.text() + '.section .rodata,"a"\n.p2align 6\n' + descs
    open(path, "w").write(s)
if __name__ == "__main__":
    import os
    build(sys.argv[1] if len(sys.argv) > 1 else "all.s", variant=os.environ.get("VARIANT", "seq5"), nempty=int(sys.argv[2]) if len(sys.argv) > 2 else 0)
```

```python
from common import *
import os
ATT_SLOT = 16384
ATT_NS = 5
ATT_XCH = 2 * ATT_SLOT
ATT_LDS = ATT_NS * ATT_SLOT
def vr(b, n=1): return f"v{b}" if n == 1 else f"v[{b}:{b+n-1}]"

def gen_attn(a, pfx, s_id, prof=False, zero_rows=True, setprio=None, prefetch=False, setprio0=None, pf_w4=True):
    sWS = 8
    sW, sHEAD, sT = 12, 13, 14
    sKsrc, sVsrc = 15, 16
    sSlotN, sSlotD = 17, 18
    sC = 19
    sMask = 20
    sTmp = 22
    sQoff, sOoff = 23, 24
    sK0, sV0 = 25, 26
    sKH = 27; sQP = 28; sLw = 29
    vLane16 = 1; vKa = 2; vVa = 3; vKa0 = 4; vVa0 = 5; vIdx = 6; vT0 = 7; vT1 = 8; vT2 = 9; vM = [10, 11]
    vQ = [12, 16]; vK = 20; vV0 = 24; vV1 = [28, 32]
    vS = [36, 52]; vO = [68, 84]; vC = 100
    NV = 116
    S = f"s[{sWS}:{sWS+3}]"
    a.c("==== attention role ====")
    prof_start(a)
    if setprio0: a(f"s_setprio {setprio0}")
    a(f"s_load_dwordx2 s[4:5], s[0:1], {KA['ws']}")
    a(f"""
    v_lshrrev_b32 v{vT0}, 6, v0
    v_and_b32 v{vT1}, 63, v0
    v_readfirstlane_b32 s{sW}, v{vT0}
    v_lshlrev_b32 v{vLane16}, 4, v{vT1}
    s_and_b32 s{sTmp}, s{s_id}, 7
    s_lshr_b32 s{sT}, s{s_id}, 3
    s_and_b32 s{sHEAD}, s{sT}, 3
    s_lshl_b32 s{sTmp}, s{sTmp}, 2
    s_add_u32 s{sHEAD}, s{sHEAD}, s{sTmp}      ; head
    s_lshr_b32 s{sT}, s{sT}, 2                 ; qb (0..7)
    s_and_b32 s{sQP}, s{sW}, 3
    s_lshr_b32 s{sKH}, s{sW}, 2
    s_lshl_b32 s{sT}, s{sT}, 3
    s_lshl_b32 s{sTmp}, s{sQP}, 1
    s_add_u32 s{sT}, s{sT}, s{sTmp}
    s_lshl_b32 s{sTmp}, s{sHEAD}, 16           ; head*64*1024
    s_lshl_b32 s{sQoff}, s{sT}, 10
    s_add_u32 s{sQoff}, s{sQoff}, s{sTmp}
    s_lshl_b32 s{sV0}, s{sKH}, 15              ; khalf*32*1024
    s_add_u32 s{sTmp}, s{sTmp}, s{sV0}
    s_add_u32 s{sK0}, s{sTmp}, {hex(WS_KF)}
    s_add_u32 s{sV0}, s{sTmp}, {hex(WS_VF)}
    s_add_u32 s{sOoff}, s{sT}, s{sKH}
    s_lshl_b32 s{sOoff}, s{sOoff}, 15          ; *32*1024
    s_lshl_b32 s{sTmp}, s{sHEAD}, 10
    s_add_u32 s{sOoff}, s{sOoff}, s{sTmp}
    s_add_u32 s{sOoff}, s{sOoff}, {hex(WS_OF)}
    s_lshl_b32 s{sTmp}, s{sQP}, 10
    s_add_u32 s{sKsrc}, s{sK0}, s{sTmp}
    s_add_u32 s{sVsrc}, s{sV0}, s{sTmp}
    s_lshl_b32 s{sLw}, s{sKH}, 13              ; khalf*8192
    s_add_u32 s{sLw}, s{sLw}, s{sTmp}
    s_mov_b32 s{sMask}, 0xffff
    s_mov_b32 s{sMask+1}, 0xffff
    s_waitcnt lgkmcnt(0)
    """)
    srd(a, sWS, 4, 5, WS_USED)
    a(f"s_load_dwordx2 s[32:33], s[0:1], {KA['w4']}\ns_load_dwordx2 s[34:35], s[0:1], {KA['wo']}")
    a(f"""s_lshr_b32 s{sTmp}, s{s_id}, 3
    s_lshl_b32 s{sTmp}, s{sTmp}, 3
    s_add_u32 s{sTmp}, s{sTmp}, s{sW}
    s_lshl_b32 s36, s{sTmp}, 10
    s_mov_b32 s38, 4096""")
    srd(a, 64, 4, 5, WS_USED)
    pf_late = True
    def dma_chunk(slot_sgpr):
        a(f"""
        s_add_u32 m0, s{slot_sgpr}, s{sLw}
        s_nop 0
        buffer_load_dwordx4 v{vLane16}, {S}, s{sKsrc} offen lds
        s_add_u32 m0, m0, 4096
        s_add_u32 s{sKsrc}, s{sKsrc}, 4096
        buffer_load_dwordx4 v{vLane16}, {S}, s{sVsrc} offen lds
        s_add_u32 s{sVsrc}, s{sVsrc}, 4096
        """)
    a(f"buffer_load_dwordx4 {vr(vQ[0],4)}, v{vLane16}, {S}, s{sQoff} offen")
    a(f"buffer_load_dwordx4 {vr(vQ[1],4)}, v{vLane16}, {S}, s{sQoff} offen offset:1024")
    NPRE = int(os.environ.get("ATT_NPRE", ATT_NS - 1))
    for c in range(NPRE):
        a(f"s_mov_b32 s{sSlotD}, {c*ATT_SLOT}")
        dma_chunk(sSlotD)
    a(f"s_mov_b32 s{sSlotD}, {(ATT_NS-1)*ATT_SLOT}\ns_mov_b32 s{sSlotN}, {ATT_SLOT}\ns_mov_b32 s{sC}, 0")
    a(f"""
    s_lshl_b32 s{sTmp}, s{sKH}, 13
    v_add_u32 v{vKa0}, s{sTmp}, v{vLane16}
    v_mov_b32 v{vKa}, v{vKa0}
    v_lshrrev_b32 v{vT0}, 5, v{vT1}            ; ha
    v_and_b32 v{vT2}, 15, v{vT1}               ; m
    v_lshlrev_b32 v{vT0}, 8, v{vT0}
    v_lshlrev_b32 v{vT2}, 4, v{vT2}
    v_add_u32 v{vVa0}, v{vT0}, v{vT2}
    v_add_u32 v{vVa0}, s{sTmp}, v{vVa0}
    v_add_u32 v{vVa0}, 4096, v{vVa0}
    v_mov_b32 v{vVa}, v{vVa0}
    v_mov_b32 v{vIdx}, 0xdddddddd
    """)
    if zero_rows:
        a(f"""v_and_b32 v{vT0}, 27, v{vT1}
        v_cmp_eq_u32 vcc, 16, v{vT0}
        v_mov_b32 v{vT2}, 0x3f803f80
        s_nop 0
        v_cndmask_b32 v{vT0}, 0, v{vT2}, vcc""")
    else:
        a(f"v_mov_b32 v{vT0}, 0x3f803f80")
    for i in range(4):
        a(f"v_mov_b32 v{vV0+i}, v{vT0}\nv_mov_b32 v{vV1[0]+i}, v{vT0}\nv_mov_b32 v{vV1[1]+i}, v{vT0}")
    for i in range(16): a(f"v_mov_b32 v{vO[0]+i}, 0\nv_mov_b32 v{vO[1]+i}, 0")
    a("s_waitcnt lgkmcnt(0)")
    srd(a, 56, 32, 33, 1376*512*2 if (prefetch and pf_w4) else 0); srd(a, 60, 34, 35, 512*512*2 if prefetch else 0)
    a(f"s_waitcnt vmcnt({2*(NPRE-1)})\ns_barrier")
    for c in range(NPRE, ATT_NS - 1):
        a(f"s_mov_b32 s39, {c*ATT_SLOT}")
        dma_chunk(39)
    a(f"ds_read_b128 {vr(vK,4)}, v{vKa}\ns_waitcnt lgkmcnt(0)")
    a(f"v_mfma_f32_32x32x16_bf16 {vr(vS[0],16)}, {vr(vK,4)}, {vr(vQ[0],4)}, 0")
    a(f"v_mfma_f32_32x32x16_bf16 {vr(vS[1],16)}, {vr(vK,4)}, {vr(vQ[1],4)}, 0")
    a(f"s_mov_b64 exec, s[{sMask}:{sMask+1}]")
    a(f"ds_read_b128 {vr(vV0,4)}, v{vVa}\nds_read_b128 {vr(vV1[0],4)}, v{vVa} offset:512")
    a("s_mov_b64 exec, -1\ns_nop 15")
    s0 = vS[0]
    a(f"v_max3_f32 v{vT0}, v{s0}, v{s0+1}, v{s0+2}")
    for i in range(3, 31, 2): a(f"v_max3_f32 v{vT0}, v{vT0}, v{s0+i}, v{s0+i+1}")
    a(f"v_max_f32 v{vT0}, v{vT0}, v{s0+31}")
    def cross_max(dst):
        a(f"v_mov_b32 v{vT1}, v{vT0}\ns_nop 1\nv_permlane32_swap_b32 v{vT0}, v{vT1}\ns_nop 1\nv_max_f32 v{dst}, v{vT0}, v{vT1}")
    def setC(src):
        for i in range(16): a(f"v_mul_f32 v{vC+i}, -1.0, v{src}")
    cross_max(vM[0])
    a(f"v_mov_b32 v{vM[1]}, v{vM[0]}")
    setC(vM[0])
    for i in range(8, 16): a(f"v_mov_b32 v{vS[1]+i}, 0")
    a(f"v_mfma_f32_32x32x16_bf16 {vr(vS[0],16)}, {vr(vK,4)}, {vr(vQ[0],4)}, {vr(vC,16)}")
    if setprio is not None:
        a(f"s_cmp_eq_u32 s{sKH}, {setprio}\ns_cbranch_scc0 {pfx}_noprio\ns_setprio 1")
        a.label(f"{pfx}_noprio")
    IT = os.environ.get("ATT_ITST")
    if not IT: prof_stamp(a, 0)
    if setprio0: a("s_setprio 0")
    a("s_nop 15")
    a.L.append(".p2align 6")
    a.label(f"{pfx}_loop")
    def ex(b, i): a(f"v_exp_f32 v{vS[b]+i}, v{vS[b]+i}")
    def SM(o, v, s): a(f"v_smfmac_f32_32x32x32_bf16 {vr(vO[o],16)}, {vr(v,4)}, {vr(s,8)}, v{vIdx}")
    def QK(b): a(f"v_mfma_f32_32x32x16_bf16 {vr(vS[b],16)}, {vr(vK,4)}, {vr(vQ[b],4)}, {vr(vC,16)}")
    for p in range(4):
        ex(0, 0); ex(0, 1)
        SM(1, vV1[(p-1) & 1], vS[1] + 8)
        ex(0, 2); ex(0, 3); ex(0, 4)
        QK(1)
        if p == 3:
            a(f"s_waitcnt vmcnt({2*(ATT_NS-3)})")
            if os.environ.get("ATT_ITST"):
                lst = [int(x) for x in os.environ["ATT_ITST"].split(",")]
                pre = os.environ.get("ATT_PRE")
                if pre:
                    for i, c in enumerate(lst):
                        a(f"s_cmp_eq_u32 s{sC}, {c}\ns_cbranch_scc0 {pfx}_isp{i}")
                        prof_stamp(a, 2*i) if i < 2 else None
                        a.label(f"{pfx}_isp{i}")
            a("s_barrier")
            if os.environ.get("ATT_ITST"):
                for i, c in enumerate(lst):
                    a(f"s_cmp_eq_u32 s{sC}, {c}\ns_cbranch_scc0 {pfx}_is{i}")
                    if pre:
                        if i < 2: prof_stamp(a, 2*i+1)
                    else: prof_stamp(a, i)
                    a.label(f"{pfx}_is{i}")
            a(f"v_add_u32 v{vKa}, s{sSlotN}, v{vKa0}")
        a(f"ds_read_b128 {vr(vK,4)}, v{vKa} offset:{((p+1)&3)*1024}")
        for i in range(5, 10): ex(0, i)
        a("s_waitcnt lgkmcnt(2)")
        SM(0, vV0, vS[0])
        if p == 3:
            a(f"""s_add_u32 m0, s{sSlotD}, s{sLw}
            s_nop 0
            buffer_load_dwordx4 v{vLane16}, s[64:67], s{sKsrc} offen lds
            s_add_u32 m0, m0, 4096
            s_add_u32 s{sKsrc}, s{sKsrc}, s38
            buffer_load_dwordx4 v{vLane16}, s[64:67], s{sVsrc} offen lds
            s_add_u32 s{sVsrc}, s{sVsrc}, s38""")
        for i in range(10, 16): ex(0, i)
        ex(1, 0); ex(1, 1)
        a("s_waitcnt lgkmcnt(0)")
        SM(0, vV1[p & 1], vS[0] + 8)
        ex(1, 2); ex(1, 3); ex(1, 4)
        QK(0)
        for i in range(5, 10): ex(1, i)
        SM(1, vV0, vS[1])
        if p == 3:
            a(f"v_add_u32 v{vVa}, s{sSlotN}, v{vVa0}")
        voff = ((p + 1) & 3) * 1024
        a(f"s_mov_b64 exec, s[{sMask}:{sMask+1}]")
        a(f"ds_read_b128 {vr(vV0,4)}, v{vVa} offset:{voff}\nds_read_b128 {vr(vV1[(p+1)&1],4)}, v{vVa} offset:{voff+512}")
        a("s_mov_b64 exec, -1")
        for i in range(10, 16): ex(1, i)
    LASTC = 8 - (ATT_NS - 1)
    a(f"""
    s_add_u32 s{sSlotN}, s{sSlotN}, {ATT_SLOT}
    s_cmp_eq_u32 s{sSlotN}, {ATT_NS*ATT_SLOT}
    s_cselect_b32 s{sSlotN}, 0, s{sSlotN}
    s_add_u32 s{sSlotD}, s{sSlotD}, {ATT_SLOT}
    s_cmp_eq_u32 s{sSlotD}, {ATT_NS*ATT_SLOT}
    s_cselect_b32 s{sSlotD}, 0, s{sSlotD}
    s_add_u32 s{sC}, s{sC}, 1
    s_cmp_eq_u32 s{sC}, {LASTC}
    s_cbranch_scc0 {pfx}_nsw1
    s_mov_b32 s64, s56
    s_mov_b32 s65, s57
    s_mov_b32 s66, s58
    s_mov_b32 s{sKsrc}, s36
    s_add_u32 s{sVsrc}, s36, 0x40000
    s_mov_b32 s38, 0x80000
    {pfx}_nsw1:
    s_cmp_eq_u32 s{sC}, 7
    s_cbranch_scc0 {pfx}_nsw2
    s_mov_b32 s64, s60
    s_mov_b32 s65, s61
    s_mov_b32 s66, s62
    s_mov_b32 s{sKsrc}, s36
    s_add_u32 s{sVsrc}, s36, 0x40000
    {pfx}_nsw2:
    s_cmp_lt_u32 s{sC}, 8
    s_cbranch_scc1 {pfx}_loop
    """)
    if not IT: prof_stamp(a, 1)
    a("s_nop 1")
    SM(1, vV1[1], vS[1] + 8)
    a("s_waitcnt lgkmcnt(0)\ns_nop 15")
    a(f"v_add_f32 v{vT0}, abs(v{vO[0]+8}), abs(v{vO[1]+8})")
    for o in range(2):
        for i in range(8): a(f"v_add_f32 v{vT0}, abs(v{vO[o]+i}), v{vT0}")
    a(f"""v_min_f32 v{vT1}, v{vO[0]+8}, v{vO[1]+8}
    s_mov_b32 s{sTmp}, 0x207
    v_cmp_class_f32 vcc, v{vT0}, s{sTmp}
    s_mov_b32 s{sTmp}, 0x2b800000
    v_cmp_gt_f32 s[30:31], s{sTmp}, v{vT1}
    s_nop 4
    s_or_b64 vcc, vcc, s[30:31]
    s_cmp_lg_u64 vcc, 0
    s_cbranch_scc1 {pfx}_fallback
    """)
    a.label(f"{pfx}_merge")
    if not IT: prof_stamp(a, 2)
    a("s_barrier")
    a(f"""s_mul_i32 s{sTmp}, s{sW}, 2560
    s_add_u32 s{sTmp}, s{sTmp}, {ATT_XCH}
    v_add_u32 v{vKa}, s{sTmp}, v{vLane16}
    s_xor_b32 s{sC}, s{sW}, 4
    s_mul_i32 s{sC}, s{sC}, 2560
    s_add_u32 s{sC}, s{sC}, {ATT_XCH}
    v_add_u32 v{vVa}, s{sC}, v{vLane16}
    v_lshrrev_b32 v{vT2}, 1, v{vLane16}
    v_add_u32 v{vKa0}, s{sTmp}, v{vT2}
    v_add_u32 v{vVa0}, s{sC}, v{vT2}
    s_cmp_eq_u32 s{sKH}, 0
    s_cbranch_scc0 {pfx}_m1
    """)
    def merge(keep, give):
        a(f"v_mov_b32 v{vO[give]+9}, v{vM[give]}")
        a(f"ds_write_b128 v{vKa}, {vr(vO[give],4)}\nds_write_b128 v{vKa}, {vr(vO[give]+4,4)} offset:1024\nds_write_b64 v{vKa0}, {vr(vO[give]+8,2)} offset:2048")
        a("s_waitcnt lgkmcnt(0)\ns_barrier")
        g = vO[give]
        a(f"ds_read_b128 {vr(g,4)}, v{vVa}\nds_read_b128 {vr(g+4,4)}, v{vVa} offset:1024\nds_read_b64 {vr(g+8,2)}, v{vVa0} offset:2048")
        a("s_waitcnt lgkmcnt(0)")
        k = vO[keep]
        a(f"""v_max_f32 v{vT0}, v{vM[keep]}, v{g+9}
        v_sub_f32 v{vT1}, v{vM[keep]}, v{vT0}
        v_sub_f32 v{vT2}, v{g+9}, v{vT0}
        v_exp_f32 v{vT1}, v{vT1}
        v_exp_f32 v{vT2}, v{vT2}
        s_nop 0
        v_mul_f32 v{k+8}, v{k+8}, v{vT1}
        v_fmac_f32 v{k+8}, v{g+8}, v{vT2}
        v_rcp_f32 v{vT0}, v{k+8}
        s_nop 0
        v_mul_f32 v{vT1}, v{vT1}, v{vT0}
        v_mul_f32 v{vT2}, v{vT2}, v{vT0}""")
        for i in range(8): a(f"v_mul_f32 v{k+i}, v{k+i}, v{vT1}\nv_fmac_f32 v{k+i}, v{g+i}, v{vT2}")
        for i in range(4): a(f"v_cvt_pk_bf16_f32 v{vK+i}, v{k+2*i}, v{k+2*i+1}")
        a(f"s_branch {pfx}_store")
    merge(0, 1)
    a.label(f"{pfx}_m1")
    merge(1, 0)
    a.label(f"{pfx}_store")
    a(f"buffer_store_dwordx4 {vr(vK,4)}, v{vLane16}, {S}, s{sOoff} offen")
    if not IT: prof_stamp(a, 3)
    prof_end(a, s_id, sW, 8, sWS, vtmp=36)
    a("s_endpgm")
    a.label(f"{pfx}_fallback")
    a(f"s_lshl_b32 s{sTmp}, s{sKH}, 13\nv_subrev_u32 v{vVa}, s{sTmp}, v{vVa0}\nv_subrev_u32 v{vVa}, 4096, v{vVa}")
    for t in range(2):
        a(f"v_mov_b32 v{vT0}, 0xff800000\ns_mov_b32 s{sC}, 0\ns_mov_b32 s{sKsrc}, s{sK0}")
        a.label(f"{pfx}_fb1_{t}")
        a(f"buffer_load_dwordx4 {vr(vK,4)}, v{vLane16}, {S}, s{sKsrc} offen\ns_waitcnt vmcnt(0)")
        a(f"v_mfma_f32_32x32x16_bf16 {vr(vS[0],16)}, {vr(vK,4)}, {vr(vQ[t],4)}, 0\ns_nop 15")
        for i in range(0, 16, 2): a(f"v_max3_f32 v{vT0}, v{vT0}, v{s0+i}, v{s0+i+1}")
        a(f"s_add_u32 s{sKsrc}, s{sKsrc}, 1024\ns_add_u32 s{sC}, s{sC}, 1\ns_cmp_lt_u32 s{sC}, 32\ns_cbranch_scc1 {pfx}_fb1_{t}")
        cross_max(vM[t])
        setC(vM[t])
        for i in range(16): a(f"v_mov_b32 v{vO[t]+i}, 0")
        a(f"s_mov_b32 s{sC}, 0\ns_mov_b32 s{sKsrc}, s{sK0}\ns_mov_b32 s{sVsrc}, s{sV0}")
        a.label(f"{pfx}_fb2_{t}")
        a(f"buffer_load_dwordx4 {vr(vK,4)}, v{vLane16}, {S}, s{sKsrc} offen")
        a(f"s_mov_b64 exec, s[{sMask}:{sMask+1}]")
        a(f"buffer_load_dwordx4 {vr(vV0,4)}, v{vVa}, {S}, s{sVsrc} offen")
        a(f"buffer_load_dwordx4 {vr(vV1[0],4)}, v{vVa}, {S}, s{sVsrc} offen offset:512")
        a("s_mov_b64 exec, -1\ns_waitcnt vmcnt(0)")
        a(f"v_mfma_f32_32x32x16_bf16 {vr(vS[0],16)}, {vr(vK,4)}, {vr(vQ[t],4)}, {vr(vC,16)}\ns_nop 15")
        for i in range(16): ex(0, i)
        a("s_nop 3")
        SM(t, vV0, vS[0]); SM(t, vV1[0], vS[0] + 8)
        a(f"s_add_u32 s{sKsrc}, s{sKsrc}, 1024\ns_add_u32 s{sVsrc}, s{sVsrc}, 1024\ns_add_u32 s{sC}, s{sC}, 1\ns_cmp_lt_u32 s{sC}, 32\ns_cbranch_scc1 {pfx}_fb2_{t}")
    a(f"s_nop 15\ns_branch {pfx}_merge")
    return NV
```

```python
from common import *
from k1 import vr, f2u, gelu_pk, gelu_consts, ln_pk, emit_interleaved
CH_LDS = 81920
sWS = 8; sWm = 12; sX = 48
sW, sWR, sWC, sRB, sCB, sC, sT, sT2 = 16, 17, 18, 19, 20, 21, 22, 23
sSlot, sSlotD, sKs, sXb, sWb, sKmax, sLd, sRow, sN0 = 24, 25, 26, 27, 28, 29, 30, 31, 32
vL = 1; vL16 = 2; vWd = 3; vXa0 = 4; vWa0 = 5; vXa = 6; vWa = 7; vT = 8; vT2 = 9; vT3 = 10
P = lambda r: f"v[{r}:{r+1}]"

def wait_flags(a, pfx, s_off, n):
    a(f"""s_cmp_eq_u32 s{sW}, 0
    s_cbranch_scc0 {pfx}_wb
    v_min_u32 v{vT}, {n-1}, v{vL}
    v_lshlrev_b32 v{vT}, 2, v{vT}""")
    a.label(f"{pfx}_poll")
    a(f"""buffer_load_dword v{vT2}, v{vT}, s[{sWS}:{sWS+3}], s{s_off} offen sc1
    s_waitcnt vmcnt(0)
    v_cmp_ne_u32 vcc, 1, v{vT2}
    s_nop 4
    s_cmp_eq_u64 vcc, 0
    s_cbranch_scc1 {pfx}_wb
    s_sleep 4
    s_branch {pfx}_poll""")
    a.label(f"{pfx}_wb")
    a("s_barrier")
def set_flag(a, s_off):
    a(f"""v_mov_b32 v{vT}, 1
    v_mov_b32 v{vT2}, 0
    s_mov_b64 exec, 1
    buffer_store_dword v{vT}, v{vT2}, s[{sWS}:{sWS+3}], s{s_off} offen sc1
    s_mov_b64 exec, -1""")

vXf = 12; vWf = 28; vAcc = 44
def t64_setup(a):
    a(f"""
    s_lshr_b32 s{sWR}, s{sW}, 1
    s_and_b32 s{sWC}, s{sW}, 1
    s_lshl_b32 s{sLd}, s{sW}, 11
    v_lshrrev_b32 v{vT}, 3, v{vL}
    v_bfe_u32 v{vT2}, v{vL}, 4, 1
    v_lshlrev_b32 v{vT2}, 2, v{vT2}
    v_and_b32 v{vT3}, 7, v{vL}
    v_xor_b32 v{vT2}, v{vT2}, v{vT3}
    v_lshlrev_b32 v{vT2}, 4, v{vT2}
    v_lshl_add_u32 v{vWd}, v{vT}, 10, v{vT2}
    s_lshl_b32 s{sT}, s{sWR}, 10
    v_add_u32 v{vXa0}, s{sT}, v{vL16}
    v_lshrrev_b32 v{vT}, 5, v{vL}
    v_lshlrev_b32 v{vT}, 9, v{vT}
    v_bfe_u32 v{vT2}, v{vL}, 2, 2
    v_lshl_add_u32 v{vT}, v{vT2}, 7, v{vT}
    v_lshrrev_b32 v{vT2}, 1, v{vT2}
    v_xor_b32 v{vT2}, s{sWC}, v{vT2}
    v_lshl_add_u32 v{vT}, v{vT2}, 6, v{vT}
    v_bfe_u32 v{vT2}, v{vL}, 4, 1
    v_lshl_add_u32 v{vT}, v{vT2}, 5, v{vT}
    v_and_b32 v{vT2}, 3, v{vL}
    v_lshl_add_u32 v{vT}, v{vT2}, 3, v{vT}
    v_add_u32 v{vWa0}, 8192, v{vT}
    """)
def t64_tile(a, s_id):
    a(f"""
    s_and_b32 s{sT}, s{s_id}, 7
    s_lshr_b32 s{sT2}, s{s_id}, 3
    s_and_b32 s{sRB}, s{sT2}, 3
    s_lshl_b32 s{sT}, s{sT}, 2
    s_add_u32 s{sRB}, s{sRB}, s{sT}           ; rb 0..31
    s_lshr_b32 s{sCB}, s{sT2}, 2              ; cb 0..7
    s_lshl_b32 s{sRow}, s{sRB}, 1
    s_add_u32 s{sRow}, s{sRow}, s{sWR}
    s_lshl_b32 s{sN0}, s{sCB}, 2
    s_lshl_b32 s{sT}, s{sWC}, 1
    s_add_u32 s{sN0}, s{sN0}, s{sT}
    """)
def t64_seg(a, xbase, xks):
    a(f"""
    s_mov_b32 s{sKs}, s{sW}
    s_lshl_b32 s{sT}, s{sRB}, 1
    s_mul_i32 s{sXb}, s{sT}, {xks*1024}
    s_add_u32 s{sXb}, s{sXb}, {hex(xbase)}
    s_lshl_b32 s{sWb}, s{sCB}, 7
    s_mov_b32 s{sKmax}, {xks-1}
    """)
def t64_dma(a, xv, xks, nslots, xf=""):
    a(f"""
    s_min_u32 s{sT}, s{sKs}, s{sKmax}
    s_lshl_b32 s{sT}, s{sT}, 10
    s_add_u32 s{sT}, s{sT}, s{sXb}
    s_add_u32 m0, s{sSlotD}, s{sLd}
    s_lshl_b32 s{sT2}, s{sKs}, 14
    buffer_load_dwordx4 v{xv}, s[{sWS}:{sWS+3}], s{sT} offen {xf} lds
    s_add_u32 m0, m0, 1024
    s_add_u32 s{sT}, s{sT}, {xks*1024}
    buffer_load_dwordx4 v{xv}, s[{sWS}:{sWS+3}], s{sT} offen {xf} lds
    s_add_u32 m0, m0, 7168
    s_add_u32 s{sT2}, s{sT2}, s{sWb}
    buffer_load_dwordx4 v{vWd}, s[{sWm}:{sWm+3}], s{sT2} offen lds
    s_add_u32 m0, m0, 1024
    s_add_u32 s{sT2}, s{sT2}, 8192
    buffer_load_dwordx4 v{vWd}, s[{sWm}:{sWm+3}], s{sT2} offen lds
    s_add_u32 s{sKs}, s{sKs}, 4
    s_add_u32 s{sSlotD}, s{sSlotD}, 16384
    s_cmp_eq_u32 s{sSlotD}, {nslots*16384}
    s_cselect_b32 s{sSlotD}, 0, s{sSlotD}
    """)
def t64_reads(a):
    a(f"v_add_u32 v{vXa}, s{sSlot}, v{vXa0}\nv_add_u32 v{vWa}, s{sSlot}, v{vWa0}")
    for ks in range(4):
        a(f"ds_read_b128 {vr(vXf+4*ks,4)}, v{vXa} offset:{ks*2048}")
        a(f"ds_read_b64_tr_b16 {vr(vWf+4*ks,2)}, v{vWa} offset:{ks*2048}\nds_read_b64_tr_b16 {vr(vWf+4*ks+2,2)}, v{vWa} offset:{ks*2048+1024}")
def t64_mfma(a, nslots, first=False, nks=4):
    A = vr(vAcc, 16)
    for ks in range(4):
        a(f"s_waitcnt lgkmcnt({9-3*ks})")
        if ks < nks:
            a(f"v_mfma_f32_32x32x16_bf16 {A}, {vr(vWf+4*ks,4)}, {vr(vXf+4*ks,4)}, {'0' if first and ks == 0 else A}")
        if ks == 0:
            a(f"s_add_u32 s{sSlot}, s{sSlot}, 16384\ns_cmp_eq_u32 s{sSlot}, {nslots*16384}\ns_cselect_b32 s{sSlot}, 0, s{sSlot}")
def t64_chunk(a, vm, nslots, issue=None, first=False, nks=4):
    a(f"s_waitcnt vmcnt({vm})\ns_barrier")
    t64_reads(a)
    if issue: issue()
    t64_mfma(a, nslots, first, nks)

def gen_g0(a, pfx, s_id):
    NS = 4; XT = NS * 16384
    a.c("==== G0 ====")
    prof_start(a)
    t64_tile(a, s_id)
    vXd = [60, 61, 62, 63]
    a(f"v_and_b32 v{vT}, 31, v{vL}\nv_lshrrev_b32 v{vT2}, 5, v{vL}\nv_lshlrev_b32 v{vT2}, 9, v{vT2}")
    for i, d in enumerate((1, -1, 2, -2)):
        r = vXd[i]
        a(f"""v_add_u32 v{vT3}, {32 - d}, v{vT}
        v_and_b32 v{r}, 31, v{vT3}
        v_lshl_add_u32 v{r}, v{r}, 4, v{vT2}
        v_lshrrev_b32 v{vT3}, 5, v{vT3}
        v_lshl_add_u32 v{r}, v{vT3}, 15, v{r}""")
    a(f"""
    v_lshrrev_b32 v{vT}, 3, v{vL}
    v_and_b32 v{vT2}, 7, v{vL}
    v_lshlrev_b32 v{vT2}, 4, v{vT2}
    v_lshl_add_u32 v{vT3}, v{vT}, 10, v{vT2}
    s_lshl_b32 s{sT}, s{sRB}, 6
    s_lshl_b32 s{sT2}, s{sW}, 4
    s_add_u32 s{sT}, s{sT}, s{sT2}
    s_lshl_b32 s{sT}, s{sT}, 10
    s_lshl_b32 s{sT2}, s{sCB}, 7
    s_add_u32 s{sT}, s{sT}, s{sT2}
    s_lshl_b32 s{sT2}, s{sW}, 11
    s_add_u32 m0, s{sT2}, {XT}
    s_mov_b32 s{sWm}, s42
    s_mov_b32 s{sWm+1}, s43
    s_mov_b32 s{sWm+2}, {512*512*2}
    buffer_load_dwordx4 v{vT3}, s[{sX}:{sX+3}], s{sT} offen lds
    s_add_u32 m0, m0, 1024
    s_add_u32 s{sT}, s{sT}, 8192
    buffer_load_dwordx4 v{vT3}, s[{sX}:{sX+3}], s{sT} offen lds
    """)
    t64_seg(a, WS_H1 - 32768, 32)
    a(f"s_mov_b32 s{sSlotD}, 0\ns_mov_b32 s{sSlot}, 0")
    for c in range(3): t64_dma(a, vXd[c >> 1], 32, NS)
    prof_stamp(a, 0)
    for c in range(8):
        vm = 4 * min(2, 7 - c)
        iss = (lambda cc=c + 3: t64_dma(a, vXd[cc >> 1], 32, NS)) if c + 3 < 8 else None
        t64_chunk(a, vm, NS, iss, first=(c == 0))
    prof_stamp(a, 1)
    vR = 12; U = 20
    a(f"""
    v_and_b32 v{vT}, 31, v{vL}
    s_lshl_b32 s{sT}, s{sWR}, 12
    v_lshl_add_u32 v{vT}, v{vT}, 7, s{sT}
    v_lshrrev_b32 v{vT2}, 5, v{vL}
    v_lshl_add_u32 v{vT}, v{vT2}, 3, v{vT}
    s_lshl_b32 s{sT}, s{sWC}, 6
    s_add_u32 s{sT}, s{sT}, {XT}
    v_add_u32 v{vT}, s{sT}, v{vT}""")
    for i in range(4): a(f"ds_read_b64 {vr(vR+2*i,2)}, v{vT} offset:{16*i}")
    a("s_nop 4\ns_waitcnt lgkmcnt(0)")
    for i in range(8): a(f"v_lshlrev_b32 v{U+2*i}, 16, v{vR+i}\nv_and_b32 v{U+2*i+1}, 0xffff0000, v{vR+i}")
    for i in range(0, 16, 2): a(f"v_pk_add_f32 {P(vAcc+i)}, {P(vAcc+i)}, {P(U+i)}")
    for i in range(8): a(f"v_cvt_pk_bf16_f32 v{vR+i}, v{vAcc+2*i}, v{vAcc+2*i+1}")
    a(f"""s_lshl_b32 s{sT}, s{sRow}, 5
    s_add_u32 s{sT}, s{sT}, s{sN0}
    s_lshl_b32 s{sT}, s{sT}, 10
    s_add_u32 s{sT}, s{sT}, {hex(WS_X1)}
    buffer_store_dwordx4 {vr(vR,4)}, v{vL16}, s[{sWS}:{sWS+3}], s{sT} offen sc1
    buffer_store_dwordx4 {vr(vR+4,4)}, v{vL16}, s[{sWS}:{sWS+3}], s{sT} offen offset:1024 sc1""")
    for i in range(8): a(f"v_lshlrev_b32 v{U+2*i}, 16, v{vR+i}\nv_and_b32 v{U+2*i+1}, 0xffff0000, v{vR+i}")
    a(f"v_pk_add_f32 {P(40)}, {P(U)}, {P(U+2)}\nv_pk_mul_f32 {P(42)}, {P(U)}, {P(U)}\nv_pk_fma_f32 {P(42)}, {P(U+2)}, {P(U+2)}, {P(42)}")
    for i in range(4, 16, 2): a(f"v_pk_add_f32 {P(40)}, {P(40)}, {P(U+i)}\nv_pk_fma_f32 {P(42)}, {P(U+i)}, {P(U+i)}, {P(42)}")
    a(f"""v_add_f32 v40, v40, v41
    v_add_f32 v42, v42, v43
    v_and_b32 v{vT}, 31, v{vL}
    s_lshl_b32 s{sT}, s{sW}, 9
    v_lshrrev_b32 v{vT2}, 5, v{vL}
    v_lshl_add_u32 v{vT}, v{vT}, 3, s{sT}
    v_mov_b32 v41, v42
    v_lshl_add_u32 v{vT}, v{vT2}, 8, v{vT}
    s_barrier
    ds_write_b64 v{vT}, {P(40)}
    s_waitcnt vmcnt(0) lgkmcnt(0)
    s_barrier
    s_lshr_b32 s{sT}, s{sRB}, 1
    s_lshl_b32 s{sT}, s{sT}, 7
    s_and_b32 s{sT2}, s{sRB}, 1
    s_lshl_b32 s{sT2}, s{sT2}, 3
    s_add_u32 s{sT2}, s{sT2}, s{sCB}
    s_lshl_b32 s{sT2}, s{sT2}, 2
    s_add_u32 s33, s{sT}, s{sT2}
    s_add_u32 s33, s33, {hex(WS_FLAGS)}
    s_cmp_eq_u32 s{sW}, 0
    s_cbranch_scc0 {pfx}_done
    v_lshrrev_b32 v{vT}, 5, v{vL}
    v_lshlrev_b32 v{vT}, 10, v{vT}
    v_and_b32 v{vT2}, 31, v{vL}
    v_lshl_add_u32 v{vT}, v{vT2}, 3, v{vT}
    ds_read_b64 v[20:21], v{vT}
    ds_read_b64 v[22:23], v{vT} offset:256
    ds_read_b64 v[24:25], v{vT} offset:512
    ds_read_b64 v[26:27], v{vT} offset:768
    s_lshl_b32 s{sT}, s{sRB}, 6
    v_add_u32 v{vT}, s{sT}, v{vL}
    v_lshlrev_b32 v{vT2}, 6, v{vT}
    s_lshl_b32 s{sT}, s{sCB}, 3
    s_add_u32 s{sT}, s{sT}, {hex(WS_ST)}
    s_waitcnt lgkmcnt(0)
    v_pk_add_f32 v[20:21], v[20:21], v[22:23]
    v_pk_add_f32 v[24:25], v[24:25], v[26:27]
    v_pk_add_f32 v[20:21], v[20:21], v[24:25]
    buffer_store_dwordx2 v[20:21], v{vT2}, s[{sWS}:{sWS+3}], s{sT} offen sc1
    s_waitcnt vmcnt(0)""")
    set_flag(a, 33)
    a.label(f"{pfx}_done")
    prof_stamp(a, 2); prof_stamp(a, 3)
    prof_end(a, s_id, sW, 8, sWS, vtmp=64)

G2_SLOT = 12288; G2_NS = 5; G2_CS = G2_NS * G2_SLOT
def gen_g2(a, pfx, s_id):
    sS = [34, 35, 36]; sTbk = 37; sXs = 38; sR2 = 39; sC2b = 40
    vWa = [4, 5, 6]; vSt = 124
    vX = 12
    vA = [44, 60, 76]; vCS = 92; vWf = [108, 108]; vOne = 120
    vW = [108, 96]
    a.c("==== G2 ====")
    prof_start(a)
    a(f"""
    s_and_b32 s{sT}, s{s_id}, 7
    s_lshr_b32 s{sT2}, s{s_id}, 3
    s_lshr_b32 s{sR2}, s{sT}, 1
    s_lshl_b32 s{sR2}, s{sR2}, 2
    s_and_b32 s{sC2b}, s{sT2}, 3
    s_add_u32 s{sR2}, s{sR2}, s{sC2b}           ; rb 0..15
    s_and_b32 s{sC2b}, s{sT}, 1
    s_lshl_b32 s{sC2b}, s{sC2b}, 3
    s_lshr_b32 s{sT2}, s{sT2}, 2
    s_add_u32 s{sC2b}, s{sC2b}, s{sT2}          ; cb 0..15
    s_cmp_ge_u32 s{sC2b}, 15
    s_cbranch_scc1 {pfx}_end
    s_lshl_b32 s{sTbk}, s{sR2}, 2
    s_add_u32 s{sTbk}, s{sTbk}, s{sW}           ; t-block
    s_mov_b32 s{sWm}, s44
    s_mov_b32 s{sWm+1}, s45
    s_mov_b32 s{sWm+2}, {512*1376*2}
    s_mul_i32 s{sLd}, s{sW}, 3072
    s_mul_i32 s{sWb}, s{sW}, {16*2752}
    s_mul_i32 s{sT}, s{sC2b}, 192
    s_add_u32 s{sWb}, s{sWb}, s{sT}
    v_lshrrev_b32 v{vT}, 2, v{vL}
    v_mul_u32_u24 v{vT}, 2752, v{vT}
    v_and_b32 v{vT2}, 3, v{vL}
    v_lshl_add_u32 v{vWd}, v{vT2}, 4, v{vT}
    s_lshl_b32 s{sXs}, s{sTbk}, 15
    s_add_u32 s{sXs}, s{sXs}, {hex(WS_X1)}
    """)
    def wdma(c):
        slot = (c % G2_NS) * G2_SLOT
        a(f"s_add_u32 m0, s{sLd}, {slot}\ns_add_u32 s{sT}, s{sWb}, {c*4*16*2752}")
        for j in range(3):
            a(f"buffer_load_dwordx4 v{vWd}, s[{sWm}:{sWm+3}], s{sT} offen lds")
            if j < 2: a(f"s_add_u32 m0, m0, 1024\ns_add_u32 s{sT}, s{sT}, 64")
    D = G2_NS - 1
    for c in range(D): wdma(c)
    for p in range(3):
        a(f"""s_add_u32 s{sS[p]}, s{sW}, {p}
        s_cmp_ge_u32 s{sS[p]}, 3
        s_cselect_b32 s{sT}, 3, 0
        s_sub_u32 s{sS[p]}, s{sS[p]}, s{sT}
        s_cmp_ge_u32 s{sS[p]}, 3
        s_cselect_b32 s{sT}, 3, 0
        s_sub_u32 s{sS[p]}, s{sS[p]}, s{sT}""")
    a(f"""
    v_lshrrev_b32 v{vT}, 5, v{vL}
    v_lshlrev_b32 v{vT}, 8, v{vT}
    v_bfe_u32 v{vT2}, v{vL}, 2, 2
    v_lshl_add_u32 v{vT}, v{vT2}, 6, v{vT}
    v_bfe_u32 v{vT2}, v{vL}, 4, 1
    v_lshl_add_u32 v{vT}, v{vT2}, 5, v{vT}
    v_and_b32 v{vT2}, 3, v{vL}
    v_lshl_add_u32 v{vT}, v{vT2}, 3, v{vT}
    """)
    for p in range(3): a(f"s_lshl_b32 s{sT}, s{sS[p]}, 10\nv_add_u32 v{vWa[p]}, s{sT}, v{vT}")
    for i in range(4): a(f"v_mov_b32 v{vOne+i}, 0x3f803f80")
    a(f"s_lshl_b32 s{sT2}, s{sR2}, 7\ns_add_u32 s41, s{sT2}, {hex(WS_FLAGS)}")
    wait_flags(a, pfx + "f", 41, 16)
    a(f"""
    v_and_b32 v{vT}, 31, v{vL}
    v_lshlrev_b32 v{vT}, 6, v{vT}
    v_lshrrev_b32 v{vT2}, 5, v{vL}
    v_lshl_add_u32 v{vT}, v{vT2}, 5, v{vT}     ; t*64 + h*32
    s_lshl_b32 s{sT}, s{sTbk}, 11
    s_add_u32 s{sT}, s{sT}, {hex(WS_ST)}
    buffer_load_dwordx4 v[92:95], v{vT}, s[{sWS}:{sWS+3}], s{sT} offen sc1
    buffer_load_dwordx4 v[96:99], v{vT}, s[{sWS}:{sWS+3}], s{sT} offen offset:16 sc1
    """)
    def xload(k):
        a(f"s_add_u32 s{sT}, s{sXs}, {k*1024}\nbuffer_load_dwordx4 {vr(vX+4*(k&7),4)}, v{vL16}, s[{sWS}:{sWS+3}], s{sT} offen sc1")
    for k in range(8): xload(k)
    a(f"""s_waitcnt vmcnt(8)
    v_pk_add_f32 v[92:93], v[92:93], v[94:95]
    v_pk_add_f32 v[96:97], v[96:97], v[98:99]
    v_pk_add_f32 v[92:93], v[92:93], v[96:97]
    s_nop 0
    v_mov_b32 v94, v92
    v_mov_b32 v95, v93
    s_nop 1
    v_permlane32_swap_b32 v92, v94
    v_permlane32_swap_b32 v93, v95
    s_nop 1
    v_add_f32 v92, v92, v94
    v_add_f32 v93, v93, v95
    v_mul_f32 v92, {hex(f2u(1/512))}, v92
    v_mul_f32 v93, {hex(f2u(1/512))}, v93
    v_fma_f32 v93, -v92, v92, v93
    v_max_f32 v93, 0, v93
    v_add_f32 v93, {hex(f2u(1e-5))}, v93
    v_rsq_f32 v{vSt}, v93
    s_nop 0
    v_mul_f32 v{vSt+1}, v92, v{vSt}
    v_sub_f32 v{vSt+1}, 0, v{vSt+1}
    """)
    prof_stamp(a, 0)
    WB = [108, 96]
    vCS2 = 124 - 16 - 16
    def wreads(c, ks, p, dst):
        slot = (c % G2_NS) * G2_SLOT
        return [f"ds_read_b64_tr_b16 {vr(dst+4*p+2*jj,2)}, v{vWa[p]} offset:{slot + ks*3072 + jj*512}" for jj in range(2)]
    NCH = 8
    W = 108
    for c in range(NCH):
        if c == 0:
            pass
        def younger_than_W(c):
            seq = [f"W{i}" for i in range(D) for _ in range(3)] + ["ST", "ST"] + [f"X{k}" for k in range(8)]
            for it in range(c):
                if it + D < NCH: seq += [f"W{it+D}"] * 3
                for k in range(4*it + 8, 4*it + 12):
                    if k < 32: seq.append(f"X{k}")
            last = max(i for i, x in enumerate(seq) if x == f"W{c}")
            return len(seq) - 1 - last
        a(f"s_waitcnt vmcnt({min(63, younger_than_W(c))})\ns_barrier")
        for p in range(3):
            for r in wreads(c, 0, p, W): a(r)
        if c + D < NCH: wdma(c + D)
        for ks in range(4):
            k = 4*c + ks
            seq = [f"W{i}" for i in range(D) for _ in range(3)] + ["ST", "ST"] + [f"X{kk}" for kk in range(8)]
            for it in range(c + 1):
                if it + D < NCH: seq += [f"W{it+D}"] * 3
                for kk in range(4*it + 8, 4*it + 12):
                    if kk < 32 and (it < c or kk - 8 < k): seq.append(f"X{kk}")
            last = max(i for i, x in enumerate(seq) if x == f"X{k}")
            vm = len(seq) - 1 - last
            a(f"s_waitcnt vmcnt({min(63, vm)}) lgkmcnt(4)")
            x = vr(vX + 4*(k & 7), 4)
            first = (k == 0)
            for p in range(3):
                if p: a(f"s_waitcnt lgkmcnt({4 if ks < 3 else 4 - 2*p})")
                a(f"v_mfma_f32_32x32x16_bf16 {vr(vA[p],16)}, {vr(W+4*p,4)}, {x}, {'0' if first else vr(vA[p],16)}")
                if p == 0: a(f"v_mfma_f32_32x32x16_bf16 {vr(vCS,16)}, {vr(W,4)}, {vr(vOne,4)}, {'0' if first else vr(vCS,16)}")
                if ks < 3:
                    for r in wreads(c, ks + 1, p, W): a(r)
            if k + 8 < 32: xload(k + 8)
    prof_stamp(a, 1)
    a(f"""s_lshl_b32 s{sT}, s{sS[0]}, 7
    s_add_u32 s{sT}, s{sT}, {G2_CS}
    v_lshrrev_b32 v{vT3}, 5, v{vL}
    v_lshl_add_u32 v{vT}, v{vT3}, 4, s{sT}
    s_nop 7
    s_nop 1
    s_cmp_eq_u32 s{sW}, 3
    s_cbranch_scc1 {pfx}_nocs
    s_mov_b32 exec_lo, 1
    s_mov_b32 exec_hi, 1
    """)
    for i in range(4): a(f"ds_write_b128 v{vT}, {vr(vCS+4*i,4)} offset:{32*i}")
    a("s_mov_b64 exec, -1")
    a.label(f"{pfx}_nocs")
    a("s_waitcnt lgkmcnt(0)\ns_barrier")
    gelu_consts(a, 118)
    a(f"v_lshlrev_b32 v{vT3}, 4, v{vT3}")
    for p in range(3):
        a(f"s_lshl_b32 s{sT}, s{sS[p]}, 7\ns_add_u32 s{sT}, s{sT}, {G2_CS}\nv_add_u32 v{vT}, s{sT}, v{vT3}")
        for i in range(4): a(f"ds_read_b128 {vr(vCS+4*i,4)}, v{vT} offset:{32*i}")
        a("s_waitcnt lgkmcnt(0)")
        emit_interleaved(a, [ln_pk(vA[p] + 2*i, vCS + 2*i, vSt) for i in range(8)])
        for g in range(0, 16, 8):
            emit_interleaved(a, [gelu_pk(vA[p] + g + 2*i, 12 + 2*i, 118) for i in range(4)])
        for i in range(8): a(f"v_cvt_pk_bf16_f32 v{20+i}, v{vA[p]+2*i}, v{vA[p]+2*i+1}")
        a(f"""s_mul_i32 s{sT}, s{sC2b}, 6
        s_lshl_b32 s{sT2}, s{sS[p]}, 1
        s_add_u32 s{sT}, s{sT}, s{sT2}
        s_cmp_ge_u32 s{sT}, 86
        s_cbranch_scc1 {pfx}_ns{p}
        s_mul_i32 s{sT2}, s{sTbk}, 86
        s_add_u32 s{sT}, s{sT}, s{sT2}
        s_lshl_b32 s{sT}, s{sT}, 10
        s_add_u32 s{sT}, s{sT}, {hex(WS_H2)}
        buffer_store_dwordx4 {vr(20,4)}, v{vL16}, s[{sWS}:{sWS+3}], s{sT} offen sc1
        buffer_store_dwordx4 {vr(24,4)}, v{vL16}, s[{sWS}:{sWS+3}], s{sT} offen offset:1024 sc1""")
        a.label(f"{pfx}_ns{p}")
        a("s_nop 1")
    a(f"""s_waitcnt vmcnt(0)
    s_barrier
    s_lshl_b32 s{sT}, s{sR2}, 7
    s_lshl_b32 s{sT2}, s{sC2b}, 2
    s_add_u32 s41, s{sT}, s{sT2}
    s_add_u32 s41, s41, {hex(WS_FLAGS + 2048)}
    s_cmp_eq_u32 s{sW}, 0
    s_cbranch_scc0 {pfx}_end""")
    set_flag(a, 41)
    a.label(f"{pfx}_end")
    prof_stamp(a, 2); prof_stamp(a, 3)
    prof_end(a, s_id, sW, 8, sWS, vtmp=64)

def gen_g4(a, pfx, s_id):
    NS = 5
    a.c("==== G4 ====")
    prof_start(a)
    t64_setup(a)
    t64_tile(a, s_id)
    a(f"s_mov_b32 s{sWm}, s46\ns_mov_b32 s{sWm+1}, s47\ns_mov_b32 s{sWm+2}, {1376*512*2}")
    a(f"s_lshr_b32 s{sT}, s{sRB}, 1\ns_lshl_b32 s{sT}, s{sT}, 7\ns_add_u32 s41, s{sT}, {hex(WS_FLAGS + 2048)}")
    a("s_barrier")
    wait_flags(a, pfx + "f", 41, 15)
    t64_seg(a, WS_H2, 86)
    a(f"s_mov_b32 s{sSlotD}, 0\ns_mov_b32 s{sSlot}, 0")
    D = NS - 1
    vR = 60
    a(f"""s_lshl_b32 s{sT}, s{sRow}, 5
    s_add_u32 s{sT}, s{sT}, s{sN0}
    s_lshl_b32 s33, s{sT}, 10
    s_add_u32 s{sT}, s33, {hex(WS_X1)}
    buffer_load_dwordx4 {vr(vR,4)}, v{vL16}, s[{sWS}:{sWS+3}], s{sT} offen sc1
    buffer_load_dwordx4 {vr(vR+4,4)}, v{vL16}, s[{sWS}:{sWS+3}], s{sT} offen offset:1024 sc1""")
    for c in range(D): t64_dma(a, vL16, 86, NS, "sc1")
    prof_stamp(a, 0)
    iss = lambda: t64_dma(a, vL16, 86, NS, "sc1")
    t64_chunk(a, 4*(D-1), NS, iss, first=True)
    NCH = 22
    a(f"s_mov_b32 s{sC}, {NCH - D - 1}")
    a.L.append(".p2align 6")
    a.label(f"{pfx}_loop")
    t64_chunk(a, 4*(D-1), NS, iss)
    a(f"s_sub_u32 s{sC}, s{sC}, 1\ns_cmp_lg_u32 s{sC}, 0\ns_cbranch_scc1 {pfx}_loop")
    for i in range(D):
        t64_chunk(a, 4*(D-1-i), NS, None, nks=(2 if i == D-1 else 4))
    prof_stamp(a, 1)
    U = 20
    a("s_nop 7\ns_nop 3")
    for i in range(8): a(f"v_lshlrev_b32 v{U+2*i}, 16, v{vR+i}\nv_and_b32 v{U+2*i+1}, 0xffff0000, v{vR+i}")
    for i in range(0, 16, 2): a(f"v_pk_add_f32 {P(vAcc+i)}, {P(vAcc+i)}, {P(U+i)}")
    for i in range(8): a(f"v_cvt_pk_bf16_f32 v{12+i}, v{vAcc+2*i}, v{vAcc+2*i+1}")
    a(f"""s_add_u32 s{sT}, s33, {hex(WS_BF)}
    buffer_store_dwordx4 {vr(12,4)}, v{vL16}, s[{sWS}:{sWS+3}], s{sT} offen
    buffer_store_dwordx4 {vr(16,4)}, v{vL16}, s[{sWS}:{sWS+3}], s{sT} offen offset:1024""")
    prof_stamp(a, 2); prof_stamp(a, 3)
    prof_end(a, s_id, sW, 8, sWS, vtmp=64)

def gen_chain(a, pfx, s_id, with_g4=True):
    import common
    a(f"""s_load_dwordx2 s[40:41], s[0:1], {KA['ws']}
    s_load_dwordx2 s[42:43], s[0:1], {KA['w2']}
    s_load_dwordx2 s[44:45], s[0:1], {KA['w3']}
    s_load_dwordx2 s[46:47], s[0:1], {KA['w4']}
    s_load_dwordx2 s[52:53], s[0:1], {KA['x']}
    v_lshrrev_b32 v{vT}, 6, v0
    v_and_b32 v{vL}, 63, v0
    v_readfirstlane_b32 s{sW}, v{vT}
    v_lshlrev_b32 v{vL16}, 4, v{vL}
    s_cmp_ge_u32 s{sW}, 4
    s_cbranch_scc1 {pfx}_exit""")
    t64_setup(a)
    a("s_waitcnt lgkmcnt(0)")
    srd(a, sWS, 40, 41, WS_USED); srd(a, sX, 52, 53, 2048*512*2)
    a(f"s_mov_b32 s{sWm+3}, 0x20000")
    common.PROF_BASE = 2 * 0x10000
    gen_g0(a, pfx + "0", s_id)
    a("s_barrier")
    common.PROF_BASE = 3 * 0x10000
    gen_g2(a, pfx + "2", s_id)
    if with_g4:
        common.PROF_BASE = 5 * 0x10000
        gen_g4(a, pfx + "4", s_id)
    a.label(f"{pfx}_exit")
    a("s_endpgm")
    return 126
```

```python
from common import *
from k1 import vr, f2u
sWS = 8; sWm = 12
sW, sKH, sWR, sWC = 16, 17, 18, 19
sRB, sCB = 20, 21
sC, sT, sT2 = 22, 23, 24
sSlot, sSlotD = 25, 26
sLd = 31
sKs = 33; sKmax = 34; sXb = 35; sWb = 36; sWrow = 37; sNleft = 38
vL = 1; vL16 = 2; vXd = 3; vWd = 4; vXa0 = 5; vWa0 = 6; vXa = 7; vWa = 8; vT = 9; vT2 = 10; vT3 = 11
vXf = [12, 16]; vWf = [20, 24]; vAcc = [32, 48]

def setup(a, s_id):
    a(f"""
    v_lshrrev_b32 v{vT}, 6, v0
    v_and_b32 v{vL}, 63, v0
    v_readfirstlane_b32 s{sW}, v{vT}
    v_lshlrev_b32 v{vL16}, 4, v{vL}
    s_and_b32 s{sT}, s{s_id}, 7
    s_lshr_b32 s{sT2}, s{s_id}, 3
    s_and_b32 s{sRB}, s{sT2}, 3
    s_lshl_b32 s{sT}, s{sT}, 2
    s_add_u32 s{sRB}, s{sRB}, s{sT}           ; rb 0..31
    s_lshr_b32 s{sCB}, s{sT2}, 2              ; cb 0..7
    s_lshr_b32 s{sKH}, s{sW}, 2
    s_bfe_u32 s{sWR}, s{sW}, 0x10001
    s_and_b32 s{sWC}, s{sW}, 1
    s_lshl_b32 s{sLd}, s{sWR}, 1
    s_add_u32 s{sLd}, s{sLd}, s{sKH}
    s_lshl_b32 s{sLd}, s{sLd}, 1
    s_add_u32 s{sLd}, s{sLd}, s{sWC}
    s_lshl_b32 s{sLd}, s{sLd}, 10
    """)
    a(f"""
    v_lshrrev_b32 v{vT}, 3, v{vL}
    v_bfe_u32 v{vT2}, v{vL}, 4, 1
    v_lshlrev_b32 v{vT2}, 2, v{vT2}
    v_and_b32 v{vT3}, 7, v{vL}
    v_xor_b32 v{vT2}, v{vT2}, v{vT3}
    v_lshlrev_b32 v{vT2}, 4, v{vT2}
    v_lshl_add_u32 v{vWd}, v{vT}, 10, v{vT2}
    """)
    a(f"""
    s_lshl_b32 s{sT}, s{sKH}, 12
    s_lshl_b32 s{sT2}, s{sWR}, 10
    s_add_u32 s{sT2}, s{sT2}, s{sT}
    v_add_u32 v{vXa0}, s{sT2}, v{vL16}
    v_lshrrev_b32 v{vT}, 5, v{vL}             ; h
    v_lshlrev_b32 v{vT}, 9, v{vT}             ; rows 4h -> h*4*128
    v_bfe_u32 v{vT2}, v{vL}, 2, 2             ; r
    v_lshl_add_u32 v{vT}, v{vT2}, 7, v{vT}
    v_lshrrev_b32 v{vT2}, 1, v{vT2}
    v_xor_b32 v{vT2}, s{sWC}, v{vT2}          ; wc ^ (r>>1)
    v_lshl_add_u32 v{vT}, v{vT2}, 6, v{vT}
    v_bfe_u32 v{vT2}, v{vL}, 4, 1             ; nhalf
    v_lshl_add_u32 v{vT}, v{vT2}, 5, v{vT}
    v_and_b32 v{vT2}, 3, v{vL}
    v_lshl_add_u32 v{vT}, v{vT2}, 3, v{vT}
    s_add_u32 s{sT}, s{sT}, 8192
    v_add_u32 v{vWa0}, s{sT}, v{vT}
    """)

def seg_setup(a, xbase, xks_total, khalf_steps):
    a(f"""
    s_mul_i32 s{sKs}, s{sWR}, {khalf_steps}
    s_add_u32 s{sKs}, s{sKs}, s{sKH}
    s_lshl_b32 s{sT}, s{sRB}, 1
    s_add_u32 s{sT}, s{sT}, s{sWC}
    s_mul_i32 s{sXb}, s{sT}, {xks_total*1024}
    s_add_u32 s{sXb}, s{sXb}, {hex(xbase)}
    s_lshl_b32 s{sWb}, s{sCB}, 7              ; cb*64*2
    s_lshl_b32 s{sT}, s{sWC}, 13              ; 8 rows * 1024
    s_add_u32 s{sWb}, s{sWb}, s{sT}
    s_mov_b32 s{sKmax}, {xks_total-1}
    """)

def dma(a, xv, nslots, xflags=""):
    a(f"""
    s_min_u32 s{sT}, s{sKs}, s{sKmax}
    s_lshl_b32 s{sT}, s{sT}, 10
    s_add_u32 s{sT}, s{sT}, s{sXb}
    s_add_u32 m0, s{sSlotD}, s{sLd}
    s_lshl_b32 s{sT2}, s{sKs}, 14             ; 16 rows * 1024
    buffer_load_dwordx4 v{xv}, s[{sWS}:{sWS+3}], s{sT} offen {xflags} lds
    s_add_u32 m0, m0, 8192
    s_add_u32 s{sT2}, s{sT2}, s{sWb}
    buffer_load_dwordx4 v{vWd}, s[{sWm}:{sWm+3}], s{sT2} offen lds
    s_add_u32 s{sKs}, s{sKs}, 2
    s_add_u32 s{sSlotD}, s{sSlotD}, 16384
    s_cmp_eq_u32 s{sSlotD}, {nslots*16384}
    s_cselect_b32 s{sSlotD}, 0, s{sSlotD}
    """)

def reads(ks, b):
    return [f"ds_read_b128 {vr(vXf[b],4)}, v{vXa} offset:{ks*2048}",
            f"ds_read_b64_tr_b16 {vr(vWf[b],2)}, v{vWa} offset:{ks*2048}",
            f"ds_read_b64_tr_b16 {vr(vWf[b]+2,2)}, v{vWa} offset:{ks*2048+1024}"]

def chunk_compute(a, acc, nslots):
    A = vr(acc, 16)
    a(f"v_add_u32 v{vXa}, s{sSlot}, v{vXa0}\nv_add_u32 v{vWa}, s{sSlot}, v{vWa0}")
    for r in reads(0, 0) + reads(1, 1): a(r)
    return A
def chunk_mfma(a, A, nslots):
    a("s_waitcnt lgkmcnt(3)")
    a(f"v_mfma_f32_32x32x16_bf16 {A}, {vr(vWf[0],4)}, {vr(vXf[0],4)}, {A}")
    a(f"s_add_u32 s{sSlot}, s{sSlot}, 16384\ns_cmp_eq_u32 s{sSlot}, {nslots*16384}\ns_cselect_b32 s{sSlot}, 0, s{sSlot}")
    a("s_waitcnt lgkmcnt(0)")
    a(f"v_mfma_f32_32x32x16_bf16 {A}, {vr(vWf[1],4)}, {vr(vXf[1],4)}, {A}")

def loop(a, pfx, n, acc, nslots, depth, issue, xv=None, pre_dma=None, xflags=""):
    a(f"s_mov_b32 s{sC}, {n}")
    a.L.append(".p2align 6")
    a.label(f"{pfx}_loop")
    a(f"s_waitcnt vmcnt({2*(depth-1)})\ns_barrier")
    A = chunk_compute(a, acc, nslots)
    if pre_dma: pre_dma()
    dma(a, xv if xv is not None else vXd, nslots, xflags)
    chunk_mfma(a, A, nslots)
    a(f"s_sub_u32 s{sC}, s{sC}, 1\ns_cmp_lg_u32 s{sC}, 0\ns_cbranch_scc1 {pfx}_loop")
def drain(a, n, acc, nslots):
    for i in range(n):
        a(f"s_waitcnt vmcnt({2*(n-1-i)})\ns_barrier")
        A = chunk_compute(a, acc, nslots)
        chunk_mfma(a, A, nslots)

def reduce_halves(a, pfx, accs, xch):
    n = len(accs)
    a(f"""s_mul_i32 s{sT}, s{sW}, {2048*n}
    s_add_u32 s{sT}, s{sT}, {xch}
    v_add_u32 v{vXa}, s{sT}, v{vL16}
    s_xor_b32 s{sT2}, s{sW}, 4
    s_mul_i32 s{sT2}, s{sT2}, {2048*n}
    s_add_u32 s{sT2}, s{sT2}, {xch}
    v_add_u32 v{vWa}, s{sT2}, v{vL16}
    s_nop 7
    s_nop 3
    s_cmp_eq_u32 s{sKH}, 0
    s_cbranch_scc0 {pfx}_r1
    """)
    for i, acc in enumerate(accs):
        a(f"ds_write_b128 v{vXa}, {vr(acc+8,4)} offset:{i*2048}\nds_write_b128 v{vXa}, {vr(acc+12,4)} offset:{i*2048+1024}")
    a("s_waitcnt lgkmcnt(0)\ns_barrier")
    for i, acc in enumerate(accs):
        a(f"ds_read_b128 {vr(acc+8,4)}, v{vWa} offset:{i*2048}\nds_read_b128 {vr(acc+12,4)}, v{vWa} offset:{i*2048+1024}")
    a(f"s_branch {pfx}_r2")
    a.label(f"{pfx}_r1")
    for i, acc in enumerate(accs):
        a(f"ds_write_b128 v{vXa}, {vr(acc,4)} offset:{i*2048}\nds_write_b128 v{vXa}, {vr(acc+4,4)} offset:{i*2048+1024}")
    a("s_waitcnt lgkmcnt(0)\ns_barrier")
    for i, acc in enumerate(accs):
        a(f"ds_read_b128 {vr(acc,4)}, v{vWa} offset:{i*2048}\nds_read_b128 {vr(acc+4,4)}, v{vWa} offset:{i*2048+1024}")
    a.label(f"{pfx}_r2")
    a("s_waitcnt lgkmcnt(0)")
    for acc in accs:
        for j in range(0, 8, 2): a(f"v_pk_add_f32 v[{acc+j}:{acc+j+1}], v[{acc+j}:{acc+j+1}], v[{acc+8+j}:{acc+9+j}]")
```

```python
from common import *
import struct
K1_XS = 0
K1_WS = 65536
K1_ST = 131072
K1_LDS = K1_ST + 1024 + 256 + 1024
QSCALE = 0.25 * 1.4426950408889634
def vr(b, n=1): return f"v{b}" if n == 1 else f"v[{b}:{b+n-1}]"
def f2u(x): return struct.unpack("<I", struct.pack("<f", x))[0]
GC1 = -2.0 * 1.4426950408889634 * 0.7978845608028654
GC2 = GC1 * 0.044715

def gelu_ops(a, x, t, vC1, sC2):
    return [f"v_mul_f32 v{t}, v{x}, v{x}",
            f"v_fma_f32 v{t}, v{t}, s{sC2}, v{vC1}",
            f"v_mul_f32 v{t}, v{t}, v{x}",
            f"v_exp_f32 v{t}, v{t}",
            f"v_add_f32 v{t}, 1.0, v{t}",
            f"v_rcp_f32 v{t}, v{t}",
            f"v_mul_f32 v{x}, v{x}, v{t}"]
def gelu_pk(x, t, vC, vOne=None):
    P = lambda r: f"v[{r}:{r+1}]"
    return [f"v_pk_mul_f32 {P(t)}, {P(x)}, {P(x)}",
            f"v_pk_fma_f32 {P(t)}, {P(t)}, {P(vC+2)}, {P(vC)}",
            f"v_pk_mul_f32 {P(t)}, {P(t)}, {P(x)}",
            f"v_exp_f32 v{t}, v{t}", f"v_exp_f32 v{t+1}, v{t+1}",
            f"v_pk_add_f32 {P(t)}, {P(t)}, {P(vC+4)}",
            f"v_rcp_f32 v{t}, v{t}", f"v_rcp_f32 v{t+1}, v{t+1}",
            f"v_pk_mul_f32 {P(x)}, {P(x)}, {P(t)}"]
def gelu_consts(a, vC):
    a(f"v_mov_b32 v{vC}, {hex(f2u(GC1))}\nv_mov_b32 v{vC+1}, v{vC}\nv_mov_b32 v{vC+2}, {hex(f2u(GC2))}\nv_mov_b32 v{vC+3}, v{vC+2}\nv_mov_b32 v{vC+4}, 1.0\nv_mov_b32 v{vC+5}, 1.0")
def ln_pk(x, cs, vS):
    P = lambda r: f"v[{r}:{r+1}]"
    return [f"v_pk_mul_f32 {P(x)}, {P(x)}, {P(vS)} op_sel_hi:[1,0]",
            f"v_pk_fma_f32 {P(x)}, {P(cs)}, {P(vS)}, {P(x)} op_sel:[0,1,0] op_sel_hi:[1,1,1]"]
def emit_interleaved(a, seqs):
    n = max(len(s) for s in seqs)
    for i in range(n):
        for s in seqs:
            if i < len(s): a(s[i])


def gen_k1(a, pfx, X=None):
    X = X or {}
    import os
    SF = os.environ.get('K1SF', '')
    sX = 8; sWq = 12; sWS = 16; sDB = 52
    sW = 20; sRB = 21; sWR = 22; sC = 23; sT = 24; sT2 = 25
    sXsrc = 26; sWsrc = 27; sWstep = 28; sWi = 29; sLX = 30; sLW = 31; sSlot = 32; sSlotD = 33
    sTB = 34; sC2 = 35; sJ = 44; sXb = 45; sWb = 46; sX2 = 47; sCk = 48; sTyp = 49; sWC = 50
    vL = 1; vT = 2; vT2 = 3; vT3 = 4
    a.c("==== K1 ====")
    prof_start(a)
    a(f"""
    s_load_dwordx4 s[36:39], s[0:1], {KA['x']}        ; x, wqkv
    s_load_dwordx2 s[40:41], s[0:1], {KA['w1']}
    s_load_dwordx2 s[42:43], s[0:1], {KA['ws']}
    s_load_dwordx2 s[56:57], s[0:1], {KA['dbg']}
    s_load_dwordx2 s[58:59], s[0:1], {KA['gw']}
    v_lshrrev_b32 v{vT}, 6, v0
    v_and_b32 v{vL}, 63, v0
    v_readfirstlane_b32 s{sW}, v{vT}
    s_and_b32 s{sT}, s2, 7                   ; xcd
    s_lshr_b32 s{sT2}, s2, 3                 ; j
    s_lshr_b32 s{sRB}, s{sT}, 1
    s_lshl_b32 s{sRB}, s{sRB}, 2
    s_and_b32 s{sTB}, s{sT2}, 3
    s_add_u32 s{sRB}, s{sRB}, s{sTB}
    s_and_b32 s{sTyp}, s{sT}, 1
    s_lshr_b32 s{sJ}, s{sT2}, 2
    s_and_b32 s{sTB}, s{sW}, 3
    s_cmp_lt_u32 s{sW}, 4
    s_cbranch_scc1 {pfx}_gemm
    """)
    vXd = [5, 6]; vWd = 7; vWa = [8, 9]; vWa0 = [10, 11]
    a(f"""
    v_lshrrev_b32 v{vT}, 3, v{vL}            ; r
    v_lshrrev_b32 v{vT2}, 4, v{vL}           ; r>>1
    v_and_b32 v{vT3}, 7, v{vL}
    v_xor_b32 v{vXd[0]}, v{vT3}, v{vT2}
    v_xor_b32 v{vXd[1]}, 4, v{vXd[0]}
    v_lshlrev_b32 v{vWd}, 10, v{vT}
    v_lshl_add_u32 v{vXd[0]}, v{vXd[0]}, 4, v{vWd}
    v_lshl_add_u32 v{vXd[1]}, v{vXd[1]}, 4, v{vWd}
    v_add_u32 v{vXd[1]}, 8192, v{vXd[1]}
    v_and_b32 v{vT2}, 1, v{vT2}              ; (r>>1)&1
    v_lshlrev_b32 v{vT2}, 2, v{vT2}
    v_xor_b32 v{vT3}, v{vT3}, v{vT2}
    s_lshl_b32 s{sXsrc}, s{sRB}, 7
    s_lshl_b32 s{sT}, s{sTB}, 5
    s_add_u32 s{sXsrc}, s{sXsrc}, s{sT}
    s_lshl_b32 s{sXb}, s{sXsrc}, 10
    s_lshl_b32 s{sLX}, s{sTB}, 12
    s_lshl_b32 s{sLW}, s{sTB}, 12
    s_add_u32 s{sLW}, s{sLW}, {K1_WS}
    s_lshr_b32 s{sT}, s{sTB}, 1              ; strip s
    s_lshl_b32 s{sT2}, s{sTyp}, 1
    s_add_u32 s{sT2}, s{sT2}, s{sT}          ; matrix: 0 Q, 1 K, 2 V, 3 h
    s_cmp_eq_u32 s{sT2}, 3
    s_mov_b32 s{sWi}, 3072
    s_cmov_b32 s{sWi}, 1024
    s_cselect_b32 s{sT2}, 0, s{sT2}
    s_lshl_b32 s{sT2}, s{sT2}, 10
    s_lshl_b32 s{sWb}, s{sJ}, 7              ; 64 j * 2
    s_add_u32 s{sWb}, s{sWb}, s{sT2}
    s_and_b32 s{sT}, s{sTB}, 1
    s_lshl_b32 s{sT}, s{sT}, 5
    s_mul_i32 s{sT}, s{sT}, s{sWi}
    s_add_u32 s{sWb}, s{sWb}, s{sT}
    s_lshl_b32 s{sWstep}, s{sWi}, 6          ; 64 rows
    v_mul_lo_u32 v{vT}, v{vT}, s{sWi}
    v_lshl_add_u32 v{vWd}, v{vT3}, 4, v{vT}
    s_lshl_b32 s{sT2}, s{sWi}, 3
    s_cmp_eq_u32 s{sWi}, 1024
    s_mov_b32 s{sWi}, s{sT2}
    s_waitcnt lgkmcnt(0)
    s_cselect_b32 s{sWq}, s40, s38
    s_cselect_b32 s{sWq+1}, s41, s39
    s_mov_b32 s{sWq+2}, {512*1536*2}
    s_cmov_b32 s{sWq+2}, {512*512*2}
    s_mov_b32 s{sWq+3}, 0x20000
    s_and_b32 s{sCk}, s{sRB}, 3
    s_lshl_b32 s{sCk}, s{sCk}, 1
    s_add_u32 s{sCk}, s{sCk}, s{sJ}
    s_and_b32 s{sCk}, s{sCk}, {0 if X.get("norot") else 7}
    """)
    srd(a, sX, 36, 37, 2048*512*2)
    a(f"s_cmp_eq_u32 s{sTyp}, 0\ns_cbranch_scc0 {pfx}_norow")
    srd(a, 60, 58, 59, 1024)
    a(f"""s_lshl_b32 s{sT}, s{sRB}, 7
    s_lshl_b32 s{sT2}, s{sJ}, 4
    s_add_u32 s{sT}, s{sT}, s{sT2}
    s_lshl_b32 s{sT2}, s{sTB}, 2
    s_add_u32 s51, s{sT}, s{sT2}
    s_lshl_b32 s{sT}, s51, 10
    v_lshlrev_b32 v{vT}, 4, v{vL}
    buffer_load_dwordx4 v[20:23], v{vT}, s[{sX}:{sX+3}], s{sT} offen
    buffer_load_dwordx4 v[24:27], v{vT}, s[{sX}:{sX+3}], s{sT} offen offset:1024
    buffer_load_dwordx4 v[28:31], v{vT}, s[{sX}:{sX+3}], s{sT} offen offset:2048
    buffer_load_dwordx4 v[32:35], v{vT}, s[{sX}:{sX+3}], s{sT} offen offset:3072
    buffer_load_dwordx4 v[36:39], v{vT}, s[60:63], 0 offen
    """)
    a.label(f"{pfx}_norow")
    def dma_begin():
        return [f"s_lshl_b32 s{sT}, s{sCk}, 7", f"s_add_u32 s{sXsrc}, s{sXb}, s{sT}", f"s_add_u32 s{sX2}, s{sXsrc}, 16384",
                f"s_mul_i32 s{sT}, s{sCk}, s{sWstep}", f"s_add_u32 s{sWsrc}, s{sWb}, s{sT}", f"s_add_u32 s{sCk}, s{sCk}, 1", f"s_and_b32 s{sCk}, s{sCk}, 7",
                f"s_add_u32 s{sT}, s{sSlotD}, s{sLX}", f"s_add_u32 s{sT2}, s{sSlotD}, s{sLW}"]
    def dma_one(i):
        j = i >> 1
        if i & 1 == 0:
            return [f"s_add_u32 m0, s{sT}, {j*1024}", "s_nop 0",
                    f"buffer_load_dwordx4 v{vXd[j&1]}, s[{sX}:{sX+3}], s{sXsrc if j < 2 else sX2} offen lds"]
        L = [f"s_add_u32 m0, s{sT2}, {j*1024}", "s_nop 0",
             f"buffer_load_dwordx4 v{vWd}, s[{sWq}:{sWq+3}], s{sWsrc} offen lds"]
        if j < 3: L.append(f"s_add_u32 s{sWsrc}, s{sWsrc}, s{sWi}")
        return L
    def dma_all():
        if X.get("nodma"): return
        for x in dma_begin(): a(x)
        for i in range(8):
            for x in dma_one(i): a(x)
    for c in range(2):
        a(f"s_mov_b32 s{sSlotD}, {c*16384}")
        dma_all()
    a(f"s_mov_b32 s{sSlotD}, {2*16384}\ns_mov_b32 s{sSlot}, 0\ns_mov_b32 s{sC}, 0")
    srd(a, sWS, 42, 43, WS_USED)
    def w_addrs(dst, nbs, strip_off):
        a(f"""
        v_lshrrev_b32 v{vT2}, 5, v{vL}
        v_lshlrev_b32 v{vT}, 10, v{vT2}          ; h*8*128
        v_bfe_u32 v{vT2}, v{vL}, 2, 2            ; r
        v_lshl_add_u32 v{vT}, v{vT2}, 7, v{vT}
        v_bfe_u32 v{vT3}, v{vL}, 4, 1            ; nhalf
        v_lshl_add_u32 v{vT}, v{vT3}, 5, v{vT}
        v_and_b32 v{vT3}, 3, v{vL}
        v_lshl_add_u32 v{vT}, v{vT3}, 3, v{vT}
        v_add_u32 v{vT}, {K1_WS + strip_off}, v{vT}
        v_lshrrev_b32 v{vT2}, 1, v{vT2}          ; r>>1
        """)
        for d, nb in zip(dst, nbs):
            if isinstance(nb, int):
                a(f"v_xor_b32 v{vT3}, {nb}, v{vT2}\nv_lshl_add_u32 v{d}, v{vT3}, 6, v{vT}")
            else:
                a(f"v_xor_b32 v{vT3}, s{nb[1:]}, v{vT2}\nv_lshl_add_u32 v{d}, v{vT3}, 6, v{vT}")
    def loader_wait(lbl, tail=(8, 0)):
        a(f"""s_cmp_lt_u32 s{sC}, 6
        s_cbranch_scc1 {lbl}_w8
        s_cmp_eq_u32 s{sC}, 6
        s_cbranch_scc1 {lbl}_w4
        s_waitcnt vmcnt({tail[1]})
        s_branch {lbl}_wd
        {lbl}_w4:
        s_waitcnt vmcnt({tail[0]})
        s_branch {lbl}_wd
        {lbl}_w8:
        s_waitcnt vmcnt(16)
        {lbl}_wd:
        s_waitcnt lgkmcnt(0)
        s_barrier""")
    a(f"""s_cmp_eq_u32 s{sW}, 5
    s_cbranch_scc0 {pfx}_npad
    s_lshl_b32 s{sT}, s2, 8
    s_cmp_ge_u32 s{sT}, 32768
    s_cselect_b32 s{sT2}, {hex(2*1024*1024)}, 0
    s_add_u32 s{sT}, s{sT}, s{sT2}
    s_add_u32 s{sT}, s{sT}, {hex(WS_H1 - 32768)}
    v_mov_b32 v12, 0
    v_mov_b32 v13, 0
    v_mov_b32 v14, 0
    v_mov_b32 v15, 0
    v_lshlrev_b32 v16, 4, v{vL}
    s_mov_b64 exec, 0xffff
    buffer_store_dwordx4 v[12:15], v16, s[{sWS}:{sWS+3}], s{sT} offen
    s_mov_b64 exec, -1""")
    a.label(f"{pfx}_npad")
    a(f"s_cmp_eq_u32 s{sTyp}, 0\ns_cbranch_scc0 {pfx}_lb")
    a(f"s_cmp_eq_u32 s2, 0\ns_cbranch_scc0 {pfx}_nzf\ns_cmp_eq_u32 s{sW}, 4\ns_cbranch_scc0 {pfx}_nzf")
    a(f"""v_mov_b32 v12, 0
    v_mov_b32 v13, 0
    v_mov_b32 v14, 0
    v_mov_b32 v15, 0
    v_lshlrev_b32 v16, 4, v{vL}
    s_mov_b32 s{sT}, {hex(WS_FLAGS)}
    buffer_store_dwordx4 v[12:15], v16, s[{sWS}:{sWS+3}], s{sT} offen
    buffer_store_dwordx4 v[12:15], v16, s[{sWS}:{sWS+3}], s{sT} offen offset:1024
    buffer_store_dwordx4 v[12:15], v16, s[{sWS}:{sWS+3}], s{sT} offen offset:2048
    buffer_store_dwordx4 v[12:15], v16, s[{sWS}:{sWS+3}], s{sT} offen offset:3072""")
    a.label(f"{pfx}_nzf")
    srd(a, sDB, 56, 57, 256)
    G = 40
    st = []
    def S_(x): st.extend([l.strip() for l in x.split("\n") if l.strip()])
    for p in range(4): S_(f"v_lshlrev_b32 v{G+2*p}, 16, v{36+p}\nv_and_b32 v{G+2*p+1}, 0xffff0000, v{36+p}")
    for i in range(4):
        for p in range(4):
            x = 20 + 4*i + p
            S_(f"v_lshlrev_b32 v60, 16, v{x}\nv_and_b32 v61, 0xffff0000, v{x}")
            if p == 0:
                S_(f"v_add_f32 v{48+i}, v60, v61\nv_mul_f32 v{52+i}, v60, v60\nv_mul_f32 v{56+i}, v60, v{G}")
                S_(f"v_fmac_f32 v{52+i}, v61, v61\nv_fmac_f32 v{56+i}, v61, v{G+1}")
            else:
                S_(f"v_add_f32 v{48+i}, v{48+i}, v60\nv_fmac_f32 v{52+i}, v60, v60\nv_fmac_f32 v{56+i}, v60, v{G+2*p}")
                S_(f"v_add_f32 v{48+i}, v{48+i}, v61\nv_fmac_f32 v{52+i}, v61, v61\nv_fmac_f32 v{56+i}, v61, v{G+2*p+1}")
    n1 = len(st)
    S_("s_nop 1")
    for mod in ["row_shr:1 row_mask:0xf bank_mask:0xf bound_ctrl:1", "row_shr:2 row_mask:0xf bank_mask:0xf bound_ctrl:1",
                "row_shr:4 row_mask:0xf bank_mask:0xf bound_ctrl:1", "row_shr:8 row_mask:0xf bank_mask:0xf bound_ctrl:1",
                "row_bcast:15 row_mask:0xa bank_mask:0xf", "row_bcast:31 row_mask:0xc bank_mask:0xf"]:
        for r in range(48, 60): S_(f"v_add_f32_dpp v{r}, v{r}, v{r} {mod}")
    S_("s_nop 1")
    for i in range(4):
        S_(f"""v_mul_f32 v{48+i}, {hex(f2u(1/512))}, v{48+i}
        v_mul_f32 v{52+i}, {hex(f2u(1/512))}, v{52+i}
        v_mul_f32 v{56+i}, {hex(f2u(-1.4426950408889634))}, v{56+i}""")
    for i in range(4): S_(f"v_fma_f32 v{52+i}, -v{48+i}, v{48+i}, v{52+i}\nv_exp_f32 v{56+i}, v{56+i}")
    for i in range(4): S_(f"v_max_f32 v{52+i}, 0, v{52+i}\nv_add_f32 v{56+i}, 1.0, v{56+i}")
    for i in range(4): S_(f"v_add_f32 v{52+i}, {hex(f2u(1e-5))}, v{52+i}\nv_rcp_f32 v{56+i}, v{56+i}")
    for i in range(4): S_(f"v_rsq_f32 v{60+2*i}, v{52+i}")
    S_("s_nop 0")
    for i in range(4): S_(f"v_mul_f32 v{61+2*i}, v{48+i}, v{60+2*i}")
    for i in range(4): S_(f"v_sub_f32 v{61+2*i}, 0, v{61+2*i}")
    S_(f"""s_lshl_b32 s61, s51, 3
    s_add_u32 s61, s61, {hex(WS_XST)}
    s_lshl_b32 s62, s51, 2
    s_add_u32 s62, s62, {hex(WS_G)}
    v_mov_b32 v{vT}, 0
    s_mov_b32 exec_lo, 0
    s_mov_b32 exec_hi, 0x80000000
    buffer_store_dwordx4 v[60:63], v{vT}, s[{sWS}:{sWS+3}], s61 offen sc1
    buffer_store_dwordx4 v[64:67], v{vT}, s[{sWS}:{sWS+3}], s61 offen offset:16 sc1
    buffer_store_dwordx4 v[56:59], v{vT}, s[{sWS}:{sWS+3}], s62 offen sc1
    s_mov_b64 exec, -1""")
    prof_stamp(a, 0)
    def la_iter(c, extra=None, vm=16):
        a(f"s_waitcnt vmcnt({vm})\ns_barrier")
        if c < 5:
            dma_all()
            a(f"s_add_u32 s{sSlotD}, s{sSlotD}, 16384\ns_and_b32 s{sSlotD}, s{sSlotD}, 0xffff")
        for x in (extra or []): a(x)
    a("s_waitcnt vmcnt(16)")
    for x in st: a(x)
    a("s_waitcnt vmcnt(11)\ns_barrier")
    for _ in range(2):
        dma_all()
        a(f"s_add_u32 s{sSlotD}, s{sSlotD}, 16384\ns_and_b32 s{sSlotD}, s{sSlotD}, 0xffff")
    la_iter(1, vm=16)
    a(f"""s_cmp_eq_u32 s{sW}, 4
    s_cbranch_scc0 {pfx}_la_nf
    s_lshl_b32 s{sT}, s{sRB}, 4
    s_add_u32 s{sT}, s{sT}, s{sJ}
    v_mov_b32 v{vT}, 0
    v_mov_b32 v{vT2}, 1
    s_mov_b64 exec, 1
    buffer_store_byte v{vT2}, v{vT}, s[{sDB}:{sDB+3}], s{sT} offen sc1
    s_mov_b64 exec, -1""")
    a.label(f"{pfx}_la_nf")
    la_iter(2, vm=16)
    la_iter(3, vm=16)
    la_iter(4, vm=16)
    NPF = 0 if X.get("nopf") or os.environ.get("NOPF") else 8
    if NPF:
        a(f"""s_load_dwordx2 s[64:65], s[0:1], {KA['w2']}
        s_load_dwordx2 s[66:67], s[0:1], {KA['w3']}
        s_load_dwordx2 s[68:69], s[0:1], {KA['w4']}
        s_load_dwordx2 s[70:71], s[0:1], {KA['wo']}
        s_lshl_b32 s72, s{sRB}, 3
        s_add_u32 s72, s72, s{sJ}
        s_lshl_b32 s72, s72, 2
        s_add_u32 s72, s72, s{sTB}
        s_lshl_b32 s72, s72, 10
        v_lshlrev_b32 v12, 4, v{vL}
        s_waitcnt lgkmcnt(0)""")
        def pf(lo, hi, size, n):
            a(f"s_mov_b32 s76, s{lo}\ns_mov_b32 s77, s{hi}\ns_mov_b32 s78, {size}\ns_mov_b32 s79, 0x20000\ns_mov_b32 s73, s72")
            for j in range(n):
                a(f"buffer_load_dwordx4 v[16:19], v12, s[76:79], s73 offen")
                if j + 1 < n: a("s_add_u32 s73, s73, 0x80000")
        pf(64, 65, 512*512*2, 1); pf(66, 67, 512*1376*2, 3); pf(68, 69, 1376*512*2, 3); pf(70, 71, 512*512*2, 1)
    la_iter(5, vm=16 + NPF)
    la_iter(6, vm=8 + NPF)
    la_iter(7, vm=0 + NPF)
    prof_stamp(a, 1); prof_stamp(a, 2); prof_stamp(a, 3)
    prof_end(a, 2, sW, 8, sWS, vtmp=20)
    a("s_endpgm")
    a.label(f"{pfx}_lb")
    w_addrs(vWa0, [0, 1], 8192)
    vc = [24, 25, 26, 27]; vG = 44; vU = 52
    for r in vc: a(f"v_mov_b32 v{r}, 0")
    srd(a, sDB, 56, 57, 256)
    a(f"s_lshl_b32 s60, s{sRB}, 4\nv_mov_b32 v30, 0")
    a(f"""s_lshl_b32 s62, s{sRB}, 10
    s_add_u32 s62, s62, {hex(WS_XST)}
    v_lshlrev_b32 v34, 4, v{vL}
    s_mov_b32 s63, 0""")
    prof_stamp(a, 0)
    a("s_waitcnt vmcnt(8) lgkmcnt(0)\ns_barrier")
    dma_all()
    a(f"s_add_u32 s{sSlotD}, s{sSlotD}, 16384\ns_branch {pfx}_sl0")
    a.label(f"{pfx}_sl")
    loader_wait(f"{pfx}_s", tail=(8, 0))
    a.label(f"{pfx}_sl0")
    a(f"s_lshl_b32 s{sT}, s{sTB}, 11\ns_add_u32 s{sT}, s{sT}, s{sSlot}")
    for nb in range(2):
        a(f"v_add_u32 v54, s{sT}, v{vWa0[nb]}")
        a(f"ds_read_b64_tr_b16 {vr(vG+4*nb,2)}, v54\nds_read_b64_tr_b16 {vr(vG+4*nb+2,2)}, v54 offset:512")
    ops = ["s_waitcnt lgkmcnt(0)"]
    for nb in range(2):
        for i in range(4):
            x = vG + 4*nb + i
            ops += [f"v_lshlrev_b32 v{vU}, 16, v{x}", f"v_and_b32 v{vU+1}, 0xffff0000, v{x}",
                    f"v_add_f32 v{vc[2*nb]}, v{vc[2*nb]}, v{vU}", f"v_add_f32 v{vc[2*nb+1]}, v{vc[2*nb+1]}, v{vU+1}"]
    a(f"s_cmp_ge_u32 s{sC}, 5\ns_cbranch_scc1 {pfx}_s_nd")
    for x in dma_begin(): a(x)
    step = max(1, len(ops) // 8); k = 0
    for i in range(8):
        for x in (dma_one(i) if not X.get("nodma") else []): a(x)
        hi = len(ops) if i == 7 else min(len(ops), k + step)
        for x in ops[k:hi]: a(x)
        k = hi
    a(f"s_add_u32 s{sSlotD}, s{sSlotD}, 16384\ns_and_b32 s{sSlotD}, s{sSlotD}, 0xffff\ns_branch {pfx}_s_nx")
    a.label(f"{pfx}_s_nd")
    a(f"s_cmp_eq_u32 s{sC}, {X.get('fc', 6)}\ns_cbranch_scc0 {pfx}_s_nf\ns_cmp_eq_u32 s{sW}, 4\ns_cbranch_scc0 {pfx}_s_nf")
    a(f"buffer_load_dwordx2 v[32:33], v30, s[{sDB}:{sDB+3}], s60 offen sc1")
    a.label(f"{pfx}_s_nf")
    a(f"""s_cmp_eq_u32 s{sC}, {X.get('fc', 6) + 1}
    s_cbranch_scc0 {pfx}_s_ng
    s_cmp_eq_u32 s{sW}, 4
    s_cbranch_scc0 {pfx}_s_ng
    s_waitcnt vmcnt(0)
    v_and_b32 v32, v32, v33
    s_nop 0
    v_readfirstlane_b32 s{sT}, v32
    s_cmp_eq_u32 s{sT}, 0x01010101
    s_cbranch_scc0 {pfx}_s_ng
    s_mov_b32 s63, 1
    buffer_load_dwordx4 v[28:31], v34, s[{sWS}:{sWS+3}], s62 offen sc1""")
    a.label(f"{pfx}_s_ng")
    for x in ops: a(x)
    a.label(f"{pfx}_s_nx")
    a(f"""s_add_u32 s{sSlot}, s{sSlot}, 16384
    s_and_b32 s{sSlot}, s{sSlot}, 0xffff
    s_add_u32 s{sC}, s{sC}, 1
    s_cmp_lt_u32 s{sC}, 8
    s_cbranch_scc1 {pfx}_sl""")
    prof_stamp(a, 1)
    a(f"""
    v_add_f32 v24, v24, v25
    v_add_f32 v26, v26, v27
    v_lshlrev_b32 v55, 2, v{vL}
    s_lshl_b32 s{sT}, s{sTB}, 8
    s_add_u32 s{sT}, s{sT}, {K1_ST + 1280}
    v_permlane32_swap_b32 v24, v26
    v_add_u32 v54, s{sT}, v55
    s_nop 0
    v_add_f32 v24, v24, v26
    s_nop 0
    ds_write_b32 v54, v24
    s_waitcnt lgkmcnt(0)
    s_barrier                                  ; F1
    s_cmp_eq_u32 s{sW}, 4
    s_cbranch_scc0 {pfx}_pdone
    v_add_u32 v54, {K1_ST + 1280}, v55
    ds_read_b32 v36, v54
    ds_read_b32 v37, v54 offset:256
    ds_read_b32 v38, v54 offset:512
    ds_read_b32 v39, v54 offset:768
    s_cmp_eq_u32 s63, 1
    s_cbranch_scc1 {pfx}_pdone0
    s_branch {pfx}_pchk
    """)
    a.label(f"{pfx}_poll")
    a(f"""s_sleep 1
    buffer_load_dwordx2 v[32:33], v30, s[{sDB}:{sDB+3}], s60 offen sc1
    s_waitcnt vmcnt(0)""")
    a.label(f"{pfx}_pchk")
    a(f"""v_and_b32 v32, v32, v33
    s_nop 0
    v_readfirstlane_b32 s{sT}, v32
    s_cmp_eq_u32 s{sT}, 0x01010101
    s_cbranch_scc0 {pfx}_poll
    buffer_load_dwordx4 v[28:31], v34, s[{sWS}:{sWS+3}], s62 offen sc1""")
    a.label(f"{pfx}_pdone0")
    a(f"""s_waitcnt lgkmcnt(0)
    v_add_f32 v36, v36, v37
    v_add_f32 v38, v38, v39
    v_add_u32 v54, {K1_ST + 1024}, v55
    v_add_f32 v36, v36, v38
    v_add_u32 v55, {K1_ST}, v34
    ds_write_b32 v54, v36
    s_waitcnt vmcnt(0)
    ds_write_b128 v55, v[28:31]""")
    a.label(f"{pfx}_pdone")
    a("s_waitcnt lgkmcnt(0)\ns_barrier")
    prof_stamp(a, 2); prof_stamp(a, 3)
    prof_end(a, 2, sW, 8, sWS, vtmp=20)
    a("s_endpgm")
    a.label(f"{pfx}_gemm")
    vXa0 = [8, 9, 10, 11]; vWa0 = 12; vXa = [13, 14, 15, 16]; vWa = 17
    vXf = [20, 28, 36, 44]; vWf = [52, 60, 68, 76]; vA = [[84, 100], [116, 132]]
    a(f"""s_lshr_b32 s{sWR}, s{sW}, 1
    s_and_b32 s{sWC}, s{sW}, 1
    s_waitcnt lgkmcnt(0)""")
    srd(a, sX, 36, 37, 2048*512*2)
    srd(a, sWS, 42, 43, WS_USED)
    a(f"""
    v_and_b32 v{vT}, 31, v{vL}               ; t
    v_lshrrev_b32 v{vT2}, 5, v{vL}           ; h
    v_lshrrev_b32 v{vT3}, 1, v{vT}
    v_and_b32 v{vT3}, 7, v{vT3}              ; f
    v_xor_b32 v{vT3}, v{vT3}, v{vT2}         ; f ^ h
    s_lshl_b32 s{sT}, s{sWR}, 13
    v_lshlrev_b32 v{vT}, 7, v{vT}
    v_add_u32 v{vT}, s{sT}, v{vT}            ; row*128
    """)
    for ks in range(4):
        a(f"v_xor_b32 v{vXa0[ks]}, {2*ks}, v{vT3}\nv_lshl_add_u32 v{vXa0[ks]}, v{vXa0[ks]}, 4, v{vT}")
    w_addrs([vWa0], [f"s{sWC}"], 0)
    for i in range(64): a(f"v_mov_b32 v{84+i}, 0")
    for b in (2, 3):
        for i in range(8): a(f"v_mov_b32 v{vXf[b]+i}, 0\nv_mov_b32 v{vWf[b]+i}, 0")
    a(f"s_mov_b32 s{sC}, 0")
    def reads(ks, slot):
        L = [f"ds_read_b128 {vr(vXf[ks]+4*t,4)}, v{vXa0[ks]} offset:{slot*16384 + t*4096}" for t in range(2)]
        for s_ in range(2):
            for jj in range(2):
                L.append(f"ds_read_b64_tr_b16 {vr(vWf[ks]+4*s_+2*jj,2)}, v{vWa0} offset:{slot*16384 + s_*8192 + ks*2048 + jj*512}")
        return L
    def mfmas(ks, typ):
        L = []
        for t in range(2):
            for s_ in range(2):
                x, w = vr(vXf[ks] + 4*t, 4), vr(vWf[ks] + 4*s_, 4)
                ops = f"{x}, {w}" if (typ == 1 and s_ == 0) else f"{w}, {x}"
                L.append(f"v_mfma_f32_32x32x16_bf16 {vr(vA[t][s_],16)}, {ops}, {vr(vA[t][s_],16)}")
        return L
    def interleave(m, r, split):
        k = 0
        if X.get("nomfma"): m = ["s_nop 0"] * 4
        if X.get("noread"): r = []
        for j in range(4):
            a(m[j])
            for _ in range(split[j]):
                if k < len(r): a(r[k]); k += 1
    def gemm_loop(typ):
        p = f"{pfx}_g{typ}"
        sp = X.get("split", [2, 2, 2, 0]); spl = X.get("splitl", [3, 3, 0, 0])
        prof_stamp(a, 0)
        a.L.append(".p2align 6")
        a.label(p)
        for slot in range(4):
            a("s_waitcnt lgkmcnt(0)\ns_barrier")
            interleave(mfmas(2, typ), reads(0, slot), sp)
            interleave(mfmas(3, typ), reads(1, slot), sp)
            a("s_waitcnt lgkmcnt(6)")
            interleave(mfmas(0, typ), reads(2, slot), sp)
            a("s_waitcnt lgkmcnt(6)")
            m = mfmas(1, typ)
            if slot == 3:
                interleave(m[:4], reads(3, slot), spl) if False else None
                a(m[0] if not X.get("nomfma") else "s_nop 0")
                rr = [] if X.get("noread") else reads(3, slot)
                for r in rr[:3]: a(r)
                a(m[1] if not X.get("nomfma") else "s_nop 0")
                for r in rr[3:]: a(r)
                a(f"s_add_u32 s{sC}, s{sC}, 1\ns_cmp_lt_u32 s{sC}, 2")
                a(m[2] if not X.get("nomfma") else "s_nop 0")
                a(m[3] if not X.get("nomfma") else "s_nop 0")
                a(f"s_cbranch_scc1 {p}")
            else:
                interleave(m, reads(3, slot), spl)
        prof_stamp(a, 1)
        a("s_waitcnt lgkmcnt(0)")
        if typ == 1: a("s_barrier")
        for m in mfmas(2, typ) + mfmas(3, typ): a(m)
    S = f"s[{sWS}:{sWS+3}]"
    vLa = 2; vKo = 3; vVo = 4
    def epi_common():
        a(f"""
        v_lshlrev_b32 v{vLa}, 4, v{vL}            ; lane*16
        v_and_b32 v5, 31, v{vL}                   ; t / n
        v_lshrrev_b32 v6, 5, v{vL}                ; h
        s_lshl_b32 s36, s{sRB}, 2
        s_lshl_b32 s{sT}, s{sWR}, 1
        s_add_u32 s36, s36, s{sT}
        s_lshl_b32 s37, s{sJ}, 2
        s_lshl_b32 s{sT}, s{sWC}, 1
        s_add_u32 s37, s37, s{sT}
        s_lshl_b32 s38, s37, 16
        s_lshl_b32 s{sT2}, s36, 10
        s_add_u32 s38, s38, s{sT2}
        """)
    a(f"s_cmp_eq_u32 s{sTyp}, 0\ns_cbranch_scc0 {pfx}_gB")
    gemm_loop(0)
    epi_common()
    a(f"""
    v_and_b32 v7, 19, v5
    v_bfe_u32 v8, v5, 2, 1
    v_lshl_or_b32 v7, v8, 3, v7
    v_bfe_u32 v8, v5, 3, 1
    v_lshl_or_b32 v7, v8, 2, v7               ; pi(t)
    v_lshl_add_u32 v7, v6, 5, v7
    v_lshlrev_b32 v{vKo}, 4, v7               ; (h*32 + pi(t))*16
    s_mov_b32 s{sT2}, {hex(f2u(QSCALE))}
    s_nop 7
    """)
    prof_stamp(a, 2)
    for t in range(2):
        A = vA[t][1]
        for i in range(8): a(f"v_cvt_pk_bf16_f32 v{20+8*t+i}, v{A+2*i}, v{A+2*i+1}")
        for hh in range(2):
            a(f"s_add_u32 s{sT}, s38, {hex(WS_KF + hh*65536 + t*1024)}\nbuffer_store_dwordx4 {vr(20+8*t+4*hh,4)}, v{vKo}, {S}, s{sT} offen {SF}")
    for t in range(2):
        A = vA[t][0]
        for i in range(16): a(f"v_mul_f32 v{A+i}, s{sT2}, v{A+i}")
        for i in range(8): a(f"v_cvt_pk_bf16_f32 v{36+8*t+i}, v{A+2*i}, v{A+2*i+1}")
        for hh in range(2):
            a(f"s_add_u32 s{sT}, s38, {hh*65536 + t*1024}\nbuffer_store_dwordx4 {vr(36+8*t+4*hh,4)}, v{vLa}, {S}, s{sT} offen {SF}")
    prof_stamp(a, 3)
    prof_end(a, 2, sW, 8, sWS, vtmp=20)
    a("s_endpgm")
    a.label(f"{pfx}_gB")
    gemm_loop(1)
    epi_common()
    a(f"""
    v_lshrrev_b32 v7, 4, v5                   ; n>>4
    v_lshlrev_b32 v7, 16, v7
    v_lshl_add_u32 v7, v6, 8, v7
    v_and_b32 v8, 15, v5
    v_lshl_add_u32 v{vVo}, v8, 4, v7          ; (n>>4)*65536 + h*256 + d*16
    s_lshl_b32 s39, s36, 15                   ; tblock*32*1024
    s_lshl_b32 s{sT2}, s37, 10
    s_add_u32 s39, s39, s{sT2}
    s_add_u32 s39, s39, {hex(WS_H1)}
    s_lshl_b32 s{sT2}, s{sWR}, 9
    s_add_u32 s{sT2}, s{sT2}, {K1_ST}
    v_lshl_add_u32 v9, v5, 3, s{sT2}
    s_lshl_b32 s{sT2}, s{sWC}, 7
    s_add_u32 s{sT2}, s{sT2}, {K1_ST + 1024}
    v_lshl_add_u32 v10, v6, 4, s{sT2}
    s_nop 4
    """)
    for t in range(2):
        A = vA[t][0]
        for i in range(8): a(f"v_cvt_pk_bf16_f32 v{20+8*t+i}, v{A+2*i}, v{A+2*i+1}")
        a(f"s_add_u32 s{sT}, s38, {hex(WS_VF + t*1024)}")
        a(f"buffer_store_dwordx4 {vr(20+8*t,4)}, v{vVo}, {S}, s{sT} offen {SF}")
        a(f"buffer_store_dwordx4 {vr(24+8*t,4)}, v{vVo}, {S}, s{sT} offen offset:512 {SF}")
    a("s_barrier")
    prof_stamp(a, 2)
    a("ds_read_b64 v[12:13], v9\nds_read_b64 v[14:15], v9 offset:256")
    for i in range(4): a(f"ds_read_b128 {vr(36+4*i,4)}, v10 offset:{32*i}")
    gelu_consts(a, 52)
    a("s_waitcnt lgkmcnt(0)")
    for t in range(2):
        h = vA[t][1]
        emit_interleaved(a, [ln_pk(h + 2*i, 36 + 2*i, 12 + 2*t) for i in range(8)])
        for g in range(0, 16, 8):
            emit_interleaved(a, [gelu_pk(h + g + 2*i, 60 + 2*i, 52) for i in range(4)])
        for i in range(8): a(f"v_cvt_pk_bf16_f32 v{72+i}, v{h+2*i}, v{h+2*i+1}")
        a(f"s_add_u32 s{sT}, s39, {t*32768}")
        a(f"buffer_store_dwordx4 {vr(72,4)}, v{vLa}, {S}, s{sT} offen {SF}")
        a(f"buffer_store_dwordx4 {vr(76,4)}, v{vLa}, {S}, s{sT} offen offset:1024 {SF}")
        a("s_nop 1")
    prof_stamp(a, 3)
    prof_end(a, 2, sW, 8, sWS, vtmp=20)
    a("s_endpgm")
    return 148
```

```python
from common import *
from k1 import vr, f2u, gelu_ops, gelu_pk, gelu_consts, ln_pk, emit_interleaved, GC1, GC2
W3_SLOT = 24576
W3_CS = 3 * W3_SLOT
W3_LDS = W3_CS + 1024
def gen_w3(a, pfx, s_id, merged=False, prio=None):
    sc = 'sc1' if merged else ''
    sWS = 8; sWm = 12
    sW, sKH, sTB, sRB, sCB, sT, sT2 = 16, 17, 18, 19, 20, 21, 22
    sXs = 23; sWb = 24; sLd = 25; sS = [26, 27, 28]; sC2 = 29; sTbk = 30
    vL = 1; vL16 = 2; vWd = 3; vWa = [4, 5, 6]; vT = 7; vT2 = 8; vT3 = 9; vSt = 10
    vX = 12
    vA = [32, 48, 64]; vCS = 80; vWf = [96, 108]; vOne = 120
    a.c("==== G2: w3 ====")
    prof_start(a)
    a(f"s_load_dwordx2 s[40:41], s[0:1], {KA['ws']}\ns_load_dwordx2 s[42:43], s[0:1], {KA['w3']}")
    a(f"""
    v_lshrrev_b32 v{vT}, 6, v0
    v_and_b32 v{vL}, 63, v0
    v_readfirstlane_b32 s{sW}, v{vT}
    v_lshlrev_b32 v{vL16}, 4, v{vL}
    s_and_b32 s{sT}, s{s_id}, 7
    s_lshr_b32 s{sT2}, s{s_id}, 3
    s_lshr_b32 s{sRB}, s{sT}, 1
    s_lshl_b32 s{sRB}, s{sRB}, 2
    s_and_b32 s{sCB}, s{sT2}, 3
    s_add_u32 s{sRB}, s{sRB}, s{sCB}           ; rb 0..15
    s_and_b32 s{sCB}, s{sT}, 1
    s_lshl_b32 s{sCB}, s{sCB}, 3
    s_lshr_b32 s{sT2}, s{sT2}, 2
    s_add_u32 s{sCB}, s{sCB}, s{sT2}           ; cb 0..15
    s_cmp_ge_u32 s{sCB}, 15
    s_cbranch_scc1 {pfx}_exit
    s_lshr_b32 s{sKH}, s{sW}, 2
    s_and_b32 s{sTB}, s{sW}, 3
    s_lshl_b32 s{sTbk}, s{sRB}, 2
    s_add_u32 s{sTbk}, s{sTbk}, s{sTB}         ; tblock
    """)
    a(f"""
    s_mul_i32 s{sLd}, s{sW}, 3072
    s_lshl_b32 s{sT}, s{sKH}, 4
    s_add_u32 s{sT}, s{sT}, s{sTB}
    s_mul_i32 s{sWb}, s{sT}, {16*2752}
    s_mul_i32 s{sT}, s{sCB}, 192
    s_add_u32 s{sWb}, s{sWb}, s{sT}
    v_lshrrev_b32 v{vT}, 2, v{vL}
    v_mul_u32_u24 v{vT}, 2752, v{vT}
    v_and_b32 v{vT2}, 3, v{vL}
    v_lshl_add_u32 v{vWd}, v{vT2}, 4, v{vT}
    s_mul_i32 s{sXs}, s{sTbk}, 32768
    s_lshl_b32 s{sT}, s{sKH}, 14
    s_add_u32 s{sXs}, s{sXs}, s{sT}
    s_add_u32 s{sXs}, s{sXs}, {hex(WS_X1)}
    """)
    for p in range(3):
        a(f"""s_add_u32 s{sS[p]}, s{sTB}, {p}
        s_cmp_ge_u32 s{sS[p]}, 3
        s_cselect_b32 s{sT}, 3, 0
        s_sub_u32 s{sS[p]}, s{sS[p]}, s{sT}
        s_cmp_ge_u32 s{sS[p]}, 3
        s_cselect_b32 s{sT}, 3, 0
        s_sub_u32 s{sS[p]}, s{sS[p]}, s{sT}""")
    a(f"""
    v_lshrrev_b32 v{vT}, 5, v{vL}             ; h
    v_lshlrev_b32 v{vT}, 8, v{vT}
    v_bfe_u32 v{vT2}, v{vL}, 2, 2
    v_lshl_add_u32 v{vT}, v{vT2}, 6, v{vT}
    v_bfe_u32 v{vT2}, v{vL}, 4, 1
    v_lshl_add_u32 v{vT}, v{vT2}, 5, v{vT}
    v_and_b32 v{vT2}, 3, v{vL}
    v_lshl_add_u32 v{vT}, v{vT2}, 3, v{vT}
    s_mul_i32 s{sT2}, s{sKH}, {4*3072}
    """)
    for p in range(3):
        a(f"s_lshl_b32 s{sT}, s{sS[p]}, 10\ns_add_u32 s{sT}, s{sT}, s{sT2}\nv_add_u32 v{vWa[p]}, s{sT}, v{vT}")
    a("s_waitcnt lgkmcnt(0)")
    srd(a, sWS, 40, 41, WS_USED); srd(a, sWm, 42, 43, 512*1376*2)
    def wdma(c):
        slot = (c % 3) * W3_SLOT
        a(f"s_add_u32 m0, s{sLd}, {slot}\ns_add_u32 s{sT}, s{sWb}, {c*4*16*2752}")
        for j in range(3):
            a(f"buffer_load_dwordx4 v{vWd}, s[{sWm}:{sWm+3}], s{sT} offen lds")
            if j < 2: a(f"s_add_u32 m0, m0, 1024\ns_add_u32 s{sT}, s{sT}, 64")
    wdma(0); wdma(1)
    if prio is not None: a(f"s_setprio {prio}")
    if merged:
        a(f"""s_cmp_eq_u32 s{sW}, 0
        s_cbranch_scc0 {pfx}_wb
        s_lshl_b32 s{sT2}, s{sRB}, 7
        s_add_u32 s{sT2}, s{sT2}, {hex(WS_FLAGS)}
        v_and_b32 v{vT}, 15, v{vL}
        v_lshlrev_b32 v{vT}, 2, v{vT}""")
        a.label(f"{pfx}_poll")
        a(f"""buffer_load_dword v{vT2}, v{vT}, s[{sWS}:{sWS+3}], s{sT2} offen sc1
        s_waitcnt vmcnt(0)
        v_cmp_ne_u32 vcc, 1, v{vT2}
        s_nop 4
        s_cmp_eq_u64 vcc, 0
        s_cbranch_scc1 {pfx}_pok
        s_sleep 8
        s_branch {pfx}_poll""")
        a.label(f"{pfx}_pok")
        import os
        if os.environ.get("INV"): a("buffer_inv sc1\ns_waitcnt vmcnt(0)")
        a.label(f"{pfx}_wb")
        a("s_barrier")
    a(f"""
    v_and_b32 v{vT}, 31, v{vL}
    v_lshlrev_b32 v{vT}, 6, v{vT}
    v_lshrrev_b32 v{vT2}, 5, v{vL}
    v_lshl_add_u32 v{vT}, v{vT2}, 5, v{vT}     ; t*64 + h*32
    s_lshl_b32 s{sT}, s{sTbk}, 11
    s_add_u32 s{sT}, s{sT}, {hex(WS_ST)}
    buffer_load_dwordx4 v[80:83], v{vT}, s[{sWS}:{sWS+3}], s{sT} offen {sc}
    buffer_load_dwordx4 v[84:87], v{vT}, s[{sWS}:{sWS+3}], s{sT} offen offset:16 {sc}
    """)
    def xload(c, ks):
        a(f"s_add_u32 s{sT}, s{sXs}, {(4*c+ks)*1024}\nbuffer_load_dwordx4 {vr(vX+4*ks,4)}, v{vL16}, s[{sWS}:{sWS+3}], s{sT} offen {sc}")
    for ks in range(4): xload(0, ks)
    for i in range(4): a(f"v_mov_b32 v{vOne+i}, 0x3f803f80")
    a(f"""s_waitcnt vmcnt(4)
    v_add_f32 v80, v80, v82
    v_add_f32 v81, v81, v83
    v_add_f32 v84, v84, v86
    v_add_f32 v85, v85, v87
    v_add_f32 v80, v80, v84
    v_add_f32 v82, v81, v85
    v_mov_b32 v81, v80
    v_mov_b32 v83, v82
    s_nop 1
    v_permlane32_swap_b32 v80, v81
    v_permlane32_swap_b32 v82, v83
    s_nop 1
    v_add_f32 v80, v80, v81
    v_add_f32 v82, v82, v83
    v_mul_f32 v80, {hex(f2u(1/512))}, v80
    v_mul_f32 v82, {hex(f2u(1/512))}, v82
    v_fma_f32 v82, -v80, v80, v82
    v_max_f32 v82, 0, v82
    v_add_f32 v82, {hex(f2u(1e-5))}, v82
    v_rsq_f32 v{vSt}, v82
    s_nop 0
    v_mul_f32 v{vSt+1}, v80, v{vSt}
    v_sub_f32 v{vSt+1}, 0, v{vSt+1}
    """)
    prof_stamp(a, 0)
    def wreads(c, ks, b):
        slot = (c % 3) * W3_SLOT
        L = []
        for p in range(3):
            for jj in range(2):
                L.append(f"ds_read_b64_tr_b16 {vr(vWf[b]+4*p+2*jj,2)}, v{vWa[p]} offset:{slot + ks*3072 + jj*512}")
        return L
    NCH = 4
    for c in range(NCH):
        n = (3 if c + 1 < NCH else 0) + 4
        if c == 0: n = 3 + 2 + 4
        if c == 0: n = 7 + 2
        a(f"s_waitcnt vmcnt({7 if c + 1 < NCH else 4})\ns_barrier")
        for r in wreads(c, 0, 0): a(r)
        if c + 2 < NCH: wdma(c + 2)
        for ks in range(4):
            b = ks & 1
            nxt = wreads(c, ks + 1, b ^ 1) if ks < 3 else []
            vm = (3 - ks) + (3 if c + 2 < NCH else 0) + (ks if c + 1 < NCH else 0)
            a(f"s_waitcnt vmcnt({vm}) lgkmcnt(0)")
            x = vr(vX + 4*ks, 4)
            for p in range(3):
                cin = "0" if (c == 0 and ks == 0) else vr(vA[p], 16)
                a(f"v_mfma_f32_32x32x16_bf16 {vr(vA[p],16)}, {vr(vWf[b]+4*p,4)}, {x}, {cin}")
                for r in nxt[2*p:2*p+2]: a(r)
            a(f"v_mfma_f32_32x32x16_bf16 {vr(vCS,16)}, {vr(vWf[b],4)}, {vr(vOne,4)}, {'0' if (c == 0 and ks == 0) else vr(vCS,16)}")
            if c + 1 < NCH: xload(c + 1, ks)
    prof_stamp(a, 1)
    a(f"""s_barrier
    s_mul_i32 s{sT}, s{sW}, 6144
    v_add_u32 v{vT}, s{sT}, v{vL16}
    s_xor_b32 s{sT2}, s{sW}, 4
    s_mul_i32 s{sT2}, s{sT2}, 6144
    v_add_u32 v{vT2}, s{sT2}, v{vL16}
    s_mul_i32 s{sT}, s{sKH}, 3
    s_add_u32 s{sT}, s{sT}, s{sS[0]}
    s_lshl_b32 s{sT}, s{sT}, 7
    s_add_u32 s{sT}, s{sT}, {W3_CS}
    v_lshrrev_b32 v{vT3}, 5, v{vL}
    v_lshl_add_u32 v{vT3}, v{vT3}, 4, s{sT}
    s_nop 4
    s_cmp_eq_u32 s{sTB}, 3
    s_cbranch_scc1 {pfx}_nocs
    s_mov_b32 exec_lo, 1
    s_mov_b32 exec_hi, 1
    """)
    for i in range(4): a(f"ds_write_b128 v{vT3}, {vr(vCS+4*i,4)} offset:{32*i}")
    a("s_mov_b64 exec, -1")
    a.label(f"{pfx}_nocs")
    a(f"s_cmp_eq_u32 s{sKH}, 0\ns_cbranch_scc0 {pfx}_r1")
    for p in range(3):
        a(f"ds_write_b128 v{vT}, {vr(vA[p]+8,4)} offset:{p*2048}\nds_write_b128 v{vT}, {vr(vA[p]+12,4)} offset:{p*2048+1024}")
    a("s_waitcnt lgkmcnt(0)\ns_barrier")
    for p in range(3):
        a(f"ds_read_b128 {vr(vA[p]+8,4)}, v{vT2} offset:{p*2048}\nds_read_b128 {vr(vA[p]+12,4)}, v{vT2} offset:{p*2048+1024}")
    a(f"s_branch {pfx}_r2")
    a.label(f"{pfx}_r1")
    for p in range(3):
        a(f"ds_write_b128 v{vT}, {vr(vA[p],4)} offset:{p*2048}\nds_write_b128 v{vT}, {vr(vA[p]+4,4)} offset:{p*2048+1024}")
    a("s_waitcnt lgkmcnt(0)\ns_barrier")
    for p in range(3):
        a(f"ds_read_b128 {vr(vA[p],4)}, v{vT2} offset:{p*2048}\nds_read_b128 {vr(vA[p]+4,4)}, v{vT2} offset:{p*2048+1024}")
    a.label(f"{pfx}_r2")
    CS = 80
    a(f"v_lshrrev_b32 v{vT3}, 5, v{vL}\nv_lshlrev_b32 v{vT3}, 4, v{vT3}\ns_lshl_b32 s{sT2}, s{sKH}, 6\ns_add_u32 s{sT2}, s{sT2}, {W3_CS}")
    for p in range(3):
        a(f"s_lshl_b32 s{sT}, s{sS[p]}, 7\ns_add_u32 s{sT}, s{sT}, s{sT2}\nv_add_u32 v{vT}, s{sT}, v{vT3}")
        a(f"ds_read_b128 {vr(CS+16*p,4)}, v{vT}\nds_read_b128 {vr(CS+16*p+4,4)}, v{vT} offset:32")
        if p < 2:
            a(f"ds_read_b128 {vr(CS+16*p+8,4)}, v{vT} offset:384\nds_read_b128 {vr(CS+16*p+12,4)}, v{vT} offset:416")
        else:
            a(f"ds_read_b128 {vr(12,4)}, v{vT} offset:384\nds_read_b128 {vr(16,4)}, v{vT} offset:416")
    a("s_waitcnt lgkmcnt(0)")
    gelu_consts(a, 120)
    P = lambda r: f"v[{r}:{r+1}]"
    for p in range(3):
        o = CS + 16*p + 8 if p < 2 else 12
        for j in range(0, 8, 2):
            a(f"v_pk_add_f32 {P(vA[p]+j)}, {P(vA[p]+j)}, {P(vA[p]+8+j)}\nv_pk_add_f32 {P(CS+16*p+j)}, {P(CS+16*p+j)}, {P(o+j)}")
        emit_interleaved(a, [ln_pk(vA[p] + 2*i, CS + 16*p + 2*i, vSt) for i in range(4)])
        emit_interleaved(a, [gelu_pk(vA[p] + 2*i, 22 + 2*i, 120) for i in range(4)])
        for i in range(4): a(f"v_cvt_pk_bf16_f32 v{vA[p]+8+i}, v{vA[p]+2*i}, v{vA[p]+2*i+1}")
        a(f"""s_mul_i32 s{sT}, s{sCB}, 6
        s_lshl_b32 s{sT2}, s{sS[p]}, 1
        s_add_u32 s{sT}, s{sT}, s{sT2}
        s_add_u32 s{sT}, s{sT}, s{sKH}
        s_cmp_ge_u32 s{sT}, 86
        s_cbranch_scc1 {pfx}_ns{p}
        s_mul_i32 s{sT2}, s{sTbk}, 86
        s_add_u32 s{sT}, s{sT}, s{sT2}
        s_lshl_b32 s{sT}, s{sT}, 10
        s_add_u32 s{sT}, s{sT}, {hex(WS_H2)}
        buffer_store_dwordx4 {vr(vA[p]+8,4)}, v{vL16}, s[{sWS}:{sWS+3}], s{sT} offen""")
        a.label(f"{pfx}_ns{p}")
    prof_stamp(a, 2); prof_stamp(a, 3)
    prof_end(a, s_id, sW, 8, sWS, vtmp=32)
    a.label(f"{pfx}_exit")
    a("s_endpgm")
    return 126
```

```python
from common import *
import gemm64 as G
from gemm64 import *
from k1 import vr, f2u

def load_ptrs(a, items):
    for i, (k, s) in enumerate(items): a(f"s_load_dwordx2 s[{s}:{s+1}], s[0:1], {KA[k]}")

W2_NS = 4
W2_XCH = W2_NS * 16384
W2_LDS = W2_XCH + 16384
def gen_w2(a, pfx, s_id, publish=False, prio=None, cont=None):
    st = "sc1" if publish else ""
    a.c("==== G0: w2 ====")
    prof_start(a)
    load_ptrs(a, [("ws", 40), ("w2", 42), ("x", 44)])
    setup(a, s_id)
    vXdB = 28; vXres = 64
    sX = 48
    a(f"""
    s_add_u32 s{sT}, s{sWR}, 1                 ; |delta|
    s_lshl_b32 s{sT2}, s{sRB}, 1
    s_add_u32 s{sT2}, s{sT2}, s{sWC}
    s_lshl_b32 s{sT2}, s{sT2}, 5
    v_and_b32 v{vT}, 31, v{vL}
    v_add_u32 v{vT}, s{sT2}, v{vT}             ; row
    v_lshrrev_b32 v{vT2}, 5, v{vL}
    v_lshlrev_b32 v{vT2}, 9, v{vT2}            ; h*512
    """)
    for dst, op in ((vXd, "v_subrev_u32"), (vXdB, "v_add_u32")):
        a(f"""
        {op} v{vT3}, s{sT}, v{vT}               ; source row r
        v_subrev_u32 v29, s{sT2}, v{vT3}
        v_add_u32 v29, 32, v29                  ; +32
        v_lshrrev_b32 v30, 5, v29
        v_lshlrev_b32 v30, 15, v30
        v_and_b32 v29, 31, v29
        v_lshl_add_u32 v30, v29, 4, v30
        v_add_u32 v{dst}, v30, v{vT2}
        v_cmp_gt_u32 vcc, 2048, v{vT3}          ; 0 <= r < 2048 (unsigned)
        v_mov_b32 v29, 0x7ff00000
        s_nop 0
        v_cndmask_b32 v{dst}, v29, v{dst}, vcc
        """)
    sN0 = 56; sRow = 57
    a(f"""
    s_lshl_b32 s{sN0}, s{sCB}, 2
    s_lshl_b32 s{sT}, s{sWC}, 1
    s_add_u32 s{sN0}, s{sN0}, s{sT}
    s_add_u32 s{sN0}, s{sN0}, s{sKH}
    s_lshl_b32 s{sRow}, s{sRB}, 1
    s_add_u32 s{sRow}, s{sRow}, s{sWR}         ; tblock
    v_lshrrev_b32 v{vT}, 3, v{vL}
    v_and_b32 v{vT2}, 7, v{vL}
    v_lshlrev_b32 v{vT2}, 4, v{vT2}
    v_lshl_add_u32 v29, v{vT}, 10, v{vT2}
    s_waitcnt lgkmcnt(0)
    """)
    srd(a, sWS, 40, 41, WS_USED); srd(a, sWm, 42, 43, 512*512*2); srd(a, sX, 44, 45, 2048*512*2)
    a(f"""
    s_lshl_b32 s{sT}, s{sRB}, 6
    s_lshl_b32 s{sT2}, s{sW}, 3
    s_add_u32 s{sT}, s{sT}, s{sT2}
    s_lshl_b32 s{sT}, s{sT}, 10
    s_lshl_b32 s{sT2}, s{sCB}, 7
    s_add_u32 s{sT}, s{sT}, s{sT2}
    s_lshl_b32 s{sT2}, s{sW}, 10
    s_add_u32 m0, s{sT2}, {W2_XCH}
    s_nop 0
    buffer_load_dwordx4 v29, s[{sX}:{sX+3}], s{sT} offen lds
    """)
    seg_setup(a, WS_H1 - 32768, 32, 16)
    a(f"s_mov_b32 s{sSlotD}, 0\ns_mov_b32 s{sSlot}, 0")
    for c in range(3): dma(a, vXd, W2_NS)
    if prio is not None: a(f"s_setprio {prio}")
    for i in range(16): a(f"v_mov_b32 v{vAcc[0]+i}, 0")
    prof_stamp(a, 0)
    loop(a, pfx + "a", 1, vAcc[0], W2_NS, 3, True, xv=vXd)
    loop(a, pfx + "b", 4, vAcc[0], W2_NS, 3, True, xv=vXdB)
    drain(a, 3, vAcc[0], W2_NS)
    prof_stamp(a, 1)
    a(f"""
    v_and_b32 v{vT}, 31, v{vL}
    s_lshl_b32 s{sT}, s{sWR}, 12
    v_lshl_add_u32 v{vT}, v{vT}, 7, s{sT}
    v_lshrrev_b32 v{vT2}, 5, v{vL}
    v_lshl_add_u32 v{vT}, v{vT2}, 3, v{vT}
    s_lshl_b32 s{sT}, s{sWC}, 6
    s_lshl_b32 s{sT2}, s{sKH}, 5
    s_add_u32 s{sT}, s{sT}, s{sT2}
    s_add_u32 s{sT}, s{sT}, {W2_XCH}
    v_add_u32 v{vT}, s{sT}, v{vT}
    ds_read_b64 {vr(vXres,2)}, v{vT}
    ds_read_b64 {vr(vXres+2,2)}, v{vT} offset:16
    s_waitcnt lgkmcnt(0)
    s_barrier
    """)
    reduce_halves(a, pfx, [vAcc[0]], W2_XCH)
    prof_stamp(a, 2)
    acc = vAcc[0]; U = 72
    for i in range(4):
        a(f"v_lshlrev_b32 v{U+2*i}, 16, v{vXres+i}\nv_and_b32 v{U+2*i+1}, 0xffff0000, v{vXres+i}")
    for i in range(8): a(f"v_add_f32 v{acc+i}, v{acc+i}, v{U+i}")
    for i in range(4): a(f"v_cvt_pk_bf16_f32 v{vXf[0]+i}, v{acc+2*i}, v{acc+2*i+1}")
    a(f"""s_lshl_b32 s{sT}, s{sRow}, 5
    s_add_u32 s{sT}, s{sT}, s{sN0}
    s_lshl_b32 s{sT}, s{sT}, 10
    s_add_u32 s{sT}, s{sT}, {hex(WS_X1)}
    buffer_store_dwordx4 {vr(vXf[0],4)}, v{vL16}, s[{sWS}:{sWS+3}], s{sT} offen {st}""")
    for i in range(4):
        a(f"v_lshlrev_b32 v{U+2*i}, 16, v{vXf[0]+i}\nv_and_b32 v{U+2*i+1}, 0xffff0000, v{vXf[0]+i}")
    a(f"v_add_f32 v{U+18}, v{U}, v{U+1}\nv_mul_f32 v{U+20}, v{U}, v{U}\nv_fmac_f32 v{U+20}, v{U+1}, v{U+1}")
    for i in range(2, 8): a(f"v_add_f32 v{U+18}, v{U+18}, v{U+i}\nv_fmac_f32 v{U+20}, v{U+i}, v{U+i}")
    a(f"v_mov_b32 v{U+19}, v{U+18}\nv_mov_b32 v{U+21}, v{U+20}\ns_nop 1")
    a(f"v_permlane32_swap_b32 v{U+18}, v{U+19}\nv_permlane32_swap_b32 v{U+20}, v{U+21}\ns_nop 1")
    a(f"v_add_f32 v{U}, v{U+18}, v{U+19}\nv_add_f32 v{U+1}, v{U+20}, v{U+21}")
    a(f"""v_and_b32 v{vT}, 31, v{vL}
    s_lshl_b32 s{sT}, s{sW}, 8
    v_lshl_add_u32 v{vT}, v{vT}, 3, s{sT}
    s_mov_b64 exec, 0xffffffff
    ds_write_b64 v{vT}, {vr(U,2)}
    s_mov_b64 exec, -1
    s_waitcnt {"vmcnt(0) " if publish else ""}lgkmcnt(0)
    s_barrier
    s_cmp_eq_u32 s{sW}, 0
    s_cbranch_scc0 {pfx}_done
    v_lshrrev_b32 v{vT}, 5, v{vL}
    v_lshlrev_b32 v{vT}, 9, v{vT}
    v_and_b32 v{vT2}, 31, v{vL}
    v_lshl_add_u32 v{vT}, v{vT2}, 3, v{vT}
    ds_read_b64 v[72:73], v{vT}
    ds_read_b64 v[74:75], v{vT} offset:256
    ds_read_b64 v[76:77], v{vT} offset:1024
    ds_read_b64 v[78:79], v{vT} offset:1280
    s_waitcnt lgkmcnt(0)
    """)
    for j in range(2): a(f"v_add_f32 v{72+j}, v{72+j}, v{74+j}\nv_add_f32 v{76+j}, v{76+j}, v{78+j}\nv_add_f32 v{72+j}, v{72+j}, v{76+j}")
    a(f"""
    s_lshl_b32 s{sT}, s{sRB}, 6
    v_add_u32 v{vT}, s{sT}, v{vL}
    v_lshlrev_b32 v{vT2}, 6, v{vT}
    s_lshl_b32 s{sT}, s{sCB}, 3
    s_add_u32 s{sT}, s{sT}, {hex(WS_ST)}
    buffer_store_dwordx2 v[72:73], v{vT2}, s[{sWS}:{sWS+3}], s{sT} offen {st}
    """)
    if publish:
        a(f"""s_waitcnt vmcnt(0)
        s_lshr_b32 s{sT}, s{sRB}, 1
        s_lshl_b32 s{sT}, s{sT}, 7             ; R * 128 bytes
        s_and_b32 s{sT2}, s{sRB}, 1
        s_lshl_b32 s{sT2}, s{sT2}, 3
        s_add_u32 s{sT2}, s{sT2}, s{sCB}
        s_lshl_b32 s{sT2}, s{sT2}, 2
        s_add_u32 s{sT}, s{sT}, s{sT2}
        s_add_u32 s{sT}, s{sT}, {hex(WS_FLAGS)}
        v_mov_b32 v72, 1
        v_mov_b32 v73, 0
        s_mov_b64 exec, 1
        buffer_store_dword v72, v73, s[{sWS}:{sWS+3}], s{sT} offen sc1
        s_mov_b64 exec, -1""")
    a.label(f"{pfx}_done")
    prof_stamp(a, 3)
    prof_end(a, s_id, sW, 8, sWS, vtmp=32)
    if cont:
        a(f"s_barrier\ns_branch {cont}")
    else:
        a("s_endpgm")
    return 96

FIN_NS = 9
FIN_LDS = FIN_NS * 16384
def gen_final(a, pfx, s_id):
    a.c("==== final ====")
    prof_start(a)
    load_ptrs(a, [("ws", 40), ("wo", 42), ("w4", 44), ("out", 46)])
    setup(a, s_id)
    sO = 48; sN0 = 56; sRow = 57
    NS = FIN_NS; D = NS - 1
    a("s_waitcnt lgkmcnt(0)")
    srd(a, sWS, 40, 41, WS_USED); srd(a, sWm, 44, 45, 1376*512*2); srd(a, sO, 46, 47, 2048*512*2)
    vX1 = 64; vG = 68
    seg_setup(a, WS_H2, 86, 44)
    a(f"v_mov_b32 v{vXd}, v{vL16}\ns_mov_b32 s{sSlotD}, 0\ns_mov_b32 s{sSlot}, 0")
    for c in range(D): dma(a, vXd, NS)
    a(f"""
    s_lshl_b32 s{sN0}, s{sCB}, 2
    s_lshl_b32 s{sT}, s{sWC}, 1
    s_add_u32 s{sN0}, s{sN0}, s{sT}
    s_add_u32 s{sN0}, s{sN0}, s{sKH}
    s_lshl_b32 s{sRow}, s{sRB}, 1
    s_add_u32 s{sRow}, s{sRow}, s{sWR}
    """)
    for i in range(32): a(f"v_mov_b32 v{vAcc[0]+i}, 0")
    prof_stamp(a, 0)
    B, A_ = vAcc[0], vAcc[1]
    loop(a, pfx + "a", 22 - D, B, NS, D, True)
    a(f"s_mov_b32 s{sWm}, s42\ns_mov_b32 s{sWm+1}, s43\ns_mov_b32 s{sWm+2}, {512*512*2}")
    seg_setup(a, WS_OF, 32, 16)
    loop(a, pfx + "b", D, B, NS, D, True)
    prof_stamp(a, 1)
    a(f"""
    s_lshl_b32 s{sT}, s{sRow}, 5
    s_add_u32 s{sT}, s{sT}, s{sN0}
    s_lshl_b32 s{sT}, s{sT}, 10
    s_add_u32 s{sT}, s{sT}, {hex(WS_X1)}
    v_and_b32 v{vT}, 31, v{vL}
    v_lshlrev_b32 v{vT}, 2, v{vT}
    s_lshl_b32 s{sT2}, s{sRow}, 7
    s_add_u32 s{sT2}, s{sT2}, {hex(WS_G)}
    """)
    for i in range(8):
        a(f"s_waitcnt vmcnt({2*(7-i) + (2 if i > 0 else 0)})\ns_barrier")
        Ac = chunk_compute(a, A_, NS)
        if i == 0:
            a(f"buffer_load_dwordx4 {vr(vX1,4)}, v{vL16}, s[{sWS}:{sWS+3}], s{sT} offen")
            a(f"buffer_load_dword v{vG}, v{vT}, s[{sWS}:{sWS+3}], s{sT2} offen")
        chunk_mfma(a, Ac, NS)
    prof_stamp(a, 2)
    a("s_barrier")
    reduce_halves(a, pfx, [vAcc[0], vAcc[1]], 0)
    a("s_waitcnt vmcnt(0)")
    g = 72
    a(f"v_sub_f32 v{g}, 1.0, v{vG}")
    U = 76
    for i in range(4): a(f"v_lshlrev_b32 v{U+2*i}, 16, v{vX1+i}\nv_and_b32 v{U+2*i+1}, 0xffff0000, v{vX1+i}")
    for i in range(8): a(f"v_add_f32 v{B+i}, v{B+i}, v{U+i}\nv_mul_f32 v{B+i}, v{B+i}, v{g}\nv_fmac_f32 v{B+i}, v{A_+i}, v{vG}")
    for i in range(4): a(f"v_cvt_pk_bf16_f32 v{U+i}, v{B+2*i}, v{B+2*i+1}")
    a(f"""s_nop 1
    v_permlane32_swap_b32 v{U}, v{U+2}
    v_permlane32_swap_b32 v{U+1}, v{U+3}
    v_and_b32 v{vT}, 31, v{vL}
    v_lshlrev_b32 v{vT}, 10, v{vT}
    v_lshrrev_b32 v{vT2}, 5, v{vL}
    v_lshl_add_u32 v{vT}, v{vT2}, 4, v{vT}
    s_lshl_b32 s{sT}, s{sRow}, 15
    s_lshl_b32 s{sT2}, s{sN0}, 5
    s_add_u32 s{sT}, s{sT}, s{sT2}
    buffer_store_dwordx4 {vr(U,4)}, v{vT}, s[{sO}:{sO+3}], s{sT} offen
    """)
    prof_stamp(a, 3)
    prof_end(a, s_id, sW, 8, sWS, vtmp=32)
    a("s_endpgm")
    return 96


FO_NS = 9
FO_LDS = FO_NS * 16384
def gen_final_wo(a, pfx, s_id):
    a.c("==== final (wo) ====")
    prof_start(a)
    load_ptrs(a, [("ws", 40), ("wo", 42), ("out", 46)])
    setup(a, s_id)
    sO = 48; sN0 = 56; sRow = 57
    NS = FO_NS
    a("s_waitcnt lgkmcnt(0)")
    srd(a, sWS, 40, 41, WS_USED); srd(a, sWm, 42, 43, 512*512*2); srd(a, sO, 46, 47, 2048*512*2)
    vB = 64; vG = 68
    seg_setup(a, WS_OF, 32, 16)
    a(f"v_mov_b32 v{vXd}, v{vL16}\ns_mov_b32 s{sSlotD}, 0\ns_mov_b32 s{sSlot}, 0")
    for c in range(8): dma(a, vXd, NS)
    a(f"""
    s_lshl_b32 s{sN0}, s{sCB}, 2
    s_lshl_b32 s{sT}, s{sWC}, 1
    s_add_u32 s{sN0}, s{sN0}, s{sT}
    s_add_u32 s{sN0}, s{sN0}, s{sKH}
    s_lshl_b32 s{sRow}, s{sRB}, 1
    s_add_u32 s{sRow}, s{sRow}, s{sWR}
    s_lshl_b32 s{sT}, s{sRow}, 5
    s_add_u32 s{sT}, s{sT}, s{sN0}
    s_lshl_b32 s{sT}, s{sT}, 10
    s_add_u32 s{sT}, s{sT}, {hex(WS_BF)}
    v_and_b32 v{vT}, 31, v{vL}
    v_lshlrev_b32 v{vT}, 2, v{vT}
    s_lshl_b32 s{sT2}, s{sRow}, 7
    s_add_u32 s{sT2}, s{sT2}, {hex(WS_G)}
    buffer_load_dwordx4 {vr(vB,4)}, v{vL16}, s[{sWS}:{sWS+3}], s{sT} offen
    buffer_load_dword v{vG}, v{vT}, s[{sWS}:{sWS+3}], s{sT2} offen
    """)
    A_ = vAcc[0]
    for i in range(16): a(f"v_mov_b32 v{A_+i}, 0")
    prof_stamp(a, 0)
    for i in range(8):
        a(f"s_waitcnt vmcnt({2*(7-i) + 2})\ns_barrier")
        Ac = chunk_compute(a, A_, NS)
        chunk_mfma(a, Ac, NS)
    prof_stamp(a, 1)
    reduce_halves(a, pfx, [A_], 8 * 16384)
    prof_stamp(a, 2)
    a("s_waitcnt vmcnt(0)")
    g = 72; U = 76
    a(f"v_sub_f32 v{g}, 1.0, v{vG}")
    for i in range(4): a(f"v_lshlrev_b32 v{U+2*i}, 16, v{vB+i}\nv_and_b32 v{U+2*i+1}, 0xffff0000, v{vB+i}")
    for i in range(8): a(f"v_mul_f32 v{U+i}, v{U+i}, v{g}\nv_fmac_f32 v{U+i}, v{A_+i}, v{vG}")
    for i in range(4): a(f"v_cvt_pk_bf16_f32 v{A_+i}, v{U+2*i}, v{U+2*i+1}")
    a(f"""s_nop 1
    v_permlane32_swap_b32 v{A_}, v{A_+2}
    v_permlane32_swap_b32 v{A_+1}, v{A_+3}
    v_and_b32 v{vT}, 31, v{vL}
    v_lshlrev_b32 v{vT}, 10, v{vT}
    v_lshrrev_b32 v{vT2}, 5, v{vL}
    v_lshl_add_u32 v{vT}, v{vT2}, 4, v{vT}
    s_lshl_b32 s{sT}, s{sRow}, 15
    s_lshl_b32 s{sT2}, s{sN0}, 5
    s_add_u32 s{sT}, s{sT}, s{sT2}
    buffer_store_dwordx4 {vr(A_,4)}, v{vT}, s[{sO}:{sO+3}], s{sT} offen
    """)
    prof_stamp(a, 3)
    prof_end(a, s_id, sW, 8, sWS, vtmp=32)
    a("s_endpgm")
    return 96
```

```python
import sys, os
from common import *
import k1, attn2, roles64, role_w3, gemm64, chain4
MAIN = "gated_mix__softmax_full_mha__mixer_s_mlp__prompt_kernel"
def build(path, variant="seq5", nempty=0):
    a = Asm()
    hdr = open("gated_mix__softmax_full_mha__mixer_s_mlp__prompt.s.ref").read().split("\n")
    for l in hdr:
        if l.startswith("; Override") : break
        a.L.append(l)
    ks = [("k1_kernel", 256, k1.K1_LDS, lambda p: k1.gen_k1(a, p)),
          ("attn_kernel", 256, attn2.ATT_LDS, lambda p: attn2.gen_attn(a, p, 2)),
          ("w2_kernel", 256, roles64.W2_LDS, lambda p: roles64.gen_w2(a, p, 2)),
          ("w3_kernel", 256, role_w3.W3_LDS, lambda p: role_w3.gen_w3(a, p, 2)),
          (MAIN, 256, roles64.FIN_LDS, lambda p: roles64.gen_final(a, p, 2))]
    if variant == "merge3":
        def mid(p):
            import common
            a(f"s_cmp_lt_u32 s2, 256\ns_cbranch_scc1 {p}_att")
            a(f"s_cmp_lt_u32 s2, 512\ns_cbranch_scc1 {p}_w2")
            a("s_sub_u32 s3, s2, 512")
            common.PROF_BASE = 3 * 0x10000
            n3 = role_w3.gen_w3(a, p + "C", 3, merged=True, prio=int(os.environ.get("PRIO3", "2")))
            a.label(f"{p}_w2")
            a("s_sub_u32 s3, s2, 256")
            common.PROF_BASE = 2 * 0x10000
            n2 = roles64.gen_w2(a, p + "B", 3, publish=True, prio=int(os.environ.get("PRIO2", "2")))
            a.label(f"{p}_att")
            common.PROF_BASE = 1 * 0x10000
            n1 = attn2.gen_attn(a, p + "A", 2, prefetch=True)
            return max(n1, n2, n3)
        ks = [ks[0], ("mid_kernel", 768, max(attn2.ATT_LDS, roles64.W2_LDS, role_w3.W3_LDS), mid), ks[4]]
    if variant == "chain3":
        def mid(p):
            import common
            a(f"s_cmp_lt_u32 s2, 256\ns_cbranch_scc0 {p}_att")
            a("s_mov_b32 s3, s2")
            syn = os.environ.get("SYN")
            if syn == "exit": a("s_endpgm")
            if syn == "sleep": a("\n".join(["s_sleep 127"]*4) + "\ns_endpgm")
            if syn and syn.startswith("valu"):
                n = int(syn[4:])
                a(f"s_mov_b32 s10, {n}\nL_syn:\n" + "\n".join(["v_add_f32 v8, v8, v8"]*8) + "\ns_sleep 2\ns_sub_u32 s10, s10, 1\ns_cmp_lg_u32 s10, 0\ns_cbranch_scc1 L_syn\ns_endpgm")
            if syn and syn.startswith("mfma"):
                n = int(syn[4:])
                a(f"s_mov_b32 s10, {n}\nL_syn:\n" + "\n".join(["v_mfma_f32_32x32x16_bf16 v[16:31], v[8:11], v[12:15], v[16:31]"]*4) + "\ns_sleep 4\ns_sub_u32 s10, s10, 1\ns_cmp_lg_u32 s10, 0\ns_cbranch_scc1 L_syn\ns_endpgm")
            if syn and syn.startswith("dsrd"):
                n = int(syn[4:])
                a(f"v_and_b32 v1, 63, v0\nv_lshlrev_b32 v1, 4, v1\ns_mov_b32 s10, {n}\nL_syn:\n" + "\n".join(["ds_read_b64_tr_b16 v[16:17], v1"]*6) + "\ns_waitcnt lgkmcnt(0)\ns_sleep 2\ns_sub_u32 s10, s10, 1\ns_cmp_lg_u32 s10, 0\ns_cbranch_scc1 L_syn\ns_endpgm")
            common.PROF_BASE = 2 * 0x10000
            pr = os.environ.get("PRIOC")
            n2 = roles64.gen_w2(a, p + "B", 3, publish=True, prio=int(pr) if pr else None, cont=p + "C_start")
            a.label(p + "C_start")
            common.PROF_BASE = 3 * 0x10000
            n3 = role_w3.gen_w3(a, p + "C", 3, merged=True)
            a.label(f"{p}_att")
            a("s_sub_u32 s3, s2, 256")
            common.PROF_BASE = 1 * 0x10000
            n1 = attn2.gen_attn(a, p + "A", 3, prefetch=True, setprio0=os.environ.get("PRIOA"))
            return max(n1, n2, n3)
        ks = [ks[0], ("mid_kernel", 512, max(attn2.ATT_LDS, roles64.W2_LDS, role_w3.W3_LDS), mid), ks[4]]
    if variant in ("chain4", "chain4b"):
        g4 = variant == "chain4"
        def mid(p):
            import common
            a(f"s_cmp_lt_u32 s2, 256\ns_cbranch_scc0 {p}_att")
            a("s_mov_b32 s3, s2")
            n2 = chain4.gen_chain(a, p + "C", 3, with_g4=g4)
            a.label(f"{p}_att")
            a("s_sub_u32 s3, s2, 256")
            common.PROF_BASE = 1 * 0x10000
            n1 = attn2.gen_attn(a, p + "A", 3, prefetch=True, setprio0=os.environ.get("PRIOA", "1"), pf_w4=not g4)
            return max(n1, n2)
        ks = [ks[0], ("mid_kernel", 512, max(attn2.ATT_LDS, chain4.CH_LDS), mid),
              (MAIN, 256, roles64.FO_LDS, lambda p: roles64.gen_final_wo(a, p, 2)) if g4 else ks[4]]
    for e in range(nempty):
        ks.insert(1, ("empty_kernel", 256, 0, None))
    for n, g, lds, _ in ks:
        a.L.append(f"; @launch kernel={n} grid=({g},1,1) block=(512,1,1) lds={lds}")
    a.L.append('.amdgcn_target "amdgcn-amd-amdhsa--gfx950"\n.text')
    descs = ""
    done = set()
    for i, (n, g, lds, f) in enumerate(ks):
        if n in done: continue
        done.add(n)
        if f is None:
            kernel_header(a, n); a("s_endpgm"); descs += kernel_desc(n, 8); continue
        kernel_header(a, n)
        a(f"s_cmp_ge_u32 s2, {g}\ns_cbranch_scc1 L_exit{i}")
        import common
        common.PROF_BASE = (i if variant == "seq5" else [0, 1, 4][i]) * 0x10000
        nv = f(f"K{i}")
        a.label(f"L_exit{i}"); a("s_endpgm")
        descs += kernel_desc(n, nv)
    s = a.text() + '.section .rodata,"a"\n.p2align 6\n' + descs
    open(path, "w").write(s)
if __name__ == "__main__":
    import os
    build(sys.argv[1] if len(sys.argv) > 1 else "all.s", variant=os.environ.get("VARIANT", "seq5"), nempty=int(sys.argv[2]) if len(sys.argv) > 2 else 0)
```

```python
from common import *
import os
ATT_SLOT = 16384
ATT_NS = 5
ATT_XCH = 2 * ATT_SLOT
ATT_LDS = ATT_NS * ATT_SLOT
def vr(b, n=1): return f"v{b}" if n == 1 else f"v[{b}:{b+n-1}]"

def gen_attn(a, pfx, s_id, prof=False, zero_rows=True, setprio=None, prefetch=False, setprio0=None, pf_w4=True, publish=False):
    sWS = 8
    sW, sHEAD, sT = 12, 13, 14
    sKsrc, sVsrc = 15, 16
    sSlotN, sSlotD = 17, 18
    sC = 19
    sMask = 20
    sTmp = 22
    sQoff, sOoff = 23, 24
    sK0, sV0 = 25, 26
    sKH = 27; sQP = 28; sLw = 29
    vLane16 = 1; vKa = 2; vVa = 3; vKa0 = 4; vVa0 = 5; vIdx = 6; vT0 = 7; vT1 = 8; vT2 = 9; vM = [10, 11]
    vQ = [12, 16]; vK = 20; vV0 = 24; vV1 = [28, 32]
    vS = [36, 52]; vO = [68, 84]; vC = 100
    NV = 116
    S = f"s[{sWS}:{sWS+3}]"
    a.c("==== attention role ====")
    prof_start(a)
    if setprio0: a(f"s_setprio {setprio0}")
    a(f"s_load_dwordx2 s[4:5], s[0:1], {KA['ws']}")
    a(f"""
    v_lshrrev_b32 v{vT0}, 6, v0
    v_and_b32 v{vT1}, 63, v0
    v_readfirstlane_b32 s{sW}, v{vT0}
    v_lshlrev_b32 v{vLane16}, 4, v{vT1}
    s_and_b32 s{sTmp}, s{s_id}, 7
    s_lshr_b32 s{sT}, s{s_id}, 3
    s_and_b32 s{sHEAD}, s{sT}, 3
    s_lshl_b32 s{sTmp}, s{sTmp}, 2
    s_add_u32 s{sHEAD}, s{sHEAD}, s{sTmp}      ; head
    s_lshr_b32 s{sT}, s{sT}, 2                 ; qb (0..7)
    s_and_b32 s{sQP}, s{sW}, 3
    s_lshr_b32 s{sKH}, s{sW}, 2
    s_lshl_b32 s{sT}, s{sT}, 3
    s_lshl_b32 s{sTmp}, s{sQP}, 1
    s_add_u32 s{sT}, s{sT}, s{sTmp}
    s_lshl_b32 s{sTmp}, s{sHEAD}, 16           ; head*64*1024
    s_lshl_b32 s{sQoff}, s{sT}, 10
    s_add_u32 s{sQoff}, s{sQoff}, s{sTmp}
    s_lshl_b32 s{sV0}, s{sKH}, 15              ; khalf*32*1024
    s_add_u32 s{sTmp}, s{sTmp}, s{sV0}
    s_add_u32 s{sK0}, s{sTmp}, {hex(WS_KF)}
    s_add_u32 s{sV0}, s{sTmp}, {hex(WS_VF)}
    s_add_u32 s{sOoff}, s{sT}, s{sKH}
    s_lshl_b32 s{sOoff}, s{sOoff}, 15          ; *32*1024
    s_lshl_b32 s{sTmp}, s{sHEAD}, 10
    s_add_u32 s{sOoff}, s{sOoff}, s{sTmp}
    s_add_u32 s{sOoff}, s{sOoff}, {hex(WS_OF)}
    s_lshl_b32 s{sTmp}, s{sQP}, 10
    s_add_u32 s{sKsrc}, s{sK0}, s{sTmp}
    s_add_u32 s{sVsrc}, s{sV0}, s{sTmp}
    s_lshl_b32 s{sLw}, s{sKH}, 13              ; khalf*8192
    s_add_u32 s{sLw}, s{sLw}, s{sTmp}
    s_mov_b32 s{sMask}, 0xffff
    s_mov_b32 s{sMask+1}, 0xffff
    s_waitcnt lgkmcnt(0)
    """)
    srd(a, sWS, 4, 5, WS_USED)
    a(f"s_load_dwordx2 s[32:33], s[0:1], {KA['w4']}\ns_load_dwordx2 s[34:35], s[0:1], {KA['wo']}")
    a(f"""s_lshr_b32 s{sTmp}, s{s_id}, 3
    s_lshl_b32 s{sTmp}, s{sTmp}, 3
    s_add_u32 s{sTmp}, s{sTmp}, s{sW}
    s_lshl_b32 s36, s{sTmp}, 10
    s_mov_b32 s38, 4096""")
    srd(a, 64, 4, 5, WS_USED)
    pf_late = True
    def dma_chunk(slot_sgpr):
        a(f"""
        s_add_u32 m0, s{slot_sgpr}, s{sLw}
        s_nop 0
        buffer_load_dwordx4 v{vLane16}, {S}, s{sKsrc} offen lds
        s_add_u32 m0, m0, 4096
        s_add_u32 s{sKsrc}, s{sKsrc}, 4096
        buffer_load_dwordx4 v{vLane16}, {S}, s{sVsrc} offen lds
        s_add_u32 s{sVsrc}, s{sVsrc}, 4096
        """)
    a(f"buffer_load_dwordx4 {vr(vQ[0],4)}, v{vLane16}, {S}, s{sQoff} offen")
    a(f"buffer_load_dwordx4 {vr(vQ[1],4)}, v{vLane16}, {S}, s{sQoff} offen offset:1024")
    NPRE = int(os.environ.get("ATT_NPRE", ATT_NS - 1))
    for c in range(NPRE):
        a(f"s_mov_b32 s{sSlotD}, {c*ATT_SLOT}")
        dma_chunk(sSlotD)
    a(f"s_mov_b32 s{sSlotD}, {(ATT_NS-1)*ATT_SLOT}\ns_mov_b32 s{sSlotN}, {ATT_SLOT}\ns_mov_b32 s{sC}, 0")
    a(f"""
    s_lshl_b32 s{sTmp}, s{sKH}, 13
    v_add_u32 v{vKa0}, s{sTmp}, v{vLane16}
    v_mov_b32 v{vKa}, v{vKa0}
    v_lshrrev_b32 v{vT0}, 5, v{vT1}            ; ha
    v_and_b32 v{vT2}, 15, v{vT1}               ; m
    v_lshlrev_b32 v{vT0}, 8, v{vT0}
    v_lshlrev_b32 v{vT2}, 4, v{vT2}
    v_add_u32 v{vVa0}, v{vT0}, v{vT2}
    v_add_u32 v{vVa0}, s{sTmp}, v{vVa0}
    v_add_u32 v{vVa0}, 4096, v{vVa0}
    v_mov_b32 v{vVa}, v{vVa0}
    v_mov_b32 v{vIdx}, 0xdddddddd
    """)
    if zero_rows:
        a(f"""v_and_b32 v{vT0}, 27, v{vT1}
        v_cmp_eq_u32 vcc, 16, v{vT0}
        v_mov_b32 v{vT2}, 0x3f803f80
        s_nop 0
        v_cndmask_b32 v{vT0}, 0, v{vT2}, vcc""")
    else:
        a(f"v_mov_b32 v{vT0}, 0x3f803f80")
    for i in range(4):
        a(f"v_mov_b32 v{vV0+i}, v{vT0}\nv_mov_b32 v{vV1[0]+i}, v{vT0}\nv_mov_b32 v{vV1[1]+i}, v{vT0}")
    for i in range(16): a(f"v_mov_b32 v{vO[0]+i}, 0\nv_mov_b32 v{vO[1]+i}, 0")
    a("s_waitcnt lgkmcnt(0)")
    srd(a, 56, 32, 33, 1376*512*2 if (prefetch and pf_w4) else 0); srd(a, 60, 34, 35, 512*512*2 if (prefetch and not publish) else 0)
    a(f"s_waitcnt vmcnt({2*(NPRE-1)})\ns_barrier")
    for c in range(NPRE, ATT_NS - 1):
        a(f"s_mov_b32 s39, {c*ATT_SLOT}")
        dma_chunk(39)
    a(f"ds_read_b128 {vr(vK,4)}, v{vKa}\ns_waitcnt lgkmcnt(0)")
    a(f"v_mfma_f32_32x32x16_bf16 {vr(vS[0],16)}, {vr(vK,4)}, {vr(vQ[0],4)}, 0")
    a(f"v_mfma_f32_32x32x16_bf16 {vr(vS[1],16)}, {vr(vK,4)}, {vr(vQ[1],4)}, 0")
    a(f"s_mov_b64 exec, s[{sMask}:{sMask+1}]")
    a(f"ds_read_b128 {vr(vV0,4)}, v{vVa}\nds_read_b128 {vr(vV1[0],4)}, v{vVa} offset:512")
    a("s_mov_b64 exec, -1\ns_nop 15")
    s0 = vS[0]
    a(f"v_max3_f32 v{vT0}, v{s0}, v{s0+1}, v{s0+2}")
    for i in range(3, 31, 2): a(f"v_max3_f32 v{vT0}, v{vT0}, v{s0+i}, v{s0+i+1}")
    a(f"v_max_f32 v{vT0}, v{vT0}, v{s0+31}")
    def cross_max(dst):
        a(f"v_mov_b32 v{vT1}, v{vT0}\ns_nop 1\nv_permlane32_swap_b32 v{vT0}, v{vT1}\ns_nop 1\nv_max_f32 v{dst}, v{vT0}, v{vT1}")
    def setC(src):
        for i in range(16): a(f"v_mul_f32 v{vC+i}, -1.0, v{src}")
    cross_max(vM[0])
    a(f"v_mov_b32 v{vM[1]}, v{vM[0]}")
    setC(vM[0])
    for i in range(8, 16): a(f"v_mov_b32 v{vS[1]+i}, 0")
    a(f"v_mfma_f32_32x32x16_bf16 {vr(vS[0],16)}, {vr(vK,4)}, {vr(vQ[0],4)}, {vr(vC,16)}")
    if setprio is not None:
        a(f"s_cmp_eq_u32 s{sKH}, {setprio}\ns_cbranch_scc0 {pfx}_noprio\ns_setprio 1")
        a.label(f"{pfx}_noprio")
    IT = os.environ.get("ATT_ITST")
    if not IT: prof_stamp(a, 0)
    if setprio0: a("s_setprio 0")
    a("s_nop 15")
    a.L.append(".p2align 6")
    a.label(f"{pfx}_loop")
    def ex(b, i): a(f"v_exp_f32 v{vS[b]+i}, v{vS[b]+i}")
    def SM(o, v, s): a(f"v_smfmac_f32_32x32x32_bf16 {vr(vO[o],16)}, {vr(v,4)}, {vr(s,8)}, v{vIdx}")
    def QK(b): a(f"v_mfma_f32_32x32x16_bf16 {vr(vS[b],16)}, {vr(vK,4)}, {vr(vQ[b],4)}, {vr(vC,16)}")
    for p in range(4):
        ex(0, 0); ex(0, 1)
        SM(1, vV1[(p-1) & 1], vS[1] + 8)
        ex(0, 2); ex(0, 3); ex(0, 4)
        QK(1)
        if p == 3:
            a(f"s_waitcnt vmcnt({2*(ATT_NS-3)})")
            if os.environ.get("ATT_ITST"):
                lst = [int(x) for x in os.environ["ATT_ITST"].split(",")]
                pre = os.environ.get("ATT_PRE")
                if pre:
                    for i, c in enumerate(lst):
                        a(f"s_cmp_eq_u32 s{sC}, {c}\ns_cbranch_scc0 {pfx}_isp{i}")
                        prof_stamp(a, 2*i) if i < 2 else None
                        a.label(f"{pfx}_isp{i}")
            a("s_barrier")
            if os.environ.get("ATT_ITST"):
                for i, c in enumerate(lst):
                    a(f"s_cmp_eq_u32 s{sC}, {c}\ns_cbranch_scc0 {pfx}_is{i}")
                    if pre:
                        if i < 2: prof_stamp(a, 2*i+1)
                    else: prof_stamp(a, i)
                    a.label(f"{pfx}_is{i}")
            a(f"v_add_u32 v{vKa}, s{sSlotN}, v{vKa0}")
        a(f"ds_read_b128 {vr(vK,4)}, v{vKa} offset:{((p+1)&3)*1024}")
        for i in range(5, 10): ex(0, i)
        a("s_waitcnt lgkmcnt(2)")
        SM(0, vV0, vS[0])
        if p == 3:
            a(f"""s_add_u32 m0, s{sSlotD}, s{sLw}
            s_nop 0
            buffer_load_dwordx4 v{vLane16}, s[64:67], s{sKsrc} offen lds
            s_add_u32 m0, m0, 4096
            s_add_u32 s{sKsrc}, s{sKsrc}, s38
            buffer_load_dwordx4 v{vLane16}, s[64:67], s{sVsrc} offen lds
            s_add_u32 s{sVsrc}, s{sVsrc}, s38""")
        for i in range(10, 16): ex(0, i)
        ex(1, 0); ex(1, 1)
        a("s_waitcnt lgkmcnt(0)")
        SM(0, vV1[p & 1], vS[0] + 8)
        ex(1, 2); ex(1, 3); ex(1, 4)
        QK(0)
        for i in range(5, 10): ex(1, i)
        SM(1, vV0, vS[1])
        if p == 3:
            a(f"v_add_u32 v{vVa}, s{sSlotN}, v{vVa0}")
        voff = ((p + 1) & 3) * 1024
        a(f"s_mov_b64 exec, s[{sMask}:{sMask+1}]")
        a(f"ds_read_b128 {vr(vV0,4)}, v{vVa} offset:{voff}\nds_read_b128 {vr(vV1[(p+1)&1],4)}, v{vVa} offset:{voff+512}")
        a("s_mov_b64 exec, -1")
        for i in range(10, 16): ex(1, i)
    LASTC = 8 - (ATT_NS - 1)
    a(f"""
    s_add_u32 s{sSlotN}, s{sSlotN}, {ATT_SLOT}
    s_cmp_eq_u32 s{sSlotN}, {ATT_NS*ATT_SLOT}
    s_cselect_b32 s{sSlotN}, 0, s{sSlotN}
    s_add_u32 s{sSlotD}, s{sSlotD}, {ATT_SLOT}
    s_cmp_eq_u32 s{sSlotD}, {ATT_NS*ATT_SLOT}
    s_cselect_b32 s{sSlotD}, 0, s{sSlotD}
    s_add_u32 s{sC}, s{sC}, 1
    s_cmp_eq_u32 s{sC}, {LASTC}
    s_cbranch_scc0 {pfx}_nsw1
    s_mov_b32 s64, s56
    s_mov_b32 s65, s57
    s_mov_b32 s66, s58
    s_mov_b32 s{sKsrc}, s36
    s_add_u32 s{sVsrc}, s36, 0x40000
    s_mov_b32 s38, 0x80000
    {pfx}_nsw1:
    s_cmp_eq_u32 s{sC}, 7
    s_cbranch_scc0 {pfx}_nsw2
    s_mov_b32 s64, s60
    s_mov_b32 s65, s61
    s_mov_b32 s66, s62
    s_mov_b32 s{sKsrc}, s36
    s_add_u32 s{sVsrc}, s36, 0x40000
    {pfx}_nsw2:
    s_cmp_lt_u32 s{sC}, 8
    s_cbranch_scc1 {pfx}_loop
    """)
    if not IT: prof_stamp(a, 1)
    a("s_nop 1")
    SM(1, vV1[1], vS[1] + 8)
    a("s_waitcnt lgkmcnt(0)\ns_nop 15")
    a(f"v_add_f32 v{vT0}, abs(v{vO[0]+8}), abs(v{vO[1]+8})")
    for o in range(2):
        for i in range(8): a(f"v_add_f32 v{vT0}, abs(v{vO[o]+i}), v{vT0}")
    a(f"""v_min_f32 v{vT1}, v{vO[0]+8}, v{vO[1]+8}
    s_mov_b32 s{sTmp}, 0x207
    v_cmp_class_f32 vcc, v{vT0}, s{sTmp}
    s_mov_b32 s{sTmp}, 0x2b800000
    v_cmp_gt_f32 s[30:31], s{sTmp}, v{vT1}
    s_nop 4
    s_or_b64 vcc, vcc, s[30:31]
    s_cmp_lg_u64 vcc, 0
    s_cbranch_scc1 {pfx}_fallback
    """)
    a.label(f"{pfx}_merge")
    if not IT: prof_stamp(a, 2)
    a("s_barrier")
    a(f"""s_mul_i32 s{sTmp}, s{sW}, 2560
    s_add_u32 s{sTmp}, s{sTmp}, {ATT_XCH}
    v_add_u32 v{vKa}, s{sTmp}, v{vLane16}
    s_xor_b32 s{sC}, s{sW}, 4
    s_mul_i32 s{sC}, s{sC}, 2560
    s_add_u32 s{sC}, s{sC}, {ATT_XCH}
    v_add_u32 v{vVa}, s{sC}, v{vLane16}
    v_lshrrev_b32 v{vT2}, 1, v{vLane16}
    v_add_u32 v{vKa0}, s{sTmp}, v{vT2}
    v_add_u32 v{vVa0}, s{sC}, v{vT2}
    s_cmp_eq_u32 s{sKH}, 0
    s_cbranch_scc0 {pfx}_m1
    """)
    def merge(keep, give):
        a(f"v_mov_b32 v{vO[give]+9}, v{vM[give]}")
        a(f"ds_write_b128 v{vKa}, {vr(vO[give],4)}\nds_write_b128 v{vKa}, {vr(vO[give]+4,4)} offset:1024\nds_write_b64 v{vKa0}, {vr(vO[give]+8,2)} offset:2048")
        a("s_waitcnt lgkmcnt(0)\ns_barrier")
        g = vO[give]
        a(f"ds_read_b128 {vr(g,4)}, v{vVa}\nds_read_b128 {vr(g+4,4)}, v{vVa} offset:1024\nds_read_b64 {vr(g+8,2)}, v{vVa0} offset:2048")
        a("s_waitcnt lgkmcnt(0)")
        k = vO[keep]
        a(f"""v_max_f32 v{vT0}, v{vM[keep]}, v{g+9}
        v_sub_f32 v{vT1}, v{vM[keep]}, v{vT0}
        v_sub_f32 v{vT2}, v{g+9}, v{vT0}
        v_exp_f32 v{vT1}, v{vT1}
        v_exp_f32 v{vT2}, v{vT2}
        s_nop 0
        v_mul_f32 v{k+8}, v{k+8}, v{vT1}
        v_fmac_f32 v{k+8}, v{g+8}, v{vT2}
        v_rcp_f32 v{vT0}, v{k+8}
        s_nop 0
        v_mul_f32 v{vT1}, v{vT1}, v{vT0}
        v_mul_f32 v{vT2}, v{vT2}, v{vT0}""")
        for i in range(8): a(f"v_mul_f32 v{k+i}, v{k+i}, v{vT1}\nv_fmac_f32 v{k+i}, v{g+i}, v{vT2}")
        for i in range(4): a(f"v_cvt_pk_bf16_f32 v{vK+i}, v{k+2*i}, v{k+2*i+1}")
        a(f"s_branch {pfx}_store")
    merge(0, 1)
    a.label(f"{pfx}_m1")
    merge(1, 0)
    a.label(f"{pfx}_store")
    a(f"buffer_store_dwordx4 {vr(vK,4)}, v{vLane16}, {S}, s{sOoff} offen {'sc1' if publish else ''}")
    if publish:
        a(f"""s_waitcnt vmcnt(0)
        s_barrier
        s_cmp_eq_u32 s{sW}, 0
        s_cbranch_scc0 {pfx}_nflag
        s_lshr_b32 s{sTmp}, s{s_id}, 5
        s_lshl_b32 s{sTmp}, s{sTmp}, 5
        s_add_u32 s{sTmp}, s{sTmp}, s{sHEAD}
        s_lshl_b32 s{sTmp}, s{sTmp}, 2
        s_add_u32 s{sTmp}, s{sTmp}, {hex(WS_FLAGS + 4096)}
        v_mov_b32 v{vT0}, 1
        v_mov_b32 v{vT1}, 0
        s_mov_b64 exec, 1
        buffer_store_dword v{vT0}, v{vT1}, {S}, s{sTmp} offen sc1
        s_mov_b64 exec, -1""")
        a.label(f"{pfx}_nflag")
    if not IT: prof_stamp(a, 3)
    prof_end(a, s_id, sW, 8, sWS, vtmp=36)
    a("s_endpgm")
    a.label(f"{pfx}_fallback")
    a(f"s_lshl_b32 s{sTmp}, s{sKH}, 13\nv_subrev_u32 v{vVa}, s{sTmp}, v{vVa0}\nv_subrev_u32 v{vVa}, 4096, v{vVa}")
    for t in range(2):
        a(f"v_mov_b32 v{vT0}, 0xff800000\ns_mov_b32 s{sC}, 0\ns_mov_b32 s{sKsrc}, s{sK0}")
        a.label(f"{pfx}_fb1_{t}")
        a(f"buffer_load_dwordx4 {vr(vK,4)}, v{vLane16}, {S}, s{sKsrc} offen\ns_waitcnt vmcnt(0)")
        a(f"v_mfma_f32_32x32x16_bf16 {vr(vS[0],16)}, {vr(vK,4)}, {vr(vQ[t],4)}, 0\ns_nop 15")
        for i in range(0, 16, 2): a(f"v_max3_f32 v{vT0}, v{vT0}, v{s0+i}, v{s0+i+1}")
        a(f"s_add_u32 s{sKsrc}, s{sKsrc}, 1024\ns_add_u32 s{sC}, s{sC}, 1\ns_cmp_lt_u32 s{sC}, 32\ns_cbranch_scc1 {pfx}_fb1_{t}")
        cross_max(vM[t])
        setC(vM[t])
        for i in range(16): a(f"v_mov_b32 v{vO[t]+i}, 0")
        a(f"s_mov_b32 s{sC}, 0\ns_mov_b32 s{sKsrc}, s{sK0}\ns_mov_b32 s{sVsrc}, s{sV0}")
        a.label(f"{pfx}_fb2_{t}")
        a(f"buffer_load_dwordx4 {vr(vK,4)}, v{vLane16}, {S}, s{sKsrc} offen")
        a(f"s_mov_b64 exec, s[{sMask}:{sMask+1}]")
        a(f"buffer_load_dwordx4 {vr(vV0,4)}, v{vVa}, {S}, s{sVsrc} offen")
        a(f"buffer_load_dwordx4 {vr(vV1[0],4)}, v{vVa}, {S}, s{sVsrc} offen offset:512")
        a("s_mov_b64 exec, -1\ns_waitcnt vmcnt(0)")
        a(f"v_mfma_f32_32x32x16_bf16 {vr(vS[0],16)}, {vr(vK,4)}, {vr(vQ[t],4)}, {vr(vC,16)}\ns_nop 15")
        for i in range(16): ex(0, i)
        a("s_nop 3")
        SM(t, vV0, vS[0]); SM(t, vV1[0], vS[0] + 8)
        a(f"s_add_u32 s{sKsrc}, s{sKsrc}, 1024\ns_add_u32 s{sVsrc}, s{sVsrc}, 1024\ns_add_u32 s{sC}, s{sC}, 1\ns_cmp_lt_u32 s{sC}, 32\ns_cbranch_scc1 {pfx}_fb2_{t}")
    a(f"s_nop 15\ns_branch {pfx}_merge")
    return NV
```

```python
from common import *
from k1 import vr, f2u, gelu_pk, gelu_consts, ln_pk, emit_interleaved
CH_LDS = 81920
sWS = 8; sWm = 12; sX = 48
sW, sWR, sWC, sRB, sCB, sC, sT, sT2 = 16, 17, 18, 19, 20, 21, 22, 23
sSlot, sSlotD, sKs, sXb, sWb, sKmax, sLd, sRow, sN0 = 24, 25, 26, 27, 28, 29, 30, 31, 32
vL = 1; vL16 = 2; vWd = 3; vXa0 = 4; vWa0 = 5; vXa = 6; vWa = 7; vT = 8; vT2 = 9; vT3 = 10
P = lambda r: f"v[{r}:{r+1}]"

def wait_flags(a, pfx, s_off, n):
    a(f"""s_cmp_eq_u32 s{sW}, 0
    s_cbranch_scc0 {pfx}_wb
    v_min_u32 v{vT}, {n-1}, v{vL}
    v_lshlrev_b32 v{vT}, 2, v{vT}""")
    a.label(f"{pfx}_poll")
    a(f"""buffer_load_dword v{vT2}, v{vT}, s[{sWS}:{sWS+3}], s{s_off} offen sc1
    s_waitcnt vmcnt(0)
    v_cmp_ne_u32 vcc, 1, v{vT2}
    s_nop 4
    s_cmp_eq_u64 vcc, 0
    s_cbranch_scc1 {pfx}_wb
    s_sleep 4
    s_branch {pfx}_poll""")
    a.label(f"{pfx}_wb")
    a("s_barrier")
def set_flag(a, s_off):
    a(f"""v_mov_b32 v{vT}, 1
    v_mov_b32 v{vT2}, 0
    s_mov_b64 exec, 1
    buffer_store_dword v{vT}, v{vT2}, s[{sWS}:{sWS+3}], s{s_off} offen sc1
    s_mov_b64 exec, -1""")

vXf = 12; vWf = 28; vAcc = 44
def t64_setup(a):
    a(f"""
    s_lshr_b32 s{sWR}, s{sW}, 1
    s_and_b32 s{sWC}, s{sW}, 1
    s_lshl_b32 s{sLd}, s{sW}, 11
    v_lshrrev_b32 v{vT}, 3, v{vL}
    v_bfe_u32 v{vT2}, v{vL}, 4, 1
    v_lshlrev_b32 v{vT2}, 2, v{vT2}
    v_and_b32 v{vT3}, 7, v{vL}
    v_xor_b32 v{vT2}, v{vT2}, v{vT3}
    v_lshlrev_b32 v{vT2}, 4, v{vT2}
    v_lshl_add_u32 v{vWd}, v{vT}, 10, v{vT2}
    s_lshl_b32 s{sT}, s{sWR}, 10
    v_add_u32 v{vXa0}, s{sT}, v{vL16}
    v_lshrrev_b32 v{vT}, 5, v{vL}
    v_lshlrev_b32 v{vT}, 9, v{vT}
    v_bfe_u32 v{vT2}, v{vL}, 2, 2
    v_lshl_add_u32 v{vT}, v{vT2}, 7, v{vT}
    v_lshrrev_b32 v{vT2}, 1, v{vT2}
    v_xor_b32 v{vT2}, s{sWC}, v{vT2}
    v_lshl_add_u32 v{vT}, v{vT2}, 6, v{vT}
    v_bfe_u32 v{vT2}, v{vL}, 4, 1
    v_lshl_add_u32 v{vT}, v{vT2}, 5, v{vT}
    v_and_b32 v{vT2}, 3, v{vL}
    v_lshl_add_u32 v{vT}, v{vT2}, 3, v{vT}
    v_add_u32 v{vWa0}, 8192, v{vT}
    """)
def t64_tile(a, s_id):
    a(f"""
    s_and_b32 s{sT}, s{s_id}, 7
    s_lshr_b32 s{sT2}, s{s_id}, 3
    s_and_b32 s{sRB}, s{sT2}, 3
    s_lshl_b32 s{sT}, s{sT}, 2
    s_add_u32 s{sRB}, s{sRB}, s{sT}           ; rb 0..31
    s_lshr_b32 s{sCB}, s{sT2}, 2              ; cb 0..7
    s_lshl_b32 s{sRow}, s{sRB}, 1
    s_add_u32 s{sRow}, s{sRow}, s{sWR}
    s_lshl_b32 s{sN0}, s{sCB}, 2
    s_lshl_b32 s{sT}, s{sWC}, 1
    s_add_u32 s{sN0}, s{sN0}, s{sT}
    """)
def t64_seg(a, xbase, xks):
    a(f"""
    s_mov_b32 s{sKs}, s{sW}
    s_lshl_b32 s{sT}, s{sRB}, 1
    s_mul_i32 s{sXb}, s{sT}, {xks*1024}
    s_add_u32 s{sXb}, s{sXb}, {hex(xbase)}
    s_lshl_b32 s{sWb}, s{sCB}, 7
    s_mov_b32 s{sKmax}, {xks-1}
    """)
def t64_dma(a, xv, xks, nslots, xf=""):
    a(f"""
    s_min_u32 s{sT}, s{sKs}, s{sKmax}
    s_lshl_b32 s{sT}, s{sT}, 10
    s_add_u32 s{sT}, s{sT}, s{sXb}
    s_add_u32 m0, s{sSlotD}, s{sLd}
    s_lshl_b32 s{sT2}, s{sKs}, 14
    buffer_load_dwordx4 v{xv}, s[{sWS}:{sWS+3}], s{sT} offen {xf} lds
    s_add_u32 m0, m0, 1024
    s_add_u32 s{sT}, s{sT}, {xks*1024}
    buffer_load_dwordx4 v{xv}, s[{sWS}:{sWS+3}], s{sT} offen {xf} lds
    s_add_u32 m0, m0, 7168
    s_add_u32 s{sT2}, s{sT2}, s{sWb}
    buffer_load_dwordx4 v{vWd}, s[{sWm}:{sWm+3}], s{sT2} offen lds
    s_add_u32 m0, m0, 1024
    s_add_u32 s{sT2}, s{sT2}, 8192
    buffer_load_dwordx4 v{vWd}, s[{sWm}:{sWm+3}], s{sT2} offen lds
    s_add_u32 s{sKs}, s{sKs}, 4
    s_add_u32 s{sSlotD}, s{sSlotD}, 16384
    s_cmp_eq_u32 s{sSlotD}, {nslots*16384}
    s_cselect_b32 s{sSlotD}, 0, s{sSlotD}
    """)
def t64_reads(a):
    a(f"v_add_u32 v{vXa}, s{sSlot}, v{vXa0}\nv_add_u32 v{vWa}, s{sSlot}, v{vWa0}")
    for ks in range(4):
        a(f"ds_read_b128 {vr(vXf+4*ks,4)}, v{vXa} offset:{ks*2048}")
        a(f"ds_read_b64_tr_b16 {vr(vWf+4*ks,2)}, v{vWa} offset:{ks*2048}\nds_read_b64_tr_b16 {vr(vWf+4*ks+2,2)}, v{vWa} offset:{ks*2048+1024}")
def t64_mfma(a, nslots, first=False, nks=4):
    A = vr(vAcc, 16)
    for ks in range(4):
        a(f"s_waitcnt lgkmcnt({9-3*ks})")
        if ks < nks:
            a(f"v_mfma_f32_32x32x16_bf16 {A}, {vr(vWf+4*ks,4)}, {vr(vXf+4*ks,4)}, {'0' if first and ks == 0 else A}")
        if ks == 0:
            a(f"s_add_u32 s{sSlot}, s{sSlot}, 16384\ns_cmp_eq_u32 s{sSlot}, {nslots*16384}\ns_cselect_b32 s{sSlot}, 0, s{sSlot}")
def t64_chunk(a, vm, nslots, issue=None, first=False, nks=4):
    a(f"s_waitcnt vmcnt({vm})\ns_barrier")
    t64_reads(a)
    if issue: issue()
    t64_mfma(a, nslots, first, nks)

def gen_g0(a, pfx, s_id):
    NS = 4; XT = NS * 16384
    a.c("==== G0 ====")
    prof_start(a)
    t64_tile(a, s_id)
    vXd = [60, 61, 62, 63]
    a(f"v_and_b32 v{vT}, 31, v{vL}\nv_lshrrev_b32 v{vT2}, 5, v{vL}\nv_lshlrev_b32 v{vT2}, 9, v{vT2}")
    for i, d in enumerate((1, -1, 2, -2)):
        r = vXd[i]
        a(f"""v_add_u32 v{vT3}, {32 - d}, v{vT}
        v_and_b32 v{r}, 31, v{vT3}
        v_lshl_add_u32 v{r}, v{r}, 4, v{vT2}
        v_lshrrev_b32 v{vT3}, 5, v{vT3}
        v_lshl_add_u32 v{r}, v{vT3}, 15, v{r}""")
    a(f"""
    v_lshrrev_b32 v{vT}, 3, v{vL}
    v_and_b32 v{vT2}, 7, v{vL}
    v_lshlrev_b32 v{vT2}, 4, v{vT2}
    v_lshl_add_u32 v{vT3}, v{vT}, 10, v{vT2}
    s_lshl_b32 s{sT}, s{sRB}, 6
    s_lshl_b32 s{sT2}, s{sW}, 4
    s_add_u32 s{sT}, s{sT}, s{sT2}
    s_lshl_b32 s{sT}, s{sT}, 10
    s_lshl_b32 s{sT2}, s{sCB}, 7
    s_add_u32 s{sT}, s{sT}, s{sT2}
    s_lshl_b32 s{sT2}, s{sW}, 11
    s_add_u32 m0, s{sT2}, {XT}
    s_mov_b32 s{sWm}, s42
    s_mov_b32 s{sWm+1}, s43
    s_mov_b32 s{sWm+2}, {512*512*2}
    buffer_load_dwordx4 v{vT3}, s[{sX}:{sX+3}], s{sT} offen lds
    s_add_u32 m0, m0, 1024
    s_add_u32 s{sT}, s{sT}, 8192
    buffer_load_dwordx4 v{vT3}, s[{sX}:{sX+3}], s{sT} offen lds
    """)
    t64_seg(a, WS_H1 - 32768, 32)
    a(f"s_mov_b32 s{sSlotD}, 0\ns_mov_b32 s{sSlot}, 0")
    for c in range(3): t64_dma(a, vXd[c >> 1], 32, NS)
    prof_stamp(a, 0)
    for c in range(8):
        vm = 4 * min(2, 7 - c)
        iss = (lambda cc=c + 3: t64_dma(a, vXd[cc >> 1], 32, NS)) if c + 3 < 8 else None
        t64_chunk(a, vm, NS, iss, first=(c == 0))
    prof_stamp(a, 1)
    vR = 12; U = 20
    a(f"""
    v_and_b32 v{vT}, 31, v{vL}
    s_lshl_b32 s{sT}, s{sWR}, 12
    v_lshl_add_u32 v{vT}, v{vT}, 7, s{sT}
    v_lshrrev_b32 v{vT2}, 5, v{vL}
    v_lshl_add_u32 v{vT}, v{vT2}, 3, v{vT}
    s_lshl_b32 s{sT}, s{sWC}, 6
    s_add_u32 s{sT}, s{sT}, {XT}
    v_add_u32 v{vT}, s{sT}, v{vT}""")
    for i in range(4): a(f"ds_read_b64 {vr(vR+2*i,2)}, v{vT} offset:{16*i}")
    a("s_nop 4\ns_waitcnt lgkmcnt(0)")
    for i in range(8): a(f"v_lshlrev_b32 v{U+2*i}, 16, v{vR+i}\nv_and_b32 v{U+2*i+1}, 0xffff0000, v{vR+i}")
    for i in range(0, 16, 2): a(f"v_pk_add_f32 {P(vAcc+i)}, {P(vAcc+i)}, {P(U+i)}")
    for i in range(8): a(f"v_cvt_pk_bf16_f32 v{vR+i}, v{vAcc+2*i}, v{vAcc+2*i+1}")
    a(f"""s_lshl_b32 s{sT}, s{sRow}, 5
    s_add_u32 s{sT}, s{sT}, s{sN0}
    s_lshl_b32 s{sT}, s{sT}, 10
    s_add_u32 s{sT}, s{sT}, {hex(WS_X1)}
    buffer_store_dwordx4 {vr(vR,4)}, v{vL16}, s[{sWS}:{sWS+3}], s{sT} offen sc1
    buffer_store_dwordx4 {vr(vR+4,4)}, v{vL16}, s[{sWS}:{sWS+3}], s{sT} offen offset:1024 sc1""")
    for i in range(8): a(f"v_lshlrev_b32 v{U+2*i}, 16, v{vR+i}\nv_and_b32 v{U+2*i+1}, 0xffff0000, v{vR+i}")
    a(f"v_pk_add_f32 {P(40)}, {P(U)}, {P(U+2)}\nv_pk_mul_f32 {P(42)}, {P(U)}, {P(U)}\nv_pk_fma_f32 {P(42)}, {P(U+2)}, {P(U+2)}, {P(42)}")
    for i in range(4, 16, 2): a(f"v_pk_add_f32 {P(40)}, {P(40)}, {P(U+i)}\nv_pk_fma_f32 {P(42)}, {P(U+i)}, {P(U+i)}, {P(42)}")
    a(f"""v_add_f32 v40, v40, v41
    v_add_f32 v42, v42, v43
    v_and_b32 v{vT}, 31, v{vL}
    s_lshl_b32 s{sT}, s{sW}, 9
    v_lshrrev_b32 v{vT2}, 5, v{vL}
    v_lshl_add_u32 v{vT}, v{vT}, 3, s{sT}
    v_mov_b32 v41, v42
    v_lshl_add_u32 v{vT}, v{vT2}, 8, v{vT}
    s_barrier
    ds_write_b64 v{vT}, {P(40)}
    s_waitcnt vmcnt(0) lgkmcnt(0)
    s_barrier
    s_lshr_b32 s{sT}, s{sRB}, 1
    s_lshl_b32 s{sT}, s{sT}, 7
    s_and_b32 s{sT2}, s{sRB}, 1
    s_lshl_b32 s{sT2}, s{sT2}, 3
    s_add_u32 s{sT2}, s{sT2}, s{sCB}
    s_lshl_b32 s{sT2}, s{sT2}, 2
    s_add_u32 s33, s{sT}, s{sT2}
    s_add_u32 s33, s33, {hex(WS_FLAGS)}
    s_cmp_eq_u32 s{sW}, 0
    s_cbranch_scc0 {pfx}_done
    v_lshrrev_b32 v{vT}, 5, v{vL}
    v_lshlrev_b32 v{vT}, 10, v{vT}
    v_and_b32 v{vT2}, 31, v{vL}
    v_lshl_add_u32 v{vT}, v{vT2}, 3, v{vT}
    ds_read_b64 v[20:21], v{vT}
    ds_read_b64 v[22:23], v{vT} offset:256
    ds_read_b64 v[24:25], v{vT} offset:512
    ds_read_b64 v[26:27], v{vT} offset:768
    s_lshl_b32 s{sT}, s{sRB}, 6
    v_add_u32 v{vT}, s{sT}, v{vL}
    v_lshlrev_b32 v{vT2}, 6, v{vT}
    s_lshl_b32 s{sT}, s{sCB}, 3
    s_add_u32 s{sT}, s{sT}, {hex(WS_ST)}
    s_waitcnt lgkmcnt(0)
    v_pk_add_f32 v[20:21], v[20:21], v[22:23]
    v_pk_add_f32 v[24:25], v[24:25], v[26:27]
    v_pk_add_f32 v[20:21], v[20:21], v[24:25]
    buffer_store_dwordx2 v[20:21], v{vT2}, s[{sWS}:{sWS+3}], s{sT} offen sc1
    s_waitcnt vmcnt(0)""")
    set_flag(a, 33)
    a.label(f"{pfx}_done")
    prof_stamp(a, 2); prof_stamp(a, 3)
    prof_end(a, s_id, sW, 8, sWS, vtmp=64)

G2_SLOT = 12288; G2_NS = 5; G2_CS = G2_NS * G2_SLOT
def gen_g2(a, pfx, s_id):
    sS = [34, 35, 36]; sTbk = 37; sXs = 38; sR2 = 39; sC2b = 40
    vWa = [4, 5, 6]; vSt = 124
    vX = 12
    vA = [44, 60, 76]; vCS = 92; vWf = [108, 108]; vOne = 120
    vW = [108, 96]
    a.c("==== G2 ====")
    prof_start(a)
    a(f"""
    s_and_b32 s{sT}, s{s_id}, 7
    s_lshr_b32 s{sT2}, s{s_id}, 3
    s_lshr_b32 s{sR2}, s{sT}, 1
    s_lshl_b32 s{sR2}, s{sR2}, 2
    s_and_b32 s{sC2b}, s{sT2}, 3
    s_add_u32 s{sR2}, s{sR2}, s{sC2b}           ; rb 0..15
    s_and_b32 s{sC2b}, s{sT}, 1
    s_lshl_b32 s{sC2b}, s{sC2b}, 3
    s_lshr_b32 s{sT2}, s{sT2}, 2
    s_add_u32 s{sC2b}, s{sC2b}, s{sT2}          ; cb 0..15
    s_cmp_ge_u32 s{sC2b}, 15
    s_cbranch_scc1 {pfx}_end
    s_lshl_b32 s{sTbk}, s{sR2}, 2
    s_add_u32 s{sTbk}, s{sTbk}, s{sW}           ; t-block
    s_mov_b32 s{sWm}, s44
    s_mov_b32 s{sWm+1}, s45
    s_mov_b32 s{sWm+2}, {512*1376*2}
    s_mul_i32 s{sLd}, s{sW}, 3072
    s_mul_i32 s{sWb}, s{sW}, {16*2752}
    s_mul_i32 s{sT}, s{sC2b}, 192
    s_add_u32 s{sWb}, s{sWb}, s{sT}
    v_lshrrev_b32 v{vT}, 2, v{vL}
    v_mul_u32_u24 v{vT}, 2752, v{vT}
    v_and_b32 v{vT2}, 3, v{vL}
    v_lshl_add_u32 v{vWd}, v{vT2}, 4, v{vT}
    s_lshl_b32 s{sXs}, s{sTbk}, 15
    s_add_u32 s{sXs}, s{sXs}, {hex(WS_X1)}
    """)
    def wdma(c):
        slot = (c % G2_NS) * G2_SLOT
        a(f"s_add_u32 m0, s{sLd}, {slot}\ns_add_u32 s{sT}, s{sWb}, {c*4*16*2752}")
        for j in range(3):
            a(f"buffer_load_dwordx4 v{vWd}, s[{sWm}:{sWm+3}], s{sT} offen lds")
            if j < 2: a(f"s_add_u32 m0, m0, 1024\ns_add_u32 s{sT}, s{sT}, 64")
    D = G2_NS - 1
    for c in range(D): wdma(c)
    for p in range(3):
        a(f"""s_add_u32 s{sS[p]}, s{sW}, {p}
        s_cmp_ge_u32 s{sS[p]}, 3
        s_cselect_b32 s{sT}, 3, 0
        s_sub_u32 s{sS[p]}, s{sS[p]}, s{sT}
        s_cmp_ge_u32 s{sS[p]}, 3
        s_cselect_b32 s{sT}, 3, 0
        s_sub_u32 s{sS[p]}, s{sS[p]}, s{sT}""")
    a(f"""
    v_lshrrev_b32 v{vT}, 5, v{vL}
    v_lshlrev_b32 v{vT}, 8, v{vT}
    v_bfe_u32 v{vT2}, v{vL}, 2, 2
    v_lshl_add_u32 v{vT}, v{vT2}, 6, v{vT}
    v_bfe_u32 v{vT2}, v{vL}, 4, 1
    v_lshl_add_u32 v{vT}, v{vT2}, 5, v{vT}
    v_and_b32 v{vT2}, 3, v{vL}
    v_lshl_add_u32 v{vT}, v{vT2}, 3, v{vT}
    """)
    for p in range(3): a(f"s_lshl_b32 s{sT}, s{sS[p]}, 10\nv_add_u32 v{vWa[p]}, s{sT}, v{vT}")
    for i in range(4): a(f"v_mov_b32 v{vOne+i}, 0x3f803f80")
    a(f"s_lshl_b32 s{sT2}, s{sR2}, 7\ns_add_u32 s41, s{sT2}, {hex(WS_FLAGS)}")
    wait_flags(a, pfx + "f", 41, 16)
    a(f"""
    v_and_b32 v{vT}, 31, v{vL}
    v_lshlrev_b32 v{vT}, 6, v{vT}
    v_lshrrev_b32 v{vT2}, 5, v{vL}
    v_lshl_add_u32 v{vT}, v{vT2}, 5, v{vT}     ; t*64 + h*32
    s_lshl_b32 s{sT}, s{sTbk}, 11
    s_add_u32 s{sT}, s{sT}, {hex(WS_ST)}
    buffer_load_dwordx4 v[92:95], v{vT}, s[{sWS}:{sWS+3}], s{sT} offen sc1
    buffer_load_dwordx4 v[96:99], v{vT}, s[{sWS}:{sWS+3}], s{sT} offen offset:16 sc1
    """)
    def xload(k):
        a(f"s_add_u32 s{sT}, s{sXs}, {k*1024}\nbuffer_load_dwordx4 {vr(vX+4*(k&7),4)}, v{vL16}, s[{sWS}:{sWS+3}], s{sT} offen sc1")
    for k in range(8): xload(k)
    a(f"""s_waitcnt vmcnt(8)
    v_pk_add_f32 v[92:93], v[92:93], v[94:95]
    v_pk_add_f32 v[96:97], v[96:97], v[98:99]
    v_pk_add_f32 v[92:93], v[92:93], v[96:97]
    s_nop 0
    v_mov_b32 v94, v92
    v_mov_b32 v95, v93
    s_nop 1
    v_permlane32_swap_b32 v92, v94
    v_permlane32_swap_b32 v93, v95
    s_nop 1
    v_add_f32 v92, v92, v94
    v_add_f32 v93, v93, v95
    v_mul_f32 v92, {hex(f2u(1/512))}, v92
    v_mul_f32 v93, {hex(f2u(1/512))}, v93
    v_fma_f32 v93, -v92, v92, v93
    v_max_f32 v93, 0, v93
    v_add_f32 v93, {hex(f2u(1e-5))}, v93
    v_rsq_f32 v{vSt}, v93
    s_nop 0
    v_mul_f32 v{vSt+1}, v92, v{vSt}
    v_sub_f32 v{vSt+1}, 0, v{vSt+1}
    """)
    prof_stamp(a, 0)
    WB = [108, 96]
    vCS2 = 124 - 16 - 16
    def wreads(c, ks, p, dst):
        slot = (c % G2_NS) * G2_SLOT
        return [f"ds_read_b64_tr_b16 {vr(dst+4*p+2*jj,2)}, v{vWa[p]} offset:{slot + ks*3072 + jj*512}" for jj in range(2)]
    NCH = 8
    W = 108
    for c in range(NCH):
        if c == 0:
            pass
        def younger_than_W(c):
            seq = [f"W{i}" for i in range(D) for _ in range(3)] + ["ST", "ST"] + [f"X{k}" for k in range(8)]
            for it in range(c):
                if it + D < NCH: seq += [f"W{it+D}"] * 3
                for k in range(4*it + 8, 4*it + 12):
                    if k < 32: seq.append(f"X{k}")
            last = max(i for i, x in enumerate(seq) if x == f"W{c}")
            return len(seq) - 1 - last
        a(f"s_waitcnt vmcnt({min(63, younger_than_W(c))})\ns_barrier")
        for p in range(3):
            for r in wreads(c, 0, p, W): a(r)
        if c + D < NCH: wdma(c + D)
        for ks in range(4):
            k = 4*c + ks
            seq = [f"W{i}" for i in range(D) for _ in range(3)] + ["ST", "ST"] + [f"X{kk}" for kk in range(8)]
            for it in range(c + 1):
                if it + D < NCH: seq += [f"W{it+D}"] * 3
                for kk in range(4*it + 8, 4*it + 12):
                    if kk < 32 and (it < c or kk - 8 < k): seq.append(f"X{kk}")
            last = max(i for i, x in enumerate(seq) if x == f"X{k}")
            vm = len(seq) - 1 - last
            a(f"s_waitcnt vmcnt({min(63, vm)}) lgkmcnt(4)")
            x = vr(vX + 4*(k & 7), 4)
            first = (k == 0)
            for p in range(3):
                if p: a(f"s_waitcnt lgkmcnt({4 if ks < 3 else 4 - 2*p})")
                a(f"v_mfma_f32_32x32x16_bf16 {vr(vA[p],16)}, {vr(W+4*p,4)}, {x}, {'0' if first else vr(vA[p],16)}")
                if p == 0: a(f"v_mfma_f32_32x32x16_bf16 {vr(vCS,16)}, {vr(W,4)}, {vr(vOne,4)}, {'0' if first else vr(vCS,16)}")
                if ks < 3:
                    for r in wreads(c, ks + 1, p, W): a(r)
            if k + 8 < 32: xload(k + 8)
    prof_stamp(a, 1)
    a(f"""s_lshl_b32 s{sT}, s{sS[0]}, 7
    s_add_u32 s{sT}, s{sT}, {G2_CS}
    v_lshrrev_b32 v{vT3}, 5, v{vL}
    v_lshl_add_u32 v{vT}, v{vT3}, 4, s{sT}
    s_nop 7
    s_nop 1
    s_cmp_eq_u32 s{sW}, 3
    s_cbranch_scc1 {pfx}_nocs
    s_mov_b32 exec_lo, 1
    s_mov_b32 exec_hi, 1
    """)
    for i in range(4): a(f"ds_write_b128 v{vT}, {vr(vCS+4*i,4)} offset:{32*i}")
    a("s_mov_b64 exec, -1")
    a.label(f"{pfx}_nocs")
    a("s_waitcnt lgkmcnt(0)\ns_barrier")
    gelu_consts(a, 118)
    a(f"v_lshlrev_b32 v{vT3}, 4, v{vT3}")
    for p in range(3):
        a(f"s_lshl_b32 s{sT}, s{sS[p]}, 7\ns_add_u32 s{sT}, s{sT}, {G2_CS}\nv_add_u32 v{vT}, s{sT}, v{vT3}")
        for i in range(4): a(f"ds_read_b128 {vr(vCS+4*i,4)}, v{vT} offset:{32*i}")
        a("s_waitcnt lgkmcnt(0)")
        emit_interleaved(a, [ln_pk(vA[p] + 2*i, vCS + 2*i, vSt) for i in range(8)])
        for g in range(0, 16, 8):
            emit_interleaved(a, [gelu_pk(vA[p] + g + 2*i, 12 + 2*i, 118) for i in range(4)])
        for i in range(8): a(f"v_cvt_pk_bf16_f32 v{20+i}, v{vA[p]+2*i}, v{vA[p]+2*i+1}")
        a(f"""s_mul_i32 s{sT}, s{sC2b}, 6
        s_lshl_b32 s{sT2}, s{sS[p]}, 1
        s_add_u32 s{sT}, s{sT}, s{sT2}
        s_cmp_ge_u32 s{sT}, 86
        s_cbranch_scc1 {pfx}_ns{p}
        s_mul_i32 s{sT2}, s{sTbk}, 86
        s_add_u32 s{sT}, s{sT}, s{sT2}
        s_lshl_b32 s{sT}, s{sT}, 10
        s_add_u32 s{sT}, s{sT}, {hex(WS_H2)}
        buffer_store_dwordx4 {vr(20,4)}, v{vL16}, s[{sWS}:{sWS+3}], s{sT} offen sc1
        buffer_store_dwordx4 {vr(24,4)}, v{vL16}, s[{sWS}:{sWS+3}], s{sT} offen offset:1024 sc1""")
        a.label(f"{pfx}_ns{p}")
        a("s_nop 1")
    a(f"""s_waitcnt vmcnt(0)
    s_barrier
    s_lshl_b32 s{sT}, s{sR2}, 7
    s_lshl_b32 s{sT2}, s{sC2b}, 2
    s_add_u32 s41, s{sT}, s{sT2}
    s_add_u32 s41, s41, {hex(WS_FLAGS + 2048)}
    s_cmp_eq_u32 s{sW}, 0
    s_cbranch_scc0 {pfx}_end""")
    set_flag(a, 41)
    a.label(f"{pfx}_end")
    prof_stamp(a, 2); prof_stamp(a, 3)
    prof_end(a, s_id, sW, 8, sWS, vtmp=64)

def gen_g4(a, pfx, s_id, fuse_final=False):
    NS = 5
    a.c("==== G4 ====")
    prof_start(a)
    t64_setup(a)
    t64_tile(a, s_id)
    a(f"s_mov_b32 s{sWm}, s46\ns_mov_b32 s{sWm+1}, s47\ns_mov_b32 s{sWm+2}, {1376*512*2}")
    a(f"s_lshr_b32 s{sT}, s{sRB}, 1\ns_lshl_b32 s{sT}, s{sT}, 7\ns_add_u32 s41, s{sT}, {hex(WS_FLAGS + 2048)}")
    a("s_barrier")
    wait_flags(a, pfx + "f", 41, 15)
    t64_seg(a, WS_H2, 86)
    a(f"s_mov_b32 s{sSlotD}, 0\ns_mov_b32 s{sSlot}, 0")
    D = NS - 1
    vR = 60
    a(f"""s_lshl_b32 s{sT}, s{sRow}, 5
    s_add_u32 s{sT}, s{sT}, s{sN0}
    s_lshl_b32 s33, s{sT}, 10
    s_add_u32 s{sT}, s33, {hex(WS_X1)}
    buffer_load_dwordx4 {vr(vR,4)}, v{vL16}, s[{sWS}:{sWS+3}], s{sT} offen sc1
    buffer_load_dwordx4 {vr(vR+4,4)}, v{vL16}, s[{sWS}:{sWS+3}], s{sT} offen offset:1024 sc1""")
    for c in range(D): t64_dma(a, vL16, 86, NS, "sc1")
    prof_stamp(a, 0)
    iss = lambda: t64_dma(a, vL16, 86, NS, "sc1")
    t64_chunk(a, 4*(D-1), NS, iss, first=True)
    NCH = 22
    a(f"s_mov_b32 s{sC}, {NCH - D - 1}")
    a.L.append(".p2align 6")
    a.label(f"{pfx}_loop")
    t64_chunk(a, 4*(D-1), NS, iss)
    a(f"s_sub_u32 s{sC}, s{sC}, 1\ns_cmp_lg_u32 s{sC}, 0\ns_cbranch_scc1 {pfx}_loop")
    for i in range(D):
        t64_chunk(a, 4*(D-1-i), NS, None, nks=(2 if i == D-1 else 4))
    prof_stamp(a, 1)
    U = 20
    a("s_nop 7\ns_nop 3")
    for i in range(8): a(f"v_lshlrev_b32 v{U+2*i}, 16, v{vR+i}\nv_and_b32 v{U+2*i+1}, 0xffff0000, v{vR+i}")
    for i in range(0, 16, 2): a(f"v_pk_add_f32 {P(vAcc+i)}, {P(vAcc+i)}, {P(U+i)}")
    if not fuse_final:
        for i in range(8): a(f"v_cvt_pk_bf16_f32 v{12+i}, v{vAcc+2*i}, v{vAcc+2*i+1}")
        a(f"""s_add_u32 s{sT}, s33, {hex(WS_BF)}
        buffer_store_dwordx4 {vr(12,4)}, v{vL16}, s[{sWS}:{sWS+3}], s{sT} offen
        buffer_store_dwordx4 {vr(16,4)}, v{vL16}, s[{sWS}:{sWS+3}], s{sT} offen offset:1024""")
    prof_stamp(a, 2); prof_stamp(a, 3)
    prof_end(a, s_id, sW, 8, sWS, vtmp=64)

FS = 65536
def gen_fin(a, pfx, s_id):
    a.c("==== F ====")
    prof_start(a)
    sO = 52
    vX = 12; vA = [76, 92]; vW = 108; vWs = [124, 125]; vG = 126
    a(f"""s_barrier
    s_lshl_b32 s{sT}, s{sW}, 12
    s_add_u32 s{sT}, s{sT}, {FS}
    v_add_u32 v{vT3}, s{sT}, v{vL16}""")
    for i in range(4): a(f"ds_write_b128 v{vT3}, {vr(vAcc+4*i,4)} offset:{1024*i}")
    a(f"""s_load_dwordx2 s[42:43], s[0:1], {KA['wo']}
    s_load_dwordx2 s[44:45], s[0:1], {KA['out']}
    s_lshl_b32 s{sT}, s{sW}, 17
    s_lshl_b32 s{sT2}, s{sCB}, 7
    s_add_u32 s{sT}, s{sT}, s{sT2}
    s_lshl_b32 s{sLd}, s{sW}, 14
    s_waitcnt lgkmcnt(0)
    s_mov_b32 s{sWm}, s42
    s_mov_b32 s{sWm+1}, s43
    s_mov_b32 s{sWm+2}, {512*512*2}
    s_mov_b32 m0, s{sLd}""")
    srd(a, sO, 44, 45, 2048*512*2)
    for j in range(16):
        a(f"buffer_load_dwordx4 v{vWd}, s[{sWm}:{sWm+3}], s{sT} offen lds")
        if j < 15: a(f"s_add_u32 m0, m0, 1024\ns_add_u32 s{sT}, s{sT}, 8192")
    a(f"""v_and_b32 v{vT}, 31, v{vL}
    v_lshlrev_b32 v{vT}, 2, v{vT}
    s_lshl_b32 s{sT2}, s{sRow}, 7
    s_add_u32 s{sT2}, s{sT2}, {hex(WS_G)}
    buffer_load_dword v{vG}, v{vT}, s[{sWS}:{sWS+3}], s{sT2} offen
    s_lshl_b32 s{sT}, s{sWC}, 15
    v_subrev_u32 v{vWs[0]}, 8192, v{vWa0}
    v_add_u32 v{vWs[0]}, s{sT}, v{vWs[0]}
    v_xor_b32 v{vWs[1]}, 64, v{vWs[0]}
    s_cmp_eq_u32 s{sWC}, 0
    s_cbranch_scc1 {pfx}_nsw
    v_mov_b32 v{vT}, v{vWs[0]}
    v_mov_b32 v{vWs[0]}, v{vWs[1]}
    v_mov_b32 v{vWs[1]}, v{vT}
    {pfx}_nsw:
    s_lshr_b32 s{sT}, s{sRB}, 2
    s_lshl_b32 s{sT}, s{sT}, 7
    s_add_u32 s41, s{sT}, {hex(WS_FLAGS + 4096)}
    s_lshl_b32 s{sXb}, s{sRow}, 15
    s_lshl_b32 s{sT}, s{sWC}, 14
    s_add_u32 s{sXb}, s{sXb}, s{sT}
    s_add_u32 s{sXb}, s{sXb}, {hex(WS_OF)}
    s_waitcnt vmcnt(0) lgkmcnt(0)""")
    prof_stamp(a, 0)
    wait_flags(a, pfx + "f", 41, 32)
    prof_stamp(a, 1)
    for i in range(16):
        a(f"buffer_load_dwordx4 {vr(vX+4*i,4)}, v{vL16}, s[{sWS}:{sWS+3}], s{sXb} offen sc1")
        if i < 15: a(f"s_add_u32 s{sXb}, s{sXb}, 1024")
    def wr(i, b):
        return [f"ds_read_b64_tr_b16 {vr(vW+8*b+4*s_+2*jj,2)}, v{vWs[s_]} offset:{i*2048 + jj*1024}" for s_ in range(2) for jj in range(2)]
    for r in wr(0, 0): a(r)
    for i in range(16):
        b = i & 1
        if i < 15:
            for r in wr(i + 1, b ^ 1): a(r)
        a(f"s_waitcnt vmcnt({15-i}) lgkmcnt({4 if i < 15 else 0})")
        for s_ in range(2):
            a(f"v_mfma_f32_32x32x16_bf16 {vr(vA[s_],16)}, {vr(vW+8*b+4*s_,4)}, {vr(vX+4*i,4)}, {'0' if i == 0 else vr(vA[s_],16)}")
    prof_stamp(a, 2)
    a(f"""s_lshl_b32 s{sT}, s{sW}, 12
    v_add_u32 v{vT}, s{sT}, v{vL16}
    s_xor_b32 s{sT2}, s{sT}, 4096
    v_add_u32 v{vT2}, s{sT2}, v{vL16}
    s_barrier
    s_nop 7
    s_cmp_eq_u32 s{sWC}, 0
    s_cbranch_scc0 {pfx}_x1""")
    for i in range(4): a(f"ds_write_b128 v{vT}, {vr(vA[1]+4*i,4)} offset:{1024*i}")
    a("s_waitcnt lgkmcnt(0)\ns_barrier")
    for i in range(4): a(f"ds_read_b128 {vr(vA[1]+4*i,4)}, v{vT2} offset:{1024*i}")
    a(f"s_branch {pfx}_x2")
    a.label(f"{pfx}_x1")
    for i in range(4): a(f"ds_write_b128 v{vT}, {vr(vA[0]+4*i,4)} offset:{1024*i}")
    a("s_waitcnt lgkmcnt(0)\ns_barrier")
    for i in range(4): a(f"ds_read_b128 {vr(vA[0]+4*i,4)}, v{vT2} offset:{1024*i}")
    a.label(f"{pfx}_x2")
    for i in range(4): a(f"ds_read_b128 {vr(vX+4*i,4)}, v{vT3} offset:{1024*i}")
    a(f"""v_sub_f32 v{vT}, 1.0, v{vG}
    v_mov_b32 v{vG+1}, v{vT}
    s_waitcnt lgkmcnt(0)""")
    GP = f"v[{vG}:{vG+1}]"
    for i in range(0, 16, 2): a(f"v_pk_add_f32 {P(vA[0]+i)}, {P(vA[0]+i)}, {P(vA[1]+i)}")
    for i in range(0, 16, 2): a(f"v_pk_mul_f32 {P(vX+i)}, {P(vX+i)}, {GP} op_sel:[0,1] op_sel_hi:[1,1]")
    for i in range(0, 16, 2): a(f"v_pk_fma_f32 {P(vX+i)}, {P(vA[0]+i)}, {GP}, {P(vX+i)} op_sel_hi:[1,0,1]")
    for i in range(8): a(f"v_cvt_pk_bf16_f32 v{32+i}, v{vX+2*i}, v{vX+2*i+1}")
    a(f"""s_nop 1
    v_permlane32_swap_b32 v32, v34
    v_permlane32_swap_b32 v33, v35
    v_permlane32_swap_b32 v36, v38
    v_permlane32_swap_b32 v37, v39
    v_and_b32 v{vT}, 31, v{vL}
    v_lshlrev_b32 v{vT}, 10, v{vT}
    v_lshrrev_b32 v{vT2}, 5, v{vL}
    v_lshl_add_u32 v{vT}, v{vT2}, 4, v{vT}
    s_lshl_b32 s{sT}, s{sRow}, 15
    s_lshl_b32 s{sT2}, s{sN0}, 5
    s_add_u32 s{sT}, s{sT}, s{sT2}
    buffer_store_dwordx4 v[32:35], v{vT}, s[{sO}:{sO+3}], s{sT} offen
    buffer_store_dwordx4 v[36:39], v{vT}, s[{sO}:{sO+3}], s{sT} offen offset:32""")
    prof_stamp(a, 3)
    prof_end(a, s_id, sW, 8, sWS, vtmp=64)

def gen_chain(a, pfx, s_id, with_g4=True, fuse_final=False):
    import common
    a(f"""s_load_dwordx2 s[40:41], s[0:1], {KA['ws']}
    s_load_dwordx2 s[42:43], s[0:1], {KA['w2']}
    s_load_dwordx2 s[44:45], s[0:1], {KA['w3']}
    s_load_dwordx2 s[46:47], s[0:1], {KA['w4']}
    s_load_dwordx2 s[52:53], s[0:1], {KA['x']}
    v_lshrrev_b32 v{vT}, 6, v0
    v_and_b32 v{vL}, 63, v0
    v_readfirstlane_b32 s{sW}, v{vT}
    v_lshlrev_b32 v{vL16}, 4, v{vL}
    s_cmp_ge_u32 s{sW}, 4
    s_cbranch_scc1 {pfx}_exit""")
    t64_setup(a)
    a("s_waitcnt lgkmcnt(0)")
    srd(a, sWS, 40, 41, WS_USED); srd(a, sX, 52, 53, 2048*512*2)
    a(f"s_mov_b32 s{sWm+3}, 0x20000")
    common.PROF_BASE = 2 * 0x10000
    gen_g0(a, pfx + "0", s_id)
    a("s_barrier")
    common.PROF_BASE = 3 * 0x10000
    gen_g2(a, pfx + "2", s_id)
    if with_g4:
        common.PROF_BASE = 5 * 0x10000
        gen_g4(a, pfx + "4", s_id, fuse_final)
        if fuse_final:
            common.PROF_BASE = 4 * 0x10000
            gen_fin(a, pfx + "F", s_id)
    a.label(f"{pfx}_exit")
    a("s_endpgm")
    return 128
```

```python
from common import *
import struct
K1_XS = 0
K1_WS = 65536
K1_ST = 131072
K1_LDS = K1_ST + 1024 + 256 + 1024
QSCALE = 0.25 * 1.4426950408889634
def vr(b, n=1): return f"v{b}" if n == 1 else f"v[{b}:{b+n-1}]"
def f2u(x): return struct.unpack("<I", struct.pack("<f", x))[0]
GC1 = -2.0 * 1.4426950408889634 * 0.7978845608028654
GC2 = GC1 * 0.044715

def gelu_ops(a, x, t, vC1, sC2):
    return [f"v_mul_f32 v{t}, v{x}, v{x}",
            f"v_fma_f32 v{t}, v{t}, s{sC2}, v{vC1}",
            f"v_mul_f32 v{t}, v{t}, v{x}",
            f"v_exp_f32 v{t}, v{t}",
            f"v_add_f32 v{t}, 1.0, v{t}",
            f"v_rcp_f32 v{t}, v{t}",
            f"v_mul_f32 v{x}, v{x}, v{t}"]
def gelu_pk(x, t, vC, vOne=None):
    P = lambda r: f"v[{r}:{r+1}]"
    return [f"v_pk_mul_f32 {P(t)}, {P(x)}, {P(x)}",
            f"v_pk_fma_f32 {P(t)}, {P(t)}, {P(vC+2)}, {P(vC)}",
            f"v_pk_mul_f32 {P(t)}, {P(t)}, {P(x)}",
            f"v_exp_f32 v{t}, v{t}", f"v_exp_f32 v{t+1}, v{t+1}",
            f"v_pk_add_f32 {P(t)}, {P(t)}, {P(vC+4)}",
            f"v_rcp_f32 v{t}, v{t}", f"v_rcp_f32 v{t+1}, v{t+1}",
            f"v_pk_mul_f32 {P(x)}, {P(x)}, {P(t)}"]
def gelu_consts(a, vC):
    a(f"v_mov_b32 v{vC}, {hex(f2u(GC1))}\nv_mov_b32 v{vC+1}, v{vC}\nv_mov_b32 v{vC+2}, {hex(f2u(GC2))}\nv_mov_b32 v{vC+3}, v{vC+2}\nv_mov_b32 v{vC+4}, 1.0\nv_mov_b32 v{vC+5}, 1.0")
def ln_pk(x, cs, vS):
    P = lambda r: f"v[{r}:{r+1}]"
    return [f"v_pk_mul_f32 {P(x)}, {P(x)}, {P(vS)} op_sel_hi:[1,0]",
            f"v_pk_fma_f32 {P(x)}, {P(cs)}, {P(vS)}, {P(x)} op_sel:[0,1,0] op_sel_hi:[1,1,1]"]
def emit_interleaved(a, seqs):
    n = max(len(s) for s in seqs)
    for i in range(n):
        for s in seqs:
            if i < len(s): a(s[i])


def gen_k1(a, pfx, X=None):
    X = X or {}
    import os
    SF = os.environ.get('K1SF', '')
    sX = 8; sWq = 12; sWS = 16; sDB = 52
    sW = 20; sRB = 21; sWR = 22; sC = 23; sT = 24; sT2 = 25
    sXsrc = 26; sWsrc = 27; sWstep = 28; sWi = 29; sLX = 30; sLW = 31; sSlot = 32; sSlotD = 33
    sTB = 34; sC2 = 35; sJ = 44; sXb = 45; sWb = 46; sX2 = 47; sCk = 48; sTyp = 49; sWC = 50
    vL = 1; vT = 2; vT2 = 3; vT3 = 4
    a.c("==== K1 ====")
    prof_start(a)
    a(f"""
    s_load_dwordx4 s[36:39], s[0:1], {KA['x']}        ; x, wqkv
    s_load_dwordx2 s[40:41], s[0:1], {KA['w1']}
    s_load_dwordx2 s[42:43], s[0:1], {KA['ws']}
    s_load_dwordx2 s[56:57], s[0:1], {KA['dbg']}
    s_load_dwordx2 s[58:59], s[0:1], {KA['gw']}
    """)
    if not os.environ.get("NOCPF"):
        a(f"""s_getpc_b64 s[64:65]
        {pfx}_pc:
        s_lshr_b32 s{sT}, s2, 3
        s_lshl_b32 s{sT}, s{sT}, 13
        v_lshl_add_u32 v148, v0, 4, s{sT}
        s_sub_u32 s64, s64, {pfx}_pc-k1_kernel
        s_subb_u32 s65, s65, 0
        v_min_u32 v148, L_text_end-k1_kernel-16, v148
        v_mov_b32 v149, s65
        v_add_co_u32 v148, vcc, s64, v148
        s_nop 1
        v_addc_co_u32 v149, vcc, 0, v149, vcc
        global_load_dwordx4 v[148:151], v[148:149], off""")
    a(f"""
    v_lshrrev_b32 v{vT}, 6, v0
    v_and_b32 v{vL}, 63, v0
    v_readfirstlane_b32 s{sW}, v{vT}
    s_and_b32 s{sT}, s2, 7                   ; xcd
    s_lshr_b32 s{sT2}, s2, 3                 ; j
    s_lshr_b32 s{sRB}, s{sT}, 1
    s_lshl_b32 s{sRB}, s{sRB}, 2
    s_and_b32 s{sTB}, s{sT2}, 3
    s_add_u32 s{sRB}, s{sRB}, s{sTB}
    s_and_b32 s{sTyp}, s{sT}, 1
    s_lshr_b32 s{sJ}, s{sT2}, 2
    s_and_b32 s{sTB}, s{sW}, 3
    s_cmp_lt_u32 s{sW}, 4
    s_cbranch_scc1 {pfx}_gemm
    """)
    vXd = [5, 6]; vWd = 7; vWa = [8, 9]; vWa0 = [10, 11]
    a(f"""
    v_lshrrev_b32 v{vT}, 3, v{vL}            ; r
    v_lshrrev_b32 v{vT2}, 4, v{vL}           ; r>>1
    v_and_b32 v{vT3}, 7, v{vL}
    v_xor_b32 v{vXd[0]}, v{vT3}, v{vT2}
    v_xor_b32 v{vXd[1]}, 4, v{vXd[0]}
    v_lshlrev_b32 v{vWd}, 10, v{vT}
    v_lshl_add_u32 v{vXd[0]}, v{vXd[0]}, 4, v{vWd}
    v_lshl_add_u32 v{vXd[1]}, v{vXd[1]}, 4, v{vWd}
    v_add_u32 v{vXd[1]}, 8192, v{vXd[1]}
    v_and_b32 v{vT2}, 1, v{vT2}              ; (r>>1)&1
    v_lshlrev_b32 v{vT2}, 2, v{vT2}
    v_xor_b32 v{vT3}, v{vT3}, v{vT2}
    s_lshl_b32 s{sXsrc}, s{sRB}, 7
    s_lshl_b32 s{sT}, s{sTB}, 5
    s_add_u32 s{sXsrc}, s{sXsrc}, s{sT}
    s_lshl_b32 s{sXb}, s{sXsrc}, 10
    s_lshl_b32 s{sLX}, s{sTB}, 12
    s_lshl_b32 s{sLW}, s{sTB}, 12
    s_add_u32 s{sLW}, s{sLW}, {K1_WS}
    s_lshr_b32 s{sT}, s{sTB}, 1              ; strip s
    s_lshl_b32 s{sT2}, s{sTyp}, 1
    s_add_u32 s{sT2}, s{sT2}, s{sT}          ; matrix: 0 Q, 1 K, 2 V, 3 h
    s_cmp_eq_u32 s{sT2}, 3
    s_mov_b32 s{sWi}, 3072
    s_cmov_b32 s{sWi}, 1024
    s_cselect_b32 s{sT2}, 0, s{sT2}
    s_lshl_b32 s{sT2}, s{sT2}, 10
    s_lshl_b32 s{sWb}, s{sJ}, 7              ; 64 j * 2
    s_add_u32 s{sWb}, s{sWb}, s{sT2}
    s_and_b32 s{sT}, s{sTB}, 1
    s_lshl_b32 s{sT}, s{sT}, 5
    s_mul_i32 s{sT}, s{sT}, s{sWi}
    s_add_u32 s{sWb}, s{sWb}, s{sT}
    s_lshl_b32 s{sWstep}, s{sWi}, 6          ; 64 rows
    v_mul_lo_u32 v{vT}, v{vT}, s{sWi}
    v_lshl_add_u32 v{vWd}, v{vT3}, 4, v{vT}
    s_lshl_b32 s{sT2}, s{sWi}, 3
    s_cmp_eq_u32 s{sWi}, 1024
    s_mov_b32 s{sWi}, s{sT2}
    s_waitcnt lgkmcnt(0)
    s_cselect_b32 s{sWq}, s40, s38
    s_cselect_b32 s{sWq+1}, s41, s39
    s_mov_b32 s{sWq+2}, {512*1536*2}
    s_cmov_b32 s{sWq+2}, {512*512*2}
    s_mov_b32 s{sWq+3}, 0x20000
    s_and_b32 s{sCk}, s{sRB}, 3
    s_lshl_b32 s{sCk}, s{sCk}, 1
    s_add_u32 s{sCk}, s{sCk}, s{sJ}
    s_and_b32 s{sCk}, s{sCk}, {0 if X.get("norot") else 7}
    """)
    srd(a, sX, 36, 37, 2048*512*2)
    a(f"s_cmp_eq_u32 s{sTyp}, 0\ns_cbranch_scc0 {pfx}_norow")
    srd(a, 60, 58, 59, 1024)
    a(f"""s_lshl_b32 s{sT}, s{sRB}, 7
    s_lshl_b32 s{sT2}, s{sJ}, 4
    s_add_u32 s{sT}, s{sT}, s{sT2}
    s_lshl_b32 s{sT2}, s{sTB}, 2
    s_add_u32 s51, s{sT}, s{sT2}
    s_lshl_b32 s{sT}, s51, 10
    v_lshlrev_b32 v{vT}, 4, v{vL}
    buffer_load_dwordx4 v[20:23], v{vT}, s[{sX}:{sX+3}], s{sT} offen
    buffer_load_dwordx4 v[24:27], v{vT}, s[{sX}:{sX+3}], s{sT} offen offset:1024
    buffer_load_dwordx4 v[28:31], v{vT}, s[{sX}:{sX+3}], s{sT} offen offset:2048
    buffer_load_dwordx4 v[32:35], v{vT}, s[{sX}:{sX+3}], s{sT} offen offset:3072
    buffer_load_dwordx4 v[36:39], v{vT}, s[60:63], 0 offen
    """)
    a.label(f"{pfx}_norow")
    def dma_begin():
        return [f"s_lshl_b32 s{sT}, s{sCk}, 7", f"s_add_u32 s{sXsrc}, s{sXb}, s{sT}", f"s_add_u32 s{sX2}, s{sXsrc}, 16384",
                f"s_mul_i32 s{sT}, s{sCk}, s{sWstep}", f"s_add_u32 s{sWsrc}, s{sWb}, s{sT}", f"s_add_u32 s{sCk}, s{sCk}, 1", f"s_and_b32 s{sCk}, s{sCk}, 7",
                f"s_add_u32 s{sT}, s{sSlotD}, s{sLX}", f"s_add_u32 s{sT2}, s{sSlotD}, s{sLW}"]
    def dma_one(i):
        j = i >> 1
        if i & 1 == 0:
            return [f"s_add_u32 m0, s{sT}, {j*1024}", "s_nop 0",
                    f"buffer_load_dwordx4 v{vXd[j&1]}, s[{sX}:{sX+3}], s{sXsrc if j < 2 else sX2} offen lds"]
        L = [f"s_add_u32 m0, s{sT2}, {j*1024}", "s_nop 0",
             f"buffer_load_dwordx4 v{vWd}, s[{sWq}:{sWq+3}], s{sWsrc} offen lds"]
        if j < 3: L.append(f"s_add_u32 s{sWsrc}, s{sWsrc}, s{sWi}")
        return L
    def dma_all():
        if X.get("nodma"): return
        for x in dma_begin(): a(x)
        for i in range(8):
            for x in dma_one(i): a(x)
    for c in range(2):
        a(f"s_mov_b32 s{sSlotD}, {c*16384}")
        dma_all()
    a(f"s_mov_b32 s{sSlotD}, {2*16384}\ns_mov_b32 s{sSlot}, 0\ns_mov_b32 s{sC}, 0")
    srd(a, sWS, 42, 43, WS_USED)
    def w_addrs(dst, nbs, strip_off):
        a(f"""
        v_lshrrev_b32 v{vT2}, 5, v{vL}
        v_lshlrev_b32 v{vT}, 10, v{vT2}          ; h*8*128
        v_bfe_u32 v{vT2}, v{vL}, 2, 2            ; r
        v_lshl_add_u32 v{vT}, v{vT2}, 7, v{vT}
        v_bfe_u32 v{vT3}, v{vL}, 4, 1            ; nhalf
        v_lshl_add_u32 v{vT}, v{vT3}, 5, v{vT}
        v_and_b32 v{vT3}, 3, v{vL}
        v_lshl_add_u32 v{vT}, v{vT3}, 3, v{vT}
        v_add_u32 v{vT}, {K1_WS + strip_off}, v{vT}
        v_lshrrev_b32 v{vT2}, 1, v{vT2}          ; r>>1
        """)
        for d, nb in zip(dst, nbs):
            if isinstance(nb, int):
                a(f"v_xor_b32 v{vT3}, {nb}, v{vT2}\nv_lshl_add_u32 v{d}, v{vT3}, 6, v{vT}")
            else:
                a(f"v_xor_b32 v{vT3}, s{nb[1:]}, v{vT2}\nv_lshl_add_u32 v{d}, v{vT3}, 6, v{vT}")
    def loader_wait(lbl, tail=(8, 0)):
        a(f"""s_cmp_lt_u32 s{sC}, 6
        s_cbranch_scc1 {lbl}_w8
        s_cmp_eq_u32 s{sC}, 6
        s_cbranch_scc1 {lbl}_w4
        s_waitcnt vmcnt({tail[1]})
        s_branch {lbl}_wd
        {lbl}_w4:
        s_waitcnt vmcnt({tail[0]})
        s_branch {lbl}_wd
        {lbl}_w8:
        s_waitcnt vmcnt(16)
        {lbl}_wd:
        s_waitcnt lgkmcnt(0)
        s_barrier""")
    a(f"""s_cmp_eq_u32 s{sW}, 5
    s_cbranch_scc0 {pfx}_npad
    s_lshl_b32 s{sT}, s2, 8
    s_cmp_ge_u32 s{sT}, 32768
    s_cselect_b32 s{sT2}, {hex(2*1024*1024)}, 0
    s_add_u32 s{sT}, s{sT}, s{sT2}
    s_add_u32 s{sT}, s{sT}, {hex(WS_H1 - 32768)}
    v_mov_b32 v12, 0
    v_mov_b32 v13, 0
    v_mov_b32 v14, 0
    v_mov_b32 v15, 0
    v_lshlrev_b32 v16, 4, v{vL}
    s_mov_b64 exec, 0xffff
    buffer_store_dwordx4 v[12:15], v16, s[{sWS}:{sWS+3}], s{sT} offen
    s_mov_b64 exec, -1""")
    a.label(f"{pfx}_npad")
    a(f"s_cmp_eq_u32 s{sTyp}, 0\ns_cbranch_scc0 {pfx}_lb")
    a(f"s_cmp_eq_u32 s2, 0\ns_cbranch_scc0 {pfx}_nzf\ns_cmp_eq_u32 s{sW}, 4\ns_cbranch_scc0 {pfx}_nzf")
    a(f"""v_mov_b32 v12, 0
    v_mov_b32 v13, 0
    v_mov_b32 v14, 0
    v_mov_b32 v15, 0
    v_lshlrev_b32 v16, 4, v{vL}
    s_mov_b32 s{sT}, {hex(WS_FLAGS)}
    buffer_store_dwordx4 v[12:15], v16, s[{sWS}:{sWS+3}], s{sT} offen
    buffer_store_dwordx4 v[12:15], v16, s[{sWS}:{sWS+3}], s{sT} offen offset:1024
    buffer_store_dwordx4 v[12:15], v16, s[{sWS}:{sWS+3}], s{sT} offen offset:2048
    buffer_store_dwordx4 v[12:15], v16, s[{sWS}:{sWS+3}], s{sT} offen offset:3072
    s_add_u32 s{sT}, s{sT}, 4096
    s_nop 0
    buffer_store_dwordx4 v[12:15], v16, s[{sWS}:{sWS+3}], s{sT} offen""")
    a.label(f"{pfx}_nzf")
    srd(a, sDB, 56, 57, 256)
    G = 40
    st = []
    def S_(x): st.extend([l.strip() for l in x.split("\n") if l.strip()])
    for p in range(4): S_(f"v_lshlrev_b32 v{G+2*p}, 16, v{36+p}\nv_and_b32 v{G+2*p+1}, 0xffff0000, v{36+p}")
    for i in range(4):
        for p in range(4):
            x = 20 + 4*i + p
            S_(f"v_lshlrev_b32 v60, 16, v{x}\nv_and_b32 v61, 0xffff0000, v{x}")
            if p == 0:
                S_(f"v_add_f32 v{48+i}, v60, v61\nv_mul_f32 v{52+i}, v60, v60\nv_mul_f32 v{56+i}, v60, v{G}")
                S_(f"v_fmac_f32 v{52+i}, v61, v61\nv_fmac_f32 v{56+i}, v61, v{G+1}")
            else:
                S_(f"v_add_f32 v{48+i}, v{48+i}, v60\nv_fmac_f32 v{52+i}, v60, v60\nv_fmac_f32 v{56+i}, v60, v{G+2*p}")
                S_(f"v_add_f32 v{48+i}, v{48+i}, v61\nv_fmac_f32 v{52+i}, v61, v61\nv_fmac_f32 v{56+i}, v61, v{G+2*p+1}")
    n1 = len(st)
    S_("s_nop 1")
    for mod in ["row_shr:1 row_mask:0xf bank_mask:0xf bound_ctrl:1", "row_shr:2 row_mask:0xf bank_mask:0xf bound_ctrl:1",
                "row_shr:4 row_mask:0xf bank_mask:0xf bound_ctrl:1", "row_shr:8 row_mask:0xf bank_mask:0xf bound_ctrl:1",
                "row_bcast:15 row_mask:0xa bank_mask:0xf", "row_bcast:31 row_mask:0xc bank_mask:0xf"]:
        for r in range(48, 60): S_(f"v_add_f32_dpp v{r}, v{r}, v{r} {mod}")
    S_("s_nop 1")
    for i in range(4):
        S_(f"""v_mul_f32 v{48+i}, {hex(f2u(1/512))}, v{48+i}
        v_mul_f32 v{52+i}, {hex(f2u(1/512))}, v{52+i}
        v_mul_f32 v{56+i}, {hex(f2u(-1.4426950408889634))}, v{56+i}""")
    for i in range(4): S_(f"v_fma_f32 v{52+i}, -v{48+i}, v{48+i}, v{52+i}\nv_exp_f32 v{56+i}, v{56+i}")
    for i in range(4): S_(f"v_max_f32 v{52+i}, 0, v{52+i}\nv_add_f32 v{56+i}, 1.0, v{56+i}")
    for i in range(4): S_(f"v_add_f32 v{52+i}, {hex(f2u(1e-5))}, v{52+i}\nv_rcp_f32 v{56+i}, v{56+i}")
    for i in range(4): S_(f"v_rsq_f32 v{60+2*i}, v{52+i}")
    S_("s_nop 0")
    for i in range(4): S_(f"v_mul_f32 v{61+2*i}, v{48+i}, v{60+2*i}")
    for i in range(4): S_(f"v_sub_f32 v{61+2*i}, 0, v{61+2*i}")
    S_(f"""s_lshl_b32 s61, s51, 3
    s_add_u32 s61, s61, {hex(WS_XST)}
    s_lshl_b32 s62, s51, 2
    s_add_u32 s62, s62, {hex(WS_G)}
    v_mov_b32 v{vT}, 0
    s_mov_b32 exec_lo, 0
    s_mov_b32 exec_hi, 0x80000000
    buffer_store_dwordx4 v[60:63], v{vT}, s[{sWS}:{sWS+3}], s61 offen sc1
    buffer_store_dwordx4 v[64:67], v{vT}, s[{sWS}:{sWS+3}], s61 offen offset:16 sc1
    buffer_store_dwordx4 v[56:59], v{vT}, s[{sWS}:{sWS+3}], s62 offen sc1
    s_mov_b64 exec, -1""")
    prof_stamp(a, 0)
    def la_iter(c, extra=None, vm=16):
        a(f"s_waitcnt vmcnt({vm})\ns_barrier")
        if c < 5:
            dma_all()
            a(f"s_add_u32 s{sSlotD}, s{sSlotD}, 16384\ns_and_b32 s{sSlotD}, s{sSlotD}, 0xffff")
        for x in (extra or []): a(x)
    a("s_waitcnt vmcnt(16)")
    for x in st: a(x)
    a("s_waitcnt vmcnt(11)\ns_barrier")
    for _ in range(2):
        dma_all()
        a(f"s_add_u32 s{sSlotD}, s{sSlotD}, 16384\ns_and_b32 s{sSlotD}, s{sSlotD}, 0xffff")
    la_iter(1, vm=16)
    a(f"""s_cmp_eq_u32 s{sW}, 4
    s_cbranch_scc0 {pfx}_la_nf
    s_lshl_b32 s{sT}, s{sRB}, 4
    s_add_u32 s{sT}, s{sT}, s{sJ}
    v_mov_b32 v{vT}, 0
    v_mov_b32 v{vT2}, 1
    s_mov_b64 exec, 1
    buffer_store_byte v{vT2}, v{vT}, s[{sDB}:{sDB+3}], s{sT} offen sc1
    s_mov_b64 exec, -1""")
    a.label(f"{pfx}_la_nf")
    la_iter(2, vm=16)
    la_iter(3, vm=16)
    la_iter(4, vm=16)
    NPF = 0 if X.get("nopf") or os.environ.get("NOPF") else 8
    if NPF:
        a(f"""s_load_dwordx2 s[64:65], s[0:1], {KA['w2']}
        s_load_dwordx2 s[66:67], s[0:1], {KA['w3']}
        s_load_dwordx2 s[68:69], s[0:1], {KA['w4']}
        s_load_dwordx2 s[70:71], s[0:1], {KA['wo']}
        s_lshl_b32 s72, s{sRB}, 3
        s_add_u32 s72, s72, s{sJ}
        s_lshl_b32 s72, s72, 2
        s_add_u32 s72, s72, s{sTB}
        s_lshl_b32 s72, s72, 10
        v_lshlrev_b32 v12, 4, v{vL}
        s_waitcnt lgkmcnt(0)""")
        def pf(lo, hi, size, n):
            a(f"s_mov_b32 s76, s{lo}\ns_mov_b32 s77, s{hi}\ns_mov_b32 s78, {size}\ns_mov_b32 s79, 0x20000\ns_mov_b32 s73, s72")
            for j in range(n):
                a(f"buffer_load_dwordx4 v[16:19], v12, s[76:79], s73 offen")
                if j + 1 < n: a("s_add_u32 s73, s73, 0x80000")
        pf(64, 65, 512*512*2, 1); pf(66, 67, 512*1376*2, 3); pf(68, 69, 1376*512*2, 3); pf(70, 71, 512*512*2, 1)
    la_iter(5, vm=16 + NPF)
    la_iter(6, vm=8 + NPF)
    la_iter(7, vm=0 + NPF)
    prof_stamp(a, 1); prof_stamp(a, 2); prof_stamp(a, 3)
    prof_end(a, 2, sW, 8, sWS, vtmp=20)
    a("s_endpgm")
    a.label(f"{pfx}_lb")
    w_addrs(vWa0, [0, 1], 8192)
    vc = [24, 25, 26, 27]; vG = 44; vU = 52
    for r in vc: a(f"v_mov_b32 v{r}, 0")
    srd(a, sDB, 56, 57, 256)
    a(f"s_lshl_b32 s60, s{sRB}, 4\nv_mov_b32 v30, 0")
    a(f"""s_lshl_b32 s62, s{sRB}, 10
    s_add_u32 s62, s62, {hex(WS_XST)}
    v_lshlrev_b32 v34, 4, v{vL}
    s_mov_b32 s63, 0""")
    prof_stamp(a, 0)
    a("s_waitcnt vmcnt(8) lgkmcnt(0)\ns_barrier")
    dma_all()
    a(f"s_add_u32 s{sSlotD}, s{sSlotD}, 16384\ns_branch {pfx}_sl0")
    a.label(f"{pfx}_sl")
    loader_wait(f"{pfx}_s", tail=(8, 0))
    a.label(f"{pfx}_sl0")
    a(f"s_lshl_b32 s{sT}, s{sTB}, 11\ns_add_u32 s{sT}, s{sT}, s{sSlot}")
    for nb in range(2):
        a(f"v_add_u32 v54, s{sT}, v{vWa0[nb]}")
        a(f"ds_read_b64_tr_b16 {vr(vG+4*nb,2)}, v54\nds_read_b64_tr_b16 {vr(vG+4*nb+2,2)}, v54 offset:512")
    ops = ["s_waitcnt lgkmcnt(0)"]
    for nb in range(2):
        for i in range(4):
            x = vG + 4*nb + i
            ops += [f"v_lshlrev_b32 v{vU}, 16, v{x}", f"v_and_b32 v{vU+1}, 0xffff0000, v{x}",
                    f"v_add_f32 v{vc[2*nb]}, v{vc[2*nb]}, v{vU}", f"v_add_f32 v{vc[2*nb+1]}, v{vc[2*nb+1]}, v{vU+1}"]
    a(f"s_cmp_ge_u32 s{sC}, 5\ns_cbranch_scc1 {pfx}_s_nd")
    for x in dma_begin(): a(x)
    step = max(1, len(ops) // 8); k = 0
    for i in range(8):
        for x in (dma_one(i) if not X.get("nodma") else []): a(x)
        hi = len(ops) if i == 7 else min(len(ops), k + step)
        for x in ops[k:hi]: a(x)
        k = hi
    a(f"s_add_u32 s{sSlotD}, s{sSlotD}, 16384\ns_and_b32 s{sSlotD}, s{sSlotD}, 0xffff\ns_branch {pfx}_s_nx")
    a.label(f"{pfx}_s_nd")
    a(f"s_cmp_eq_u32 s{sC}, {X.get('fc', 6)}\ns_cbranch_scc0 {pfx}_s_nf\ns_cmp_eq_u32 s{sW}, 4\ns_cbranch_scc0 {pfx}_s_nf")
    a(f"buffer_load_dwordx2 v[32:33], v30, s[{sDB}:{sDB+3}], s60 offen sc1")
    a.label(f"{pfx}_s_nf")
    a(f"""s_cmp_eq_u32 s{sC}, {X.get('fc', 6) + 1}
    s_cbranch_scc0 {pfx}_s_ng
    s_cmp_eq_u32 s{sW}, 4
    s_cbranch_scc0 {pfx}_s_ng
    s_waitcnt vmcnt(0)
    v_and_b32 v32, v32, v33
    s_nop 0
    v_readfirstlane_b32 s{sT}, v32
    s_cmp_eq_u32 s{sT}, 0x01010101
    s_cbranch_scc0 {pfx}_s_ng
    s_mov_b32 s63, 1
    buffer_load_dwordx4 v[28:31], v34, s[{sWS}:{sWS+3}], s62 offen sc1""")
    a.label(f"{pfx}_s_ng")
    for x in ops: a(x)
    a.label(f"{pfx}_s_nx")
    a(f"""s_add_u32 s{sSlot}, s{sSlot}, 16384
    s_and_b32 s{sSlot}, s{sSlot}, 0xffff
    s_add_u32 s{sC}, s{sC}, 1
    s_cmp_lt_u32 s{sC}, 8
    s_cbranch_scc1 {pfx}_sl""")
    prof_stamp(a, 1)
    a(f"""
    v_add_f32 v24, v24, v25
    v_add_f32 v26, v26, v27
    v_lshlrev_b32 v55, 2, v{vL}
    s_lshl_b32 s{sT}, s{sTB}, 8
    s_add_u32 s{sT}, s{sT}, {K1_ST + 1280}
    v_permlane32_swap_b32 v24, v26
    v_add_u32 v54, s{sT}, v55
    s_nop 0
    v_add_f32 v24, v24, v26
    s_nop 0
    ds_write_b32 v54, v24
    s_waitcnt lgkmcnt(0)
    s_barrier                                  ; F1
    s_cmp_eq_u32 s{sW}, 4
    s_cbranch_scc0 {pfx}_pdone
    v_add_u32 v54, {K1_ST + 1280}, v55
    ds_read_b32 v36, v54
    ds_read_b32 v37, v54 offset:256
    ds_read_b32 v38, v54 offset:512
    ds_read_b32 v39, v54 offset:768
    s_cmp_eq_u32 s63, 1
    s_cbranch_scc1 {pfx}_pdone0
    s_branch {pfx}_pchk
    """)
    a.label(f"{pfx}_poll")
    a(f"""s_sleep 1
    buffer_load_dwordx2 v[32:33], v30, s[{sDB}:{sDB+3}], s60 offen sc1
    s_waitcnt vmcnt(0)""")
    a.label(f"{pfx}_pchk")
    a(f"""v_and_b32 v32, v32, v33
    s_nop 0
    v_readfirstlane_b32 s{sT}, v32
    s_cmp_eq_u32 s{sT}, 0x01010101
    s_cbranch_scc0 {pfx}_poll
    buffer_load_dwordx4 v[28:31], v34, s[{sWS}:{sWS+3}], s62 offen sc1""")
    a.label(f"{pfx}_pdone0")
    a(f"""s_waitcnt lgkmcnt(0)
    v_add_f32 v36, v36, v37
    v_add_f32 v38, v38, v39
    v_add_u32 v54, {K1_ST + 1024}, v55
    v_add_f32 v36, v36, v38
    v_add_u32 v55, {K1_ST}, v34
    ds_write_b32 v54, v36
    s_waitcnt vmcnt(0)
    ds_write_b128 v55, v[28:31]""")
    a.label(f"{pfx}_pdone")
    a("s_waitcnt lgkmcnt(0)\ns_barrier")
    prof_stamp(a, 2); prof_stamp(a, 3)
    prof_end(a, 2, sW, 8, sWS, vtmp=20)
    a("s_endpgm")
    a.label(f"{pfx}_gemm")
    vXa0 = [8, 9, 10, 11]; vWa0 = 12; vXa = [13, 14, 15, 16]; vWa = 17
    vXf = [20, 28, 36, 44]; vWf = [52, 60, 68, 76]; vA = [[84, 100], [116, 132]]
    a(f"""s_lshr_b32 s{sWR}, s{sW}, 1
    s_and_b32 s{sWC}, s{sW}, 1
    s_waitcnt lgkmcnt(0)""")
    srd(a, sX, 36, 37, 2048*512*2)
    srd(a, sWS, 42, 43, WS_USED)
    a(f"""
    v_and_b32 v{vT}, 31, v{vL}               ; t
    v_lshrrev_b32 v{vT2}, 5, v{vL}           ; h
    v_lshrrev_b32 v{vT3}, 1, v{vT}
    v_and_b32 v{vT3}, 7, v{vT3}              ; f
    v_xor_b32 v{vT3}, v{vT3}, v{vT2}         ; f ^ h
    s_lshl_b32 s{sT}, s{sWR}, 13
    v_lshlrev_b32 v{vT}, 7, v{vT}
    v_add_u32 v{vT}, s{sT}, v{vT}            ; row*128
    """)
    for ks in range(4):
        a(f"v_xor_b32 v{vXa0[ks]}, {2*ks}, v{vT3}\nv_lshl_add_u32 v{vXa0[ks]}, v{vXa0[ks]}, 4, v{vT}")
    w_addrs([vWa0], [f"s{sWC}"], 0)
    for i in range(64): a(f"v_mov_b32 v{84+i}, 0")
    for b in (2, 3):
        for i in range(8): a(f"v_mov_b32 v{vXf[b]+i}, 0\nv_mov_b32 v{vWf[b]+i}, 0")
    a(f"s_mov_b32 s{sC}, 0")
    def reads(ks, slot):
        L = [f"ds_read_b128 {vr(vXf[ks]+4*t,4)}, v{vXa0[ks]} offset:{slot*16384 + t*4096}" for t in range(2)]
        for s_ in range(2):
            for jj in range(2):
                L.append(f"ds_read_b64_tr_b16 {vr(vWf[ks]+4*s_+2*jj,2)}, v{vWa0} offset:{slot*16384 + s_*8192 + ks*2048 + jj*512}")
        return L
    def mfmas(ks, typ):
        L = []
        for t in range(2):
            for s_ in range(2):
                x, w = vr(vXf[ks] + 4*t, 4), vr(vWf[ks] + 4*s_, 4)
                ops = f"{x}, {w}" if (typ == 1 and s_ == 0) else f"{w}, {x}"
                L.append(f"v_mfma_f32_32x32x16_bf16 {vr(vA[t][s_],16)}, {ops}, {vr(vA[t][s_],16)}")
        return L
    def interleave(m, r, split):
        k = 0
        if X.get("nomfma"): m = ["s_nop 0"] * 4
        if X.get("noread"): r = []
        for j in range(4):
            a(m[j])
            for _ in range(split[j]):
                if k < len(r): a(r[k]); k += 1
    def gemm_loop(typ):
        p = f"{pfx}_g{typ}"
        sp = X.get("split", [2, 2, 2, 0]); spl = X.get("splitl", [3, 3, 0, 0])
        prof_stamp(a, 0)
        a.L.append(".p2align 6")
        a.label(p)
        for slot in range(4):
            a("s_waitcnt lgkmcnt(0)\ns_barrier")
            interleave(mfmas(2, typ), reads(0, slot), sp)
            interleave(mfmas(3, typ), reads(1, slot), sp)
            a("s_waitcnt lgkmcnt(6)")
            interleave(mfmas(0, typ), reads(2, slot), sp)
            a("s_waitcnt lgkmcnt(6)")
            m = mfmas(1, typ)
            if slot == 3:
                interleave(m[:4], reads(3, slot), spl) if False else None
                a(m[0] if not X.get("nomfma") else "s_nop 0")
                rr = [] if X.get("noread") else reads(3, slot)
                for r in rr[:3]: a(r)
                a(m[1] if not X.get("nomfma") else "s_nop 0")
                for r in rr[3:]: a(r)
                a(f"s_add_u32 s{sC}, s{sC}, 1\ns_cmp_lt_u32 s{sC}, 2")
                a(m[2] if not X.get("nomfma") else "s_nop 0")
                a(m[3] if not X.get("nomfma") else "s_nop 0")
                a(f"s_cbranch_scc1 {p}")
            else:
                interleave(m, reads(3, slot), spl)
        prof_stamp(a, 1)
        a("s_waitcnt lgkmcnt(0)")
        if typ == 1: a("s_barrier")
        for m in mfmas(2, typ) + mfmas(3, typ): a(m)
    S = f"s[{sWS}:{sWS+3}]"
    vLa = 2; vKo = 3; vVo = 4
    def epi_common():
        a(f"""
        v_lshlrev_b32 v{vLa}, 4, v{vL}            ; lane*16
        v_and_b32 v5, 31, v{vL}                   ; t / n
        v_lshrrev_b32 v6, 5, v{vL}                ; h
        s_lshl_b32 s36, s{sRB}, 2
        s_lshl_b32 s{sT}, s{sWR}, 1
        s_add_u32 s36, s36, s{sT}
        s_lshl_b32 s37, s{sJ}, 2
        s_lshl_b32 s{sT}, s{sWC}, 1
        s_add_u32 s37, s37, s{sT}
        s_lshl_b32 s38, s37, 16
        s_lshl_b32 s{sT2}, s36, 10
        s_add_u32 s38, s38, s{sT2}
        """)
    a(f"s_cmp_eq_u32 s{sTyp}, 0\ns_cbranch_scc0 {pfx}_gB")
    gemm_loop(0)
    epi_common()
    a(f"""
    v_and_b32 v7, 19, v5
    v_bfe_u32 v8, v5, 2, 1
    v_lshl_or_b32 v7, v8, 3, v7
    v_bfe_u32 v8, v5, 3, 1
    v_lshl_or_b32 v7, v8, 2, v7               ; pi(t)
    v_lshl_add_u32 v7, v6, 5, v7
    v_lshlrev_b32 v{vKo}, 4, v7               ; (h*32 + pi(t))*16
    s_mov_b32 s{sT2}, {hex(f2u(QSCALE))}
    s_nop 7
    """)
    prof_stamp(a, 2)
    for t in range(2):
        A = vA[t][1]
        for i in range(8): a(f"v_cvt_pk_bf16_f32 v{20+8*t+i}, v{A+2*i}, v{A+2*i+1}")
        for hh in range(2):
            a(f"s_add_u32 s{sT}, s38, {hex(WS_KF + hh*65536 + t*1024)}\nbuffer_store_dwordx4 {vr(20+8*t+4*hh,4)}, v{vKo}, {S}, s{sT} offen {SF}")
    for t in range(2):
        A = vA[t][0]
        for i in range(16): a(f"v_mul_f32 v{A+i}, s{sT2}, v{A+i}")
        for i in range(8): a(f"v_cvt_pk_bf16_f32 v{36+8*t+i}, v{A+2*i}, v{A+2*i+1}")
        for hh in range(2):
            a(f"s_add_u32 s{sT}, s38, {hh*65536 + t*1024}\nbuffer_store_dwordx4 {vr(36+8*t+4*hh,4)}, v{vLa}, {S}, s{sT} offen {SF}")
    prof_stamp(a, 3)
    prof_end(a, 2, sW, 8, sWS, vtmp=20)
    a("s_endpgm")
    a.label(f"{pfx}_gB")
    gemm_loop(1)
    epi_common()
    a(f"""
    v_lshrrev_b32 v7, 4, v5                   ; n>>4
    v_lshlrev_b32 v7, 16, v7
    v_lshl_add_u32 v7, v6, 8, v7
    v_and_b32 v8, 15, v5
    v_lshl_add_u32 v{vVo}, v8, 4, v7          ; (n>>4)*65536 + h*256 + d*16
    s_lshl_b32 s39, s36, 15                   ; tblock*32*1024
    s_lshl_b32 s{sT2}, s37, 10
    s_add_u32 s39, s39, s{sT2}
    s_add_u32 s39, s39, {hex(WS_H1)}
    s_lshl_b32 s{sT2}, s{sWR}, 9
    s_add_u32 s{sT2}, s{sT2}, {K1_ST}
    v_lshl_add_u32 v9, v5, 3, s{sT2}
    s_lshl_b32 s{sT2}, s{sWC}, 7
    s_add_u32 s{sT2}, s{sT2}, {K1_ST + 1024}
    v_lshl_add_u32 v10, v6, 4, s{sT2}
    s_nop 4
    """)
    for t in range(2):
        A = vA[t][0]
        for i in range(8): a(f"v_cvt_pk_bf16_f32 v{20+8*t+i}, v{A+2*i}, v{A+2*i+1}")
        a(f"s_add_u32 s{sT}, s38, {hex(WS_VF + t*1024)}")
        a(f"buffer_store_dwordx4 {vr(20+8*t,4)}, v{vVo}, {S}, s{sT} offen {SF}")
        a(f"buffer_store_dwordx4 {vr(24+8*t,4)}, v{vVo}, {S}, s{sT} offen offset:512 {SF}")
    a("s_barrier")
    prof_stamp(a, 2)
    a("ds_read_b64 v[12:13], v9\nds_read_b64 v[14:15], v9 offset:256")
    for i in range(4): a(f"ds_read_b128 {vr(36+4*i,4)}, v10 offset:{32*i}")
    gelu_consts(a, 52)
    a("s_waitcnt lgkmcnt(0)")
    for t in range(2):
        h = vA[t][1]
        emit_interleaved(a, [ln_pk(h + 2*i, 36 + 2*i, 12 + 2*t) for i in range(8)])
        for g in range(0, 16, 8):
            emit_interleaved(a, [gelu_pk(h + g + 2*i, 60 + 2*i, 52) for i in range(4)])
        for i in range(8): a(f"v_cvt_pk_bf16_f32 v{72+i}, v{h+2*i}, v{h+2*i+1}")
        a(f"s_add_u32 s{sT}, s39, {t*32768}")
        a(f"buffer_store_dwordx4 {vr(72,4)}, v{vLa}, {S}, s{sT} offen {SF}")
        a(f"buffer_store_dwordx4 {vr(76,4)}, v{vLa}, {S}, s{sT} offen offset:1024 {SF}")
        a("s_nop 1")
    prof_stamp(a, 3)
    prof_end(a, 2, sW, 8, sWS, vtmp=20)
    a("s_endpgm")
    return 152
```

```python
import sys, os
from common import *
import k1, attn2, roles64, role_w3, gemm64, chain4
MAIN = "gated_mix__softmax_full_mha__mixer_s_mlp__prompt_kernel"
def build(path, variant="seq5", nempty=0):
    a = Asm()
    hdr = open("gated_mix__softmax_full_mha__mixer_s_mlp__prompt.s.ref").read().split("\n")
    for l in hdr:
        if l.startswith("; Override") : break
        a.L.append(l)
    ks = [("k1_kernel", 256, k1.K1_LDS, lambda p: k1.gen_k1(a, p)),
          ("attn_kernel", 256, attn2.ATT_LDS, lambda p: attn2.gen_attn(a, p, 2)),
          ("w2_kernel", 256, roles64.W2_LDS, lambda p: roles64.gen_w2(a, p, 2)),
          ("w3_kernel", 256, role_w3.W3_LDS, lambda p: role_w3.gen_w3(a, p, 2)),
          (MAIN, 256, roles64.FIN_LDS, lambda p: roles64.gen_final(a, p, 2))]
    if variant == "merge3":
        def mid(p):
            import common
            a(f"s_cmp_lt_u32 s2, 256\ns_cbranch_scc1 {p}_att")
            a(f"s_cmp_lt_u32 s2, 512\ns_cbranch_scc1 {p}_w2")
            a("s_sub_u32 s3, s2, 512")
            common.PROF_BASE = 3 * 0x10000
            n3 = role_w3.gen_w3(a, p + "C", 3, merged=True, prio=int(os.environ.get("PRIO3", "2")))
            a.label(f"{p}_w2")
            a("s_sub_u32 s3, s2, 256")
            common.PROF_BASE = 2 * 0x10000
            n2 = roles64.gen_w2(a, p + "B", 3, publish=True, prio=int(os.environ.get("PRIO2", "2")))
            a.label(f"{p}_att")
            common.PROF_BASE = 1 * 0x10000
            n1 = attn2.gen_attn(a, p + "A", 2, prefetch=True)
            return max(n1, n2, n3)
        ks = [ks[0], ("mid_kernel", 768, max(attn2.ATT_LDS, roles64.W2_LDS, role_w3.W3_LDS), mid), ks[4]]
    if variant == "chain3":
        def mid(p):
            import common
            a(f"s_cmp_lt_u32 s2, 256\ns_cbranch_scc0 {p}_att")
            a("s_mov_b32 s3, s2")
            syn = os.environ.get("SYN")
            if syn == "exit": a("s_endpgm")
            if syn == "sleep": a("\n".join(["s_sleep 127"]*4) + "\ns_endpgm")
            if syn and syn.startswith("valu"):
                n = int(syn[4:])
                a(f"s_mov_b32 s10, {n}\nL_syn:\n" + "\n".join(["v_add_f32 v8, v8, v8"]*8) + "\ns_sleep 2\ns_sub_u32 s10, s10, 1\ns_cmp_lg_u32 s10, 0\ns_cbranch_scc1 L_syn\ns_endpgm")
            if syn and syn.startswith("mfma"):
                n = int(syn[4:])
                a(f"s_mov_b32 s10, {n}\nL_syn:\n" + "\n".join(["v_mfma_f32_32x32x16_bf16 v[16:31], v[8:11], v[12:15], v[16:31]"]*4) + "\ns_sleep 4\ns_sub_u32 s10, s10, 1\ns_cmp_lg_u32 s10, 0\ns_cbranch_scc1 L_syn\ns_endpgm")
            if syn and syn.startswith("dsrd"):
                n = int(syn[4:])
                a(f"v_and_b32 v1, 63, v0\nv_lshlrev_b32 v1, 4, v1\ns_mov_b32 s10, {n}\nL_syn:\n" + "\n".join(["ds_read_b64_tr_b16 v[16:17], v1"]*6) + "\ns_waitcnt lgkmcnt(0)\ns_sleep 2\ns_sub_u32 s10, s10, 1\ns_cmp_lg_u32 s10, 0\ns_cbranch_scc1 L_syn\ns_endpgm")
            common.PROF_BASE = 2 * 0x10000
            pr = os.environ.get("PRIOC")
            n2 = roles64.gen_w2(a, p + "B", 3, publish=True, prio=int(pr) if pr else None, cont=p + "C_start")
            a.label(p + "C_start")
            common.PROF_BASE = 3 * 0x10000
            n3 = role_w3.gen_w3(a, p + "C", 3, merged=True)
            a.label(f"{p}_att")
            a("s_sub_u32 s3, s2, 256")
            common.PROF_BASE = 1 * 0x10000
            n1 = attn2.gen_attn(a, p + "A", 3, prefetch=True, setprio0=os.environ.get("PRIOA"))
            return max(n1, n2, n3)
        ks = [ks[0], ("mid_kernel", 512, max(attn2.ATT_LDS, roles64.W2_LDS, role_w3.W3_LDS), mid), ks[4]]
    if variant in ("chain4", "chain4b"):
        g4 = variant == "chain4"
        def mid(p):
            import common
            a(f"s_cmp_lt_u32 s2, 256\ns_cbranch_scc0 {p}_att")
            a("s_mov_b32 s3, s2")
            n2 = chain4.gen_chain(a, p + "C", 3, with_g4=g4)
            a.label(f"{p}_att")
            a("s_sub_u32 s3, s2, 256")
            common.PROF_BASE = 1 * 0x10000
            n1 = attn2.gen_attn(a, p + "A", 3, prefetch=True, setprio0=os.environ.get("PRIOA", "1"), pf_w4=not g4)
            return max(n1, n2)
        ks = [ks[0], ("mid_kernel", 512, max(attn2.ATT_LDS, chain4.CH_LDS), mid),
              (MAIN, 256, roles64.FO_LDS, lambda p: roles64.gen_final_wo(a, p, 2)) if g4 else ks[4]]
    if variant == "two":
        def mid(p):
            import common
            a(f"s_cmp_lt_u32 s2, 256\ns_cbranch_scc0 {p}_att")
            a("s_mov_b32 s3, s2")
            n2 = chain4.gen_chain(a, p + "C", 3, with_g4=True, fuse_final=True)
            a.label(f"{p}_att")
            a("s_sub_u32 s3, s2, 256")
            common.PROF_BASE = 1 * 0x10000
            n1 = attn2.gen_attn(a, p + "A", 3, prefetch=True, setprio0=os.environ.get("PRIOA", "1"), pf_w4=False, publish=True)
            return max(n1, n2)
        ks = [ks[0], (MAIN, 512, max(attn2.ATT_LDS, chain4.CH_LDS), mid)]
    for e in range(nempty):
        ks.insert(1, ("empty_kernel", 256, 0, None))
    for n, g, lds, _ in ks:
        a.L.append(f"; @launch kernel={n} grid=({g},1,1) block=(512,1,1) lds={lds}")
    a.L.append('.amdgcn_target "amdgcn-amd-amdhsa--gfx950"\n.text')
    descs = ""
    done = set()
    for i, (n, g, lds, f) in enumerate(ks):
        if n in done: continue
        done.add(n)
        if f is None:
            kernel_header(a, n); a("s_endpgm"); descs += kernel_desc(n, 8); continue
        kernel_header(a, n)
        a(f"s_cmp_ge_u32 s2, {g}\ns_cbranch_scc1 L_exit{i}")
        import common
        common.PROF_BASE = (i if variant == "seq5" else [0, 1, 4][i]) * 0x10000
        nv = f(f"K{i}")
        a.label(f"L_exit{i}"); a("s_endpgm")
        descs += kernel_desc(n, nv)
    a.label("L_text_end")
    a("s_endpgm")
    s = a.text() + '.section .rodata,"a"\n.p2align 6\n' + descs
    open(path, "w").write(s)
if __name__ == "__main__":
    import os
    build(sys.argv[1] if len(sys.argv) > 1 else "all.s", variant=os.environ.get("VARIANT", "seq5"), nempty=int(sys.argv[2]) if len(sys.argv) > 2 else 0)
```

```python
from common import *
import os
ATT_SLOT = 16384
ATT_NS = 5
ATT_XCH = 2 * ATT_SLOT
ATT_LDS = ATT_NS * ATT_SLOT
def vr(b, n=1): return f"v{b}" if n == 1 else f"v[{b}:{b+n-1}]"

def gen_attn(a, pfx, s_id, prof=False, zero_rows=True, setprio=None, prefetch=False, setprio0=None, pf_w4=True, publish=False):
    sWS = 8
    sW, sHEAD, sT = 12, 13, 14
    sKsrc, sVsrc = 15, 16
    sSlotN, sSlotD = 17, 18
    sC = 19
    sMask = 20
    sTmp = 22
    sQoff, sOoff = 23, 24
    sK0, sV0 = 25, 26
    sKH = 27; sQP = 28; sLw = 29; sSlotC = 40
    vLane16 = 1; vKa = 2; vVa = 3; vKa0 = 4; vVa0 = 5; vIdx = 6; vT0 = 7; vT1 = 8; vT2 = 9; vM = [10, 11]
    vQ = [12, 16]; vK = 20; vV0 = 24; vV1 = [28, 32]
    vS = [36, 52]; vO = [68, 84]; vC = 100
    NV = 116
    S = f"s[{sWS}:{sWS+3}]"
    a.c("==== attention role ====")
    prof_start(a)
    if setprio0: a(f"s_setprio {setprio0}")
    a(f"s_load_dwordx2 s[4:5], s[0:1], {KA['ws']}")
    a(f"""
    v_lshrrev_b32 v{vT0}, 6, v0
    v_and_b32 v{vT1}, 63, v0
    v_readfirstlane_b32 s{sW}, v{vT0}
    v_lshlrev_b32 v{vLane16}, 4, v{vT1}
    s_and_b32 s{sTmp}, s{s_id}, 7
    s_lshr_b32 s{sT}, s{s_id}, 3
    s_and_b32 s{sHEAD}, s{sT}, 3
    s_lshl_b32 s{sTmp}, s{sTmp}, 2
    s_add_u32 s{sHEAD}, s{sHEAD}, s{sTmp}      ; head
    s_lshr_b32 s{sT}, s{sT}, 2                 ; qb (0..7)
    s_and_b32 s{sQP}, s{sW}, 3
    s_lshr_b32 s{sKH}, s{sW}, 2
    s_lshl_b32 s{sT}, s{sT}, 3
    s_lshl_b32 s{sTmp}, s{sQP}, 1
    s_add_u32 s{sT}, s{sT}, s{sTmp}
    s_lshl_b32 s{sTmp}, s{sHEAD}, 16           ; head*64*1024
    s_lshl_b32 s{sQoff}, s{sT}, 10
    s_add_u32 s{sQoff}, s{sQoff}, s{sTmp}
    s_lshl_b32 s{sV0}, s{sKH}, 15              ; khalf*32*1024
    s_add_u32 s{sTmp}, s{sTmp}, s{sV0}
    s_add_u32 s{sK0}, s{sTmp}, {hex(WS_KF)}
    s_add_u32 s{sV0}, s{sTmp}, {hex(WS_VF)}
    s_add_u32 s{sOoff}, s{sT}, s{sKH}
    s_lshl_b32 s{sOoff}, s{sOoff}, 15          ; *32*1024
    s_lshl_b32 s{sTmp}, s{sHEAD}, 10
    s_add_u32 s{sOoff}, s{sOoff}, s{sTmp}
    s_add_u32 s{sOoff}, s{sOoff}, {hex(WS_OF)}
    s_lshl_b32 s{sTmp}, s{sQP}, 10
    s_add_u32 s{sKsrc}, s{sK0}, s{sTmp}
    s_add_u32 s{sVsrc}, s{sV0}, s{sTmp}
    s_lshl_b32 s{sLw}, s{sKH}, 13              ; khalf*8192
    s_add_u32 s{sLw}, s{sLw}, s{sTmp}
    s_mov_b32 s{sMask}, 0xffff
    s_mov_b32 s{sMask+1}, 0xffff
    s_waitcnt lgkmcnt(0)
    """)
    srd(a, sWS, 4, 5, WS_USED)
    a(f"s_load_dwordx2 s[32:33], s[0:1], {KA['w4']}\ns_load_dwordx2 s[34:35], s[0:1], {KA['wo']}")
    a(f"""s_lshr_b32 s{sTmp}, s{s_id}, 3
    s_lshl_b32 s{sTmp}, s{sTmp}, 3
    s_add_u32 s{sTmp}, s{sTmp}, s{sW}
    s_lshl_b32 s36, s{sTmp}, 10
    s_mov_b32 s38, 4096""")
    srd(a, 64, 4, 5, WS_USED)
    pf_late = True
    def dma_chunk(slot_sgpr):
        a(f"""
        s_add_u32 m0, s{slot_sgpr}, s{sLw}
        s_nop 0
        buffer_load_dwordx4 v{vLane16}, {S}, s{sKsrc} offen lds
        s_add_u32 m0, m0, 4096
        s_add_u32 s{sKsrc}, s{sKsrc}, 4096
        buffer_load_dwordx4 v{vLane16}, {S}, s{sVsrc} offen lds
        s_add_u32 s{sVsrc}, s{sVsrc}, 4096
        """)
    a(f"buffer_load_dwordx4 {vr(vQ[0],4)}, v{vLane16}, {S}, s{sQoff} offen")
    a(f"buffer_load_dwordx4 {vr(vQ[1],4)}, v{vLane16}, {S}, s{sQoff} offen offset:1024")
    NPRE = int(os.environ.get("ATT_NPRE", ATT_NS - 1))
    for c in range(NPRE):
        a(f"s_mov_b32 s{sSlotD}, {c*ATT_SLOT}")
        dma_chunk(sSlotD)
    a(f"s_mov_b32 s{sSlotD}, {(ATT_NS-1)*ATT_SLOT}\ns_mov_b32 s{sSlotN}, {ATT_SLOT}\ns_mov_b32 s{sC}, 0\ns_mov_b32 s{sSlotC}, 0")
    a(f"""
    s_lshl_b32 s{sTmp}, s{sKH}, 13
    v_add_u32 v{vKa0}, s{sTmp}, v{vLane16}
    v_mov_b32 v{vKa}, v{vKa0}
    v_lshrrev_b32 v{vT0}, 5, v{vT1}            ; ha
    v_and_b32 v{vT2}, 15, v{vT1}               ; m
    v_lshlrev_b32 v{vT0}, 8, v{vT0}
    v_lshlrev_b32 v{vT2}, 4, v{vT2}
    v_add_u32 v{vVa0}, v{vT0}, v{vT2}
    v_add_u32 v{vVa0}, s{sTmp}, v{vVa0}
    v_add_u32 v{vVa0}, 4096, v{vVa0}
    v_mov_b32 v{vVa}, v{vVa0}
    v_mov_b32 v{vIdx}, 0xdddddddd
    """)
    if zero_rows:
        a(f"""v_and_b32 v{vT0}, 27, v{vT1}
        v_cmp_eq_u32 vcc, 16, v{vT0}
        v_mov_b32 v{vT2}, 0x3f803f80
        s_nop 0
        v_cndmask_b32 v{vT0}, 0, v{vT2}, vcc""")
    else:
        a(f"v_mov_b32 v{vT0}, 0x3f803f80")
    for i in range(4):
        a(f"v_mov_b32 v{vV0+i}, v{vT0}\nv_mov_b32 v{vV1[0]+i}, v{vT0}\nv_mov_b32 v{vV1[1]+i}, v{vT0}")
    for i in range(16): a(f"v_mov_b32 v{vO[0]+i}, 0\nv_mov_b32 v{vO[1]+i}, 0")
    if os.environ.get("ATT_M0", "1") == "1":
        a(f"v_mov_b32 v{vM[0]}, 0\nv_mov_b32 v{vM[1]}, 0")
        for i in range(16): a(f"v_mov_b32 v{vS[1]+i}, 0")
    a("s_waitcnt lgkmcnt(0)")
    srd(a, 56, 32, 33, 1376*512*2 if (prefetch and pf_w4) else 0); srd(a, 60, 34, 35, 512*512*2 if (prefetch and not publish) else 0)
    a(f"s_waitcnt vmcnt({2*(NPRE-1)})\ns_barrier")
    for c in range(NPRE, ATT_NS - 1):
        a(f"s_mov_b32 s39, {c*ATT_SLOT}")
        dma_chunk(39)
    a(f"ds_read_b128 {vr(vK,4)}, v{vKa}\ns_waitcnt lgkmcnt(0)")
    M0 = os.environ.get("ATT_M0", "1") == "1"
    s0 = vS[0]
    def cross_max(dst):
        a(f"v_mov_b32 v{vT1}, v{vT0}\ns_nop 1\nv_permlane32_swap_b32 v{vT0}, v{vT1}\ns_nop 1\nv_max_f32 v{dst}, v{vT0}, v{vT1}")
    def setC(src):
        for i in range(16): a(f"v_mul_f32 v{vC+i}, -1.0, v{src}")
    CIN = "0" if M0 else vr(vC, 16)
    a(f"v_mfma_f32_32x32x16_bf16 {vr(vS[0],16)}, {vr(vK,4)}, {vr(vQ[0],4)}, 0")
    if not M0: a(f"v_mfma_f32_32x32x16_bf16 {vr(vS[1],16)}, {vr(vK,4)}, {vr(vQ[1],4)}, 0")
    if os.environ.get("ATT_CLUSTER", "0") != "1":
        a(f"s_mov_b64 exec, s[{sMask}:{sMask+1}]")
        a(f"ds_read_b128 {vr(vV0,4)}, v{vVa}\nds_read_b128 {vr(vV1[0],4)}, v{vVa} offset:512")
        a("s_mov_b64 exec, -1")
    if not M0:
        a("s_nop 15")
        a(f"v_max3_f32 v{vT0}, v{s0}, v{s0+1}, v{s0+2}")
        for i in range(3, 31, 2): a(f"v_max3_f32 v{vT0}, v{vT0}, v{s0+i}, v{s0+i+1}")
        a(f"v_max_f32 v{vT0}, v{vT0}, v{s0+31}")
        cross_max(vM[0])
        a(f"v_mov_b32 v{vM[1]}, v{vM[0]}")
        setC(vM[0])
        for i in range(0 if os.environ.get("ATT_CLUSTER", "0") == "1" else 8, 16): a(f"v_mov_b32 v{vS[1]+i}, 0")
        a(f"v_mfma_f32_32x32x16_bf16 {vr(vS[0],16)}, {vr(vK,4)}, {vr(vQ[0],4)}, {vr(vC,16)}")
    if setprio is not None:
        a(f"s_cmp_eq_u32 s{sKH}, {setprio}\ns_cbranch_scc0 {pfx}_noprio\ns_setprio 1")
        a.label(f"{pfx}_noprio")
    IT = os.environ.get("ATT_ITST")
    if not IT: prof_stamp(a, 0)
    if setprio0: a("s_setprio 0")
    a("s_nop 15")
    a.L.append(".p2align 6")
    a.label(f"{pfx}_loop")
    def ex(b, i): a(f"v_exp_f32 v{vS[b]+i}, v{vS[b]+i}")
    def SM(o, v, s): a(f"v_smfmac_f32_32x32x32_bf16 {vr(vO[o],16)}, {vr(v,4)}, {vr(s,8)}, v{vIdx}")
    def QK(b): a(f"v_mfma_f32_32x32x16_bf16 {vr(vS[b],16)}, {vr(vK,4)}, {vr(vQ[b],4)}, {CIN}")
    CL = os.environ.get("ATT_CLUSTER", "0") == "1"
    def dma_boundary():
        a(f"""s_add_u32 m0, s{sSlotD}, s{sLw}
        s_nop 0
        buffer_load_dwordx4 v{vLane16}, s[64:67], s{sKsrc} offen lds
        s_add_u32 m0, m0, 4096
        s_add_u32 s{sKsrc}, s{sKsrc}, s38
        buffer_load_dwordx4 v{vLane16}, s[64:67], s{sVsrc} offen lds
        s_add_u32 s{sVsrc}, s{sVsrc}, s38""")
    if CL:
      for p in range(4):
        SM(1, vV0, vS[1])
        if p == 3: a(f"s_waitcnt vmcnt({2*(ATT_NS-3)})")
        elif p == 0: a(f"v_add_u32 v{vVa}, s{sSlotC}, v{vVa0}")
        else: a("s_nop 0")
        SM(1, vV1[0], vS[1] + 8)
        QK(1)
        if p == 3:
            a("s_barrier")
            a(f"v_add_u32 v{vKa}, s{sSlotN}, v{vKa0}")
        a(f"ds_read_b128 {vr(vK,4)}, v{vKa} offset:{((p+1)&3)*1024}")
        a(f"s_mov_b64 exec, s[{sMask}:{sMask+1}]")
        a(f"ds_read_b128 {vr(vV0,4)}, v{vVa} offset:{p*1024}\nds_read_b128 {vr(vV1[0],4)}, v{vVa} offset:{p*1024+512}")
        a("s_mov_b64 exec, -1")
        for i in range(16):
            ex(0, i)
            if p == 3 and i == 7: dma_boundary()
        a("s_waitcnt lgkmcnt(0)")
        SM(0, vV0, vS[0])
        a("s_nop 0")
        SM(0, vV1[0], vS[0] + 8)
        QK(0)
        for i in range(16): ex(1, i)
    else:
      for p in range(4):
          ex(0, 0); ex(0, 1)
          SM(1, vV1[(p-1) & 1], vS[1] + 8)
          ex(0, 2); ex(0, 3); ex(0, 4)
          QK(1)
          if p == 3:
              a(f"s_waitcnt vmcnt({2*(ATT_NS-3)})")
              if os.environ.get("ATT_ITST"):
                  lst = [int(x) for x in os.environ["ATT_ITST"].split(",")]
                  pre = os.environ.get("ATT_PRE")
                  if pre:
                      for i, c in enumerate(lst):
                          a(f"s_cmp_eq_u32 s{sC}, {c}\ns_cbranch_scc0 {pfx}_isp{i}")
                          prof_stamp(a, 2*i) if i < 2 else None
                          a.label(f"{pfx}_isp{i}")
              a("s_barrier")
              if os.environ.get("ATT_ITST"):
                  for i, c in enumerate(lst):
                      a(f"s_cmp_eq_u32 s{sC}, {c}\ns_cbranch_scc0 {pfx}_is{i}")
                      if pre:
                          if i < 2: prof_stamp(a, 2*i+1)
                      else: prof_stamp(a, i)
                      a.label(f"{pfx}_is{i}")
              a(f"v_add_u32 v{vKa}, s{sSlotN}, v{vKa0}")
          a(f"ds_read_b128 {vr(vK,4)}, v{vKa} offset:{((p+1)&3)*1024}")
          for i in range(5, 10): ex(0, i)
          a("s_waitcnt lgkmcnt(2)")
          SM(0, vV0, vS[0])
          if p == 3:
              a(f"""s_add_u32 m0, s{sSlotD}, s{sLw}
              s_nop 0
              buffer_load_dwordx4 v{vLane16}, s[64:67], s{sKsrc} offen lds
              s_add_u32 m0, m0, 4096
              s_add_u32 s{sKsrc}, s{sKsrc}, s38
              buffer_load_dwordx4 v{vLane16}, s[64:67], s{sVsrc} offen lds
              s_add_u32 s{sVsrc}, s{sVsrc}, s38""")
          for i in range(10, 16): ex(0, i)
          ex(1, 0); ex(1, 1)
          a("s_waitcnt lgkmcnt(0)")
          SM(0, vV1[p & 1], vS[0] + 8)
          ex(1, 2); ex(1, 3); ex(1, 4)
          QK(0)
          for i in range(5, 10): ex(1, i)
          SM(1, vV0, vS[1])
          if p == 3:
              a(f"v_add_u32 v{vVa}, s{sSlotN}, v{vVa0}")
          voff = ((p + 1) & 3) * 1024
          a(f"s_mov_b64 exec, s[{sMask}:{sMask+1}]")
          a(f"ds_read_b128 {vr(vV0,4)}, v{vVa} offset:{voff}\nds_read_b128 {vr(vV1[(p+1)&1],4)}, v{vVa} offset:{voff+512}")
          a("s_mov_b64 exec, -1")
          for i in range(10, 16): ex(1, i)
    LASTC = 8 - (ATT_NS - 1)
    a(f"""
    s_mov_b32 s{sSlotC}, s{sSlotN}
    s_add_u32 s{sSlotN}, s{sSlotN}, {ATT_SLOT}
    s_cmp_eq_u32 s{sSlotN}, {ATT_NS*ATT_SLOT}
    s_cselect_b32 s{sSlotN}, 0, s{sSlotN}
    s_add_u32 s{sSlotD}, s{sSlotD}, {ATT_SLOT}
    s_cmp_eq_u32 s{sSlotD}, {ATT_NS*ATT_SLOT}
    s_cselect_b32 s{sSlotD}, 0, s{sSlotD}
    s_add_u32 s{sC}, s{sC}, 1
    s_cmp_eq_u32 s{sC}, {LASTC}
    s_cbranch_scc0 {pfx}_nsw1
    s_mov_b32 s64, s56
    s_mov_b32 s65, s57
    s_mov_b32 s66, s58
    s_mov_b32 s{sKsrc}, s36
    s_add_u32 s{sVsrc}, s36, 0x40000
    s_mov_b32 s38, 0x80000
    {pfx}_nsw1:
    s_cmp_eq_u32 s{sC}, 7
    s_cbranch_scc0 {pfx}_nsw2
    s_mov_b32 s64, s60
    s_mov_b32 s65, s61
    s_mov_b32 s66, s62
    s_mov_b32 s{sKsrc}, s36
    s_add_u32 s{sVsrc}, s36, 0x40000
    {pfx}_nsw2:
    s_cmp_lt_u32 s{sC}, 8
    s_cbranch_scc1 {pfx}_loop
    """)
    if not IT: prof_stamp(a, 1)
    if CL:
        a("s_nop 1")
        SM(1, vV0, vS[1]); SM(1, vV1[0], vS[1] + 8)
    else:
        a("s_nop 1")
        SM(1, vV1[1], vS[1] + 8)
    a("s_waitcnt lgkmcnt(0)\ns_nop 15")
    a(f"v_add_f32 v{vT0}, abs(v{vO[0]+8}), abs(v{vO[1]+8})")
    for o in range(2):
        for i in range(8): a(f"v_add_f32 v{vT0}, abs(v{vO[o]+i}), v{vT0}")
    a(f"""v_min_f32 v{vT1}, v{vO[0]+8}, v{vO[1]+8}
    s_mov_b32 s{sTmp}, 0x207
    v_cmp_class_f32 vcc, v{vT0}, s{sTmp}
    s_mov_b32 s{sTmp}, 0x2b800000
    v_cmp_gt_f32 s[30:31], s{sTmp}, v{vT1}
    s_nop 4
    s_or_b64 vcc, vcc, s[30:31]
    s_cmp_lg_u64 vcc, 0
    s_cbranch_scc1 {pfx}_fallback
    """)
    a.label(f"{pfx}_merge")
    if not IT: prof_stamp(a, 2)
    a("s_barrier")
    a(f"""s_mul_i32 s{sTmp}, s{sW}, 2560
    s_add_u32 s{sTmp}, s{sTmp}, {ATT_XCH}
    v_add_u32 v{vKa}, s{sTmp}, v{vLane16}
    s_xor_b32 s{sC}, s{sW}, 4
    s_mul_i32 s{sC}, s{sC}, 2560
    s_add_u32 s{sC}, s{sC}, {ATT_XCH}
    v_add_u32 v{vVa}, s{sC}, v{vLane16}
    v_lshrrev_b32 v{vT2}, 1, v{vLane16}
    v_add_u32 v{vKa0}, s{sTmp}, v{vT2}
    v_add_u32 v{vVa0}, s{sC}, v{vT2}
    s_cmp_eq_u32 s{sKH}, 0
    s_cbranch_scc0 {pfx}_m1
    """)
    def merge(keep, give):
        a(f"v_mov_b32 v{vO[give]+9}, v{vM[give]}")
        a(f"ds_write_b128 v{vKa}, {vr(vO[give],4)}\nds_write_b128 v{vKa}, {vr(vO[give]+4,4)} offset:1024\nds_write_b64 v{vKa0}, {vr(vO[give]+8,2)} offset:2048")
        a("s_waitcnt lgkmcnt(0)\ns_barrier")
        g = vO[give]
        a(f"ds_read_b128 {vr(g,4)}, v{vVa}\nds_read_b128 {vr(g+4,4)}, v{vVa} offset:1024\nds_read_b64 {vr(g+8,2)}, v{vVa0} offset:2048")
        a("s_waitcnt lgkmcnt(0)")
        k = vO[keep]
        a(f"""v_max_f32 v{vT0}, v{vM[keep]}, v{g+9}
        v_sub_f32 v{vT1}, v{vM[keep]}, v{vT0}
        v_sub_f32 v{vT2}, v{g+9}, v{vT0}
        v_exp_f32 v{vT1}, v{vT1}
        v_exp_f32 v{vT2}, v{vT2}
        s_nop 0
        v_mul_f32 v{k+8}, v{k+8}, v{vT1}
        v_fmac_f32 v{k+8}, v{g+8}, v{vT2}
        v_rcp_f32 v{vT0}, v{k+8}
        s_nop 0
        v_mul_f32 v{vT1}, v{vT1}, v{vT0}
        v_mul_f32 v{vT2}, v{vT2}, v{vT0}""")
        for i in range(8): a(f"v_mul_f32 v{k+i}, v{k+i}, v{vT1}\nv_fmac_f32 v{k+i}, v{g+i}, v{vT2}")
        for i in range(4): a(f"v_cvt_pk_bf16_f32 v{vK+i}, v{k+2*i}, v{k+2*i+1}")
        a(f"s_branch {pfx}_store")
    merge(0, 1)
    a.label(f"{pfx}_m1")
    merge(1, 0)
    a.label(f"{pfx}_store")
    a(f"buffer_store_dwordx4 {vr(vK,4)}, v{vLane16}, {S}, s{sOoff} offen {'sc1' if publish else ''}")
    if publish:
        a(f"""s_add_u32 s{sTmp}, s{sT}, s{sKH}
        s_lshl_b32 s{sTmp}, s{sTmp}, 5
        s_add_u32 s{sTmp}, s{sTmp}, s{sHEAD}
        s_lshl_b32 s{sTmp}, s{sTmp}, 2
        s_add_u32 s{sTmp}, s{sTmp}, {hex(WS_FLAGS + 4096)}
        v_mov_b32 v{vT0}, 1
        v_mov_b32 v{vT1}, 0
        s_waitcnt vmcnt(0)
        s_mov_b64 exec, 1
        buffer_store_dword v{vT0}, v{vT1}, {S}, s{sTmp} offen sc1
        s_mov_b64 exec, -1""")
    if not IT: prof_stamp(a, 3)
    prof_end(a, s_id, sW, 8, sWS, vtmp=36)
    a("s_endpgm")
    a.label(f"{pfx}_fallback")
    a(f"s_lshl_b32 s{sTmp}, s{sKH}, 13\nv_subrev_u32 v{vVa}, s{sTmp}, v{vVa0}\nv_subrev_u32 v{vVa}, 4096, v{vVa}")
    for t in range(2):
        a(f"v_mov_b32 v{vT0}, 0xff800000\ns_mov_b32 s{sC}, 0\ns_mov_b32 s{sKsrc}, s{sK0}")
        a.label(f"{pfx}_fb1_{t}")
        a(f"buffer_load_dwordx4 {vr(vK,4)}, v{vLane16}, {S}, s{sKsrc} offen\ns_waitcnt vmcnt(0)")
        a(f"v_mfma_f32_32x32x16_bf16 {vr(vS[0],16)}, {vr(vK,4)}, {vr(vQ[t],4)}, 0\ns_nop 15")
        for i in range(0, 16, 2): a(f"v_max3_f32 v{vT0}, v{vT0}, v{s0+i}, v{s0+i+1}")
        a(f"s_add_u32 s{sKsrc}, s{sKsrc}, 1024\ns_add_u32 s{sC}, s{sC}, 1\ns_cmp_lt_u32 s{sC}, 32\ns_cbranch_scc1 {pfx}_fb1_{t}")
        cross_max(vM[t])
        setC(vM[t])
        for i in range(16): a(f"v_mov_b32 v{vO[t]+i}, 0")
        a(f"s_mov_b32 s{sC}, 0\ns_mov_b32 s{sKsrc}, s{sK0}\ns_mov_b32 s{sVsrc}, s{sV0}")
        a.label(f"{pfx}_fb2_{t}")
        a(f"buffer_load_dwordx4 {vr(vK,4)}, v{vLane16}, {S}, s{sKsrc} offen")
        a(f"s_mov_b64 exec, s[{sMask}:{sMask+1}]")
        a(f"buffer_load_dwordx4 {vr(vV0,4)}, v{vVa}, {S}, s{sVsrc} offen")
        a(f"buffer_load_dwordx4 {vr(vV1[0],4)}, v{vVa}, {S}, s{sVsrc} offen offset:512")
        a("s_mov_b64 exec, -1\ns_waitcnt vmcnt(0)")
        a(f"v_mfma_f32_32x32x16_bf16 {vr(vS[0],16)}, {vr(vK,4)}, {vr(vQ[t],4)}, {vr(vC,16)}\ns_nop 15")
        for i in range(16): ex(0, i)
        a("s_nop 3")
        SM(t, vV0, vS[0]); SM(t, vV1[0], vS[0] + 8)
        a(f"s_add_u32 s{sKsrc}, s{sKsrc}, 1024\ns_add_u32 s{sVsrc}, s{sVsrc}, 1024\ns_add_u32 s{sC}, s{sC}, 1\ns_cmp_lt_u32 s{sC}, 32\ns_cbranch_scc1 {pfx}_fb2_{t}")
    a(f"s_nop 15\ns_branch {pfx}_merge")
    return NV
```

```python
from common import *
from k1 import vr, f2u, gelu_pk, gelu_consts, ln_pk, emit_interleaved
CH_LDS = 81920
sWS = 8; sWm = 12; sX = 48
sW, sWR, sWC, sRB, sCB, sC, sT, sT2 = 16, 17, 18, 19, 20, 21, 22, 23
sSlot, sSlotD, sKs, sXb, sWb, sKmax, sLd, sRow, sN0 = 24, 25, 26, 27, 28, 29, 30, 31, 32
vL = 1; vL16 = 2; vWd = 3; vXa0 = 4; vWa0 = 5; vXa = 6; vWa = 7; vT = 8; vT2 = 9; vT3 = 10
P = lambda r: f"v[{r}:{r+1}]"
import os
NOPK = os.environ.get("NOPK", "0") == "1"
NOCS = os.environ.get("NOCS", "0") == "1"
def unpk(lines):
    import re
    out = []
    for l in lines:
        for x in l.split("\n"):
            x = x.strip()
            m = re.match(r"v_pk_(add|mul|fma)_f32 (.*)", x)
            if not (NOPK and m): out.append(x); continue
            op, rest = m.group(1), m.group(2)
            sel = re.search(r"op_sel:\[([0-9,]+)\]", rest); selh = re.search(r"op_sel_hi:\[([0-9,]+)\]", rest)
            regs = [int(r) for r in re.findall(r"v\[(\d+):\d+\]", rest)]
            n = len(regs) - 1
            lo = [int(c) for c in sel.group(1).split(",")] if sel else [0]*n
            hi = [int(c) for c in selh.group(1).split(",")] if selh else [1]*n
            d, src = regs[0], regs[1:]
            a_lo = [f"v{r+lo[i]}" for i, r in enumerate(src)]; a_hi = [f"v{r+hi[i]}" for i, r in enumerate(src)]
            name = {"add": "v_add_f32", "mul": "v_mul_f32", "fma": "v_fma_f32"}[op]
            assert f"v{d}" not in a_hi, x
            out.append(f"{name} v{d}, " + ", ".join(a_lo)); out.append(f"{name} v{d+1}, " + ", ".join(a_hi))
    return out
class PkAsm:
    def __init__(self, a): self.a = a; self.L = a.L
    def __call__(self, s=""):
        for x in unpk([s]): self.a(x)
    def label(self, l): self.a.label(l)
    def c(self, s): self.a.c(s)

def wait_flags(a, pfx, s_off, n):
    a(f"""s_cmp_eq_u32 s{sW}, 0
    s_cbranch_scc0 {pfx}_wb
    v_min_u32 v{vT}, {n-1}, v{vL}
    v_lshlrev_b32 v{vT}, 2, v{vT}""")
    a.label(f"{pfx}_poll")
    a(f"""buffer_load_dword v{vT2}, v{vT}, s[{sWS}:{sWS+3}], s{s_off} offen sc1
    s_waitcnt vmcnt(0)
    v_cmp_ne_u32 vcc, 1, v{vT2}
    s_nop 4
    s_cmp_eq_u64 vcc, 0
    s_cbranch_scc1 {pfx}_wb
    s_sleep 4
    s_branch {pfx}_poll""")
    a.label(f"{pfx}_wb")
    a("s_barrier")
def set_flag(a, s_off):
    a(f"""v_mov_b32 v{vT}, 1
    v_mov_b32 v{vT2}, 0
    s_mov_b64 exec, 1
    buffer_store_dword v{vT}, v{vT2}, s[{sWS}:{sWS+3}], s{s_off} offen sc1
    s_mov_b64 exec, -1""")

vXf = 12; vWf = 28; vAcc = 44
def t64_setup(a):
    a(f"""
    s_lshr_b32 s{sWR}, s{sW}, 1
    s_and_b32 s{sWC}, s{sW}, 1
    s_lshl_b32 s{sLd}, s{sW}, 11
    v_lshrrev_b32 v{vT}, 3, v{vL}
    v_bfe_u32 v{vT2}, v{vL}, 4, 1
    v_lshlrev_b32 v{vT2}, 2, v{vT2}
    v_and_b32 v{vT3}, 7, v{vL}
    v_xor_b32 v{vT2}, v{vT2}, v{vT3}
    v_lshlrev_b32 v{vT2}, 4, v{vT2}
    v_lshl_add_u32 v{vWd}, v{vT}, 10, v{vT2}
    s_lshl_b32 s{sT}, s{sWR}, 10
    v_add_u32 v{vXa0}, s{sT}, v{vL16}
    v_lshrrev_b32 v{vT}, 5, v{vL}
    v_lshlrev_b32 v{vT}, 9, v{vT}
    v_bfe_u32 v{vT2}, v{vL}, 2, 2
    v_lshl_add_u32 v{vT}, v{vT2}, 7, v{vT}
    v_lshrrev_b32 v{vT2}, 1, v{vT2}
    v_xor_b32 v{vT2}, s{sWC}, v{vT2}
    v_lshl_add_u32 v{vT}, v{vT2}, 6, v{vT}
    v_bfe_u32 v{vT2}, v{vL}, 4, 1
    v_lshl_add_u32 v{vT}, v{vT2}, 5, v{vT}
    v_and_b32 v{vT2}, 3, v{vL}
    v_lshl_add_u32 v{vT}, v{vT2}, 3, v{vT}
    v_add_u32 v{vWa0}, 8192, v{vT}
    """)
def t64_tile(a, s_id):
    a(f"""
    s_and_b32 s{sT}, s{s_id}, 7
    s_lshr_b32 s{sT2}, s{s_id}, 3
    s_and_b32 s{sRB}, s{sT2}, 3
    s_lshl_b32 s{sT}, s{sT}, 2
    s_add_u32 s{sRB}, s{sRB}, s{sT}           ; rb 0..31
    s_lshr_b32 s{sCB}, s{sT2}, 2              ; cb 0..7
    s_lshl_b32 s{sRow}, s{sRB}, 1
    s_add_u32 s{sRow}, s{sRow}, s{sWR}
    s_lshl_b32 s{sN0}, s{sCB}, 2
    s_lshl_b32 s{sT}, s{sWC}, 1
    s_add_u32 s{sN0}, s{sN0}, s{sT}
    """)
def t64_seg(a, xbase, xks):
    a(f"""
    s_mov_b32 s{sKs}, s{sW}
    s_lshl_b32 s{sT}, s{sRB}, 1
    s_mul_i32 s{sXb}, s{sT}, {xks*1024}
    s_add_u32 s{sXb}, s{sXb}, {hex(xbase)}
    s_lshl_b32 s{sWb}, s{sCB}, 7
    s_mov_b32 s{sKmax}, {xks-1}
    """)
def t64_dma(a, xv, xks, nslots, xf="", part="XW", s_ks=None, s_slot=None, advance=True):
    ks_ = s_ks or sKs; sl_ = s_slot or sSlotD
    if "X" in part:
        a(f"""
        s_min_u32 s{sT}, s{ks_}, s{sKmax}
        s_lshl_b32 s{sT}, s{sT}, 10
        s_add_u32 s{sT}, s{sT}, s{sXb}
        s_add_u32 m0, s{sl_}, s{sLd}
        s_nop 0
        buffer_load_dwordx4 v{xv}, s[{sWS}:{sWS+3}], s{sT} offen {xf} lds
        s_add_u32 m0, m0, 1024
        s_add_u32 s{sT}, s{sT}, {xks*1024}
        buffer_load_dwordx4 v{xv}, s[{sWS}:{sWS+3}], s{sT} offen {xf} lds""")
    if "W" in part:
        a(f"""
        s_add_u32 s{sT}, s{sl_}, s{sLd}
        s_lshl_b32 s{sT2}, s{ks_}, 14
        s_add_u32 m0, s{sT}, 8192
        s_add_u32 s{sT2}, s{sT2}, s{sWb}
        buffer_load_dwordx4 v{vWd}, s[{sWm}:{sWm+3}], s{sT2} offen lds
        s_add_u32 m0, m0, 1024
        s_add_u32 s{sT2}, s{sT2}, 8192
        buffer_load_dwordx4 v{vWd}, s[{sWm}:{sWm+3}], s{sT2} offen lds""")
    if advance:
        a(f"""
        s_add_u32 s{ks_}, s{ks_}, 4
        s_add_u32 s{sl_}, s{sl_}, 16384
        s_cmp_eq_u32 s{sl_}, {nslots*16384}
        s_cselect_b32 s{sl_}, 0, s{sl_}""")
def t64_reads(a):
    a(f"v_add_u32 v{vXa}, s{sSlot}, v{vXa0}\nv_add_u32 v{vWa}, s{sSlot}, v{vWa0}")
    for ks in range(4):
        a(f"ds_read_b128 {vr(vXf+4*ks,4)}, v{vXa} offset:{ks*2048}")
        a(f"ds_read_b64_tr_b16 {vr(vWf+4*ks,2)}, v{vWa} offset:{ks*2048}\nds_read_b64_tr_b16 {vr(vWf+4*ks+2,2)}, v{vWa} offset:{ks*2048+1024}")
def t64_mfma(a, nslots, first=False, nks=4):
    A = vr(vAcc, 16)
    for ks in range(4):
        a(f"s_waitcnt lgkmcnt({9-3*ks})")
        if ks < nks:
            a(f"v_mfma_f32_32x32x16_bf16 {A}, {vr(vWf+4*ks,4)}, {vr(vXf+4*ks,4)}, {'0' if first and ks == 0 else A}")
        if ks == 0:
            a(f"s_add_u32 s{sSlot}, s{sSlot}, 16384\ns_cmp_eq_u32 s{sSlot}, {nslots*16384}\ns_cselect_b32 s{sSlot}, 0, s{sSlot}")
def t64_chunk(a, vm, nslots, issue=None, first=False, nks=4, dist=1):
    a(f"s_waitcnt vmcnt({vm})\ns_barrier")
    if os.environ.get("T64_BURST"):
        t64_reads(a)
        if issue: issue()
        t64_mfma(a, nslots, first, nks)
        return
    A = vr(vAcc, 16)
    a(f"v_add_u32 v{vXa}, s{sSlot}, v{vXa0}\nv_add_u32 v{vWa}, s{sSlot}, v{vWa0}")
    def rd(ks):
        b = (ks & 1) if dist == 2 else 0
        a(f"ds_read_b128 {vr(vXf+4*b,4)}, v{vXa} offset:{ks*2048}")
        a(f"ds_read_b64_tr_b16 {vr(vWf+4*b,2)}, v{vWa} offset:{ks*2048}\nds_read_b64_tr_b16 {vr(vWf+4*b+2,2)}, v{vWa} offset:{ks*2048+1024}")
    for ks in range(min(dist, nks)): rd(ks)
    if issue: issue()
    a(f"s_add_u32 s{sSlot}, s{sSlot}, 16384\ns_cmp_eq_u32 s{sSlot}, {nslots*16384}\ns_cselect_b32 s{sSlot}, 0, s{sSlot}")
    for ks in range(nks):
        b = (ks & 1) if dist == 2 else 0
        inflight_younger = min(dist - 1, nks - 1 - ks)
        a(f"s_waitcnt lgkmcnt({3*inflight_younger})")
        a(f"v_mfma_f32_32x32x16_bf16 {A}, {vr(vWf+4*b,4)}, {vr(vXf+4*b,4)}, {'0' if first and ks == 0 else A}")
        if ks + dist < nks: rd(ks + dist)

def gen_g0(a, pfx, s_id):
    NS = 4; XT = NS * 16384
    a.c("==== G0 ====")
    prof_start(a)
    t64_tile(a, s_id)
    vXd = [60, 61, 62, 63]
    a(f"v_and_b32 v{vT}, 31, v{vL}\nv_lshrrev_b32 v{vT2}, 5, v{vL}\nv_lshlrev_b32 v{vT2}, 9, v{vT2}")
    for i, d in enumerate((1, -1, 2, -2)):
        r = vXd[i]
        a(f"""v_add_u32 v{vT3}, {32 - d}, v{vT}
        v_and_b32 v{r}, 31, v{vT3}
        v_lshl_add_u32 v{r}, v{r}, 4, v{vT2}
        v_lshrrev_b32 v{vT3}, 5, v{vT3}
        v_lshl_add_u32 v{r}, v{vT3}, 15, v{r}""")
    a(f"""
    v_lshrrev_b32 v{vT}, 3, v{vL}
    v_and_b32 v{vT2}, 7, v{vL}
    v_lshlrev_b32 v{vT2}, 4, v{vT2}
    v_lshl_add_u32 v{vT3}, v{vT}, 10, v{vT2}
    s_lshl_b32 s{sT}, s{sRB}, 6
    s_lshl_b32 s{sT2}, s{sW}, 4
    s_add_u32 s{sT}, s{sT}, s{sT2}
    s_lshl_b32 s{sT}, s{sT}, 10
    s_lshl_b32 s{sT2}, s{sCB}, 7
    s_add_u32 s{sT}, s{sT}, s{sT2}
    s_lshl_b32 s{sT2}, s{sW}, 11
    s_add_u32 m0, s{sT2}, {XT}
    s_mov_b32 s{sWm}, s42
    s_mov_b32 s{sWm+1}, s43
    s_mov_b32 s{sWm+2}, {512*512*2}
    buffer_load_dwordx4 v{vT3}, s[{sX}:{sX+3}], s{sT} offen lds
    s_add_u32 m0, m0, 1024
    s_add_u32 s{sT}, s{sT}, 8192
    buffer_load_dwordx4 v{vT3}, s[{sX}:{sX+3}], s{sT} offen lds
    """)
    t64_seg(a, WS_H1 - 32768, 32)
    a(f"s_mov_b32 s{sSlotD}, 0\ns_mov_b32 s{sSlot}, 0")
    for c in range(3): t64_dma(a, vXd[c >> 1], 32, NS)
    prof_stamp(a, 0)
    for c in range(8):
        vm = 4 * min(2, 7 - c)
        iss = (lambda cc=c + 3: t64_dma(a, vXd[cc >> 1], 32, NS)) if c + 3 < 8 else None
        t64_chunk(a, vm, NS, iss, first=(c == 0))
    prof_stamp(a, 1)
    vR = 12; U = 20
    a(f"""
    v_and_b32 v{vT}, 31, v{vL}
    s_lshl_b32 s{sT}, s{sWR}, 12
    v_lshl_add_u32 v{vT}, v{vT}, 7, s{sT}
    v_lshrrev_b32 v{vT2}, 5, v{vL}
    v_lshl_add_u32 v{vT}, v{vT2}, 3, v{vT}
    s_lshl_b32 s{sT}, s{sWC}, 6
    s_add_u32 s{sT}, s{sT}, {XT}
    v_add_u32 v{vT}, s{sT}, v{vT}""")
    for i in range(4): a(f"ds_read_b64 {vr(vR+2*i,2)}, v{vT} offset:{16*i}")
    a("s_nop 4\ns_waitcnt lgkmcnt(0)")
    for i in range(8): a(f"v_lshlrev_b32 v{U+2*i}, 16, v{vR+i}\nv_and_b32 v{U+2*i+1}, 0xffff0000, v{vR+i}")
    for i in range(0, 16, 2): a(f"v_pk_add_f32 {P(vAcc+i)}, {P(vAcc+i)}, {P(U+i)}")
    for i in range(8): a(f"v_cvt_pk_bf16_f32 v{vR+i}, v{vAcc+2*i}, v{vAcc+2*i+1}")
    a(f"""s_lshl_b32 s{sT}, s{sRow}, 5
    s_add_u32 s{sT}, s{sT}, s{sN0}
    s_lshl_b32 s{sT}, s{sT}, 10
    s_add_u32 s{sT}, s{sT}, {hex(WS_X1)}
    buffer_store_dwordx4 {vr(vR,4)}, v{vL16}, s[{sWS}:{sWS+3}], s{sT} offen sc1
    buffer_store_dwordx4 {vr(vR+4,4)}, v{vL16}, s[{sWS}:{sWS+3}], s{sT} offen offset:1024 sc1""")
    for i in range(8): a(f"v_lshlrev_b32 v{U+2*i}, 16, v{vR+i}\nv_and_b32 v{U+2*i+1}, 0xffff0000, v{vR+i}")
    a(f"v_pk_add_f32 {P(40)}, {P(U)}, {P(U+2)}\nv_pk_mul_f32 {P(42)}, {P(U)}, {P(U)}\nv_pk_fma_f32 {P(42)}, {P(U+2)}, {P(U+2)}, {P(42)}")
    for i in range(4, 16, 2): a(f"v_pk_add_f32 {P(40)}, {P(40)}, {P(U+i)}\nv_pk_fma_f32 {P(42)}, {P(U+i)}, {P(U+i)}, {P(42)}")
    a(f"""v_add_f32 v40, v40, v41
    v_add_f32 v42, v42, v43
    v_and_b32 v{vT}, 31, v{vL}
    s_lshl_b32 s{sT}, s{sW}, 9
    v_lshrrev_b32 v{vT2}, 5, v{vL}
    v_lshl_add_u32 v{vT}, v{vT}, 3, s{sT}
    v_mov_b32 v41, v42
    v_lshl_add_u32 v{vT}, v{vT2}, 8, v{vT}
    s_barrier
    ds_write_b64 v{vT}, {P(40)}
    s_waitcnt vmcnt(0) lgkmcnt(0)
    s_barrier
    s_lshr_b32 s{sT}, s{sRB}, 1
    s_lshl_b32 s{sT}, s{sT}, 7
    s_and_b32 s{sT2}, s{sRB}, 1
    s_lshl_b32 s{sT2}, s{sT2}, 3
    s_add_u32 s{sT2}, s{sT2}, s{sCB}
    s_lshl_b32 s{sT2}, s{sT2}, 2
    s_add_u32 s33, s{sT}, s{sT2}
    s_add_u32 s33, s33, {hex(WS_FLAGS)}
    s_cmp_eq_u32 s{sW}, 0
    s_cbranch_scc0 {pfx}_done
    v_lshrrev_b32 v{vT}, 5, v{vL}
    v_lshlrev_b32 v{vT}, 10, v{vT}
    v_and_b32 v{vT2}, 31, v{vL}
    v_lshl_add_u32 v{vT}, v{vT2}, 3, v{vT}
    ds_read_b64 v[20:21], v{vT}
    ds_read_b64 v[22:23], v{vT} offset:256
    ds_read_b64 v[24:25], v{vT} offset:512
    ds_read_b64 v[26:27], v{vT} offset:768
    s_lshl_b32 s{sT}, s{sRB}, 6
    v_add_u32 v{vT}, s{sT}, v{vL}
    v_lshlrev_b32 v{vT2}, 6, v{vT}
    s_lshl_b32 s{sT}, s{sCB}, 3
    s_add_u32 s{sT}, s{sT}, {hex(WS_ST)}
    s_waitcnt lgkmcnt(0)
    v_pk_add_f32 v[20:21], v[20:21], v[22:23]
    v_pk_add_f32 v[24:25], v[24:25], v[26:27]
    v_pk_add_f32 v[20:21], v[20:21], v[24:25]
    buffer_store_dwordx2 v[20:21], v{vT2}, s[{sWS}:{sWS+3}], s{sT} offen sc1
    s_waitcnt vmcnt(0)""")
    set_flag(a, 33)
    a.label(f"{pfx}_done")
    prof_stamp(a, 2); prof_stamp(a, 3)
    prof_end(a, s_id, sW, 8, sWS, vtmp=64)

G2_SLOT = 12288; G2_NS = 5; G2_CS = G2_NS * G2_SLOT
def gen_g2(a, pfx, s_id):
    sS = [34, 35, 36]; sTbk = 37; sXs = 38; sR2 = 39; sC2b = 40
    vWa = [4, 5, 6]; vSt = 124
    vX = 12
    vA = [44, 60, 76]; vCS = 92; vWf = [108, 108]; vOne = 120
    vW = [108, 96]
    a.c("==== G2 ====")
    prof_start(a)
    a(f"""
    s_and_b32 s{sT}, s{s_id}, 7
    s_lshr_b32 s{sT2}, s{s_id}, 3
    s_lshr_b32 s{sR2}, s{sT}, 1
    s_lshl_b32 s{sR2}, s{sR2}, 2
    s_and_b32 s{sC2b}, s{sT2}, 3
    s_add_u32 s{sR2}, s{sR2}, s{sC2b}           ; rb 0..15
    s_and_b32 s{sC2b}, s{sT}, 1
    s_lshl_b32 s{sC2b}, s{sC2b}, 3
    s_lshr_b32 s{sT2}, s{sT2}, 2
    s_add_u32 s{sC2b}, s{sC2b}, s{sT2}          ; cb 0..15
    s_cmp_ge_u32 s{sC2b}, 15
    s_cbranch_scc1 {pfx}_end
    s_lshl_b32 s{sTbk}, s{sR2}, 2
    s_add_u32 s{sTbk}, s{sTbk}, s{sW}           ; t-block
    s_mov_b32 s{sWm}, s44
    s_mov_b32 s{sWm+1}, s45
    s_mov_b32 s{sWm+2}, {512*1376*2}
    s_mul_i32 s{sLd}, s{sW}, 3072
    s_mul_i32 s{sWb}, s{sW}, {16*2752}
    s_mul_i32 s{sT}, s{sC2b}, 192
    s_add_u32 s{sWb}, s{sWb}, s{sT}
    v_lshrrev_b32 v{vT}, 2, v{vL}
    v_mul_u32_u24 v{vT}, 2752, v{vT}
    v_and_b32 v{vT2}, 3, v{vL}
    v_lshl_add_u32 v{vWd}, v{vT2}, 4, v{vT}
    s_lshl_b32 s{sXs}, s{sTbk}, 15
    s_add_u32 s{sXs}, s{sXs}, {hex(WS_X1)}
    """)
    def wdma(c):
        slot = (c % G2_NS) * G2_SLOT
        a(f"s_add_u32 m0, s{sLd}, {slot}\ns_add_u32 s{sT}, s{sWb}, {c*4*16*2752}")
        for j in range(3):
            a(f"buffer_load_dwordx4 v{vWd}, s[{sWm}:{sWm+3}], s{sT} offen lds")
            if j < 2: a(f"s_add_u32 m0, m0, 1024\ns_add_u32 s{sT}, s{sT}, 64")
    D = G2_NS - 1
    for c in range(D): wdma(c)
    for p in range(3):
        a(f"""s_add_u32 s{sS[p]}, s{sW}, {p}
        s_cmp_ge_u32 s{sS[p]}, 3
        s_cselect_b32 s{sT}, 3, 0
        s_sub_u32 s{sS[p]}, s{sS[p]}, s{sT}
        s_cmp_ge_u32 s{sS[p]}, 3
        s_cselect_b32 s{sT}, 3, 0
        s_sub_u32 s{sS[p]}, s{sS[p]}, s{sT}""")
    a(f"""
    v_lshrrev_b32 v{vT}, 5, v{vL}
    v_lshlrev_b32 v{vT}, 8, v{vT}
    v_bfe_u32 v{vT2}, v{vL}, 2, 2
    v_lshl_add_u32 v{vT}, v{vT2}, 6, v{vT}
    v_bfe_u32 v{vT2}, v{vL}, 4, 1
    v_lshl_add_u32 v{vT}, v{vT2}, 5, v{vT}
    v_and_b32 v{vT2}, 3, v{vL}
    v_lshl_add_u32 v{vT}, v{vT2}, 3, v{vT}
    """)
    for p in range(3): a(f"s_lshl_b32 s{sT}, s{sS[p]}, 10\nv_add_u32 v{vWa[p]}, s{sT}, v{vT}")
    for i in range(4): a(f"v_mov_b32 v{vOne+i}, 0x3f803f80")
    a(f"s_lshl_b32 s{sT2}, s{sR2}, 7\ns_add_u32 s41, s{sT2}, {hex(WS_FLAGS)}")
    wait_flags(a, pfx + "f", 41, 16)
    a(f"""
    v_and_b32 v{vT}, 31, v{vL}
    v_lshlrev_b32 v{vT}, 6, v{vT}
    v_lshrrev_b32 v{vT2}, 5, v{vL}
    v_lshl_add_u32 v{vT}, v{vT2}, 5, v{vT}     ; t*64 + h*32
    s_lshl_b32 s{sT}, s{sTbk}, 11
    s_add_u32 s{sT}, s{sT}, {hex(WS_ST)}
    buffer_load_dwordx4 v[92:95], v{vT}, s[{sWS}:{sWS+3}], s{sT} offen sc1
    buffer_load_dwordx4 v[96:99], v{vT}, s[{sWS}:{sWS+3}], s{sT} offen offset:16 sc1
    """)
    def xload(k):
        a(f"s_add_u32 s{sT}, s{sXs}, {k*1024}\nbuffer_load_dwordx4 {vr(vX+4*(k&7),4)}, v{vL16}, s[{sWS}:{sWS+3}], s{sT} offen sc1")
    for k in range(8): xload(k)
    a(f"""s_waitcnt vmcnt(8)
    v_pk_add_f32 v[92:93], v[92:93], v[94:95]
    v_pk_add_f32 v[96:97], v[96:97], v[98:99]
    v_pk_add_f32 v[92:93], v[92:93], v[96:97]
    s_nop 0
    v_mov_b32 v94, v92
    v_mov_b32 v95, v93
    s_nop 1
    v_permlane32_swap_b32 v92, v94
    v_permlane32_swap_b32 v93, v95
    s_nop 1
    v_add_f32 v92, v92, v94
    v_add_f32 v93, v93, v95
    v_mul_f32 v92, {hex(f2u(1/512))}, v92
    v_mul_f32 v93, {hex(f2u(1/512))}, v93
    v_fma_f32 v93, -v92, v92, v93
    v_max_f32 v93, 0, v93
    v_add_f32 v93, {hex(f2u(1e-5))}, v93
    v_rsq_f32 v{vSt}, v93
    s_nop 0
    v_mul_f32 v{vSt+1}, v92, v{vSt}
    v_sub_f32 v{vSt+1}, 0, v{vSt+1}
    """)
    prof_stamp(a, 0)
    WB = [108, 96]
    vCS2 = 124 - 16 - 16
    def wreads(c, ks, p, dst):
        slot = (c % G2_NS) * G2_SLOT
        return [f"ds_read_b64_tr_b16 {vr(dst+4*p+2*jj,2)}, v{vWa[p]} offset:{slot + ks*3072 + jj*512}" for jj in range(2)]
    NCH = 8
    W = 108
    for c in range(NCH):
        if c == 0:
            pass
        def younger_than_W(c):
            seq = [f"W{i}" for i in range(D) for _ in range(3)] + ["ST", "ST"] + [f"X{k}" for k in range(8)]
            for it in range(c):
                if it + D < NCH: seq += [f"W{it+D}"] * 3
                for k in range(4*it + 8, 4*it + 12):
                    if k < 32: seq.append(f"X{k}")
            last = max(i for i, x in enumerate(seq) if x == f"W{c}")
            return len(seq) - 1 - last
        a(f"s_waitcnt vmcnt({min(63, younger_than_W(c))})\ns_barrier")
        for p in range(int(os.environ.get("G2_DIST", "2"))):
            for r in wreads(c, 0, p, W): a(r)
        if c + D < NCH: wdma(c + D)
        for ks in range(4):
            k = 4*c + ks
            seq = [f"W{i}" for i in range(D) for _ in range(3)] + ["ST", "ST"] + [f"X{kk}" for kk in range(8)]
            for it in range(c + 1):
                if it + D < NCH: seq += [f"W{it+D}"] * 3
                for kk in range(4*it + 8, 4*it + 12):
                    if kk < 32 and (it < c or kk - 8 < k): seq.append(f"X{kk}")
            last = max(i for i, x in enumerate(seq) if x == f"X{k}")
            vm = len(seq) - 1 - last
            a(f"s_waitcnt vmcnt({min(63, vm)}) lgkmcnt({2*(int(os.environ.get('G2_DIST', '2'))-1)})")
            x = vr(vX + 4*(k & 7), 4)
            first = (k == 0)
            DIST = int(os.environ.get("G2_DIST", "2"))
            for p in range(3):
                if DIST == 3:
                    if p: a(f"s_waitcnt lgkmcnt({4 if ks < 3 else 4 - 2*p})")
                else:
                    if p: a(f"s_waitcnt lgkmcnt({(2 if (ks < 3 or p < 2) else 0) if DIST == 2 else 0})")
                a(f"v_mfma_f32_32x32x16_bf16 {vr(vA[p],16)}, {vr(W+4*p,4)}, {x}, {'0' if first else vr(vA[p],16)}")
                if p == 0 and not NOCS: a(f"v_mfma_f32_32x32x16_bf16 {vr(vCS,16)}, {vr(W,4)}, {vr(vOne,4)}, {'0' if first else vr(vCS,16)}")
                if DIST == 3:
                    if ks < 3:
                        for r in wreads(c, ks + 1, p, W): a(r)
                else:
                    j = 3*ks + p + DIST
                    if j < 12:
                        for r in wreads(c, j // 3, j % 3, W): a(r)
            if k + 8 < 32: xload(k + 8)
    prof_stamp(a, 1)
    a(f"""s_lshl_b32 s{sT}, s{sS[0]}, 7
    s_add_u32 s{sT}, s{sT}, {G2_CS}
    v_lshrrev_b32 v{vT3}, 5, v{vL}
    v_lshl_add_u32 v{vT}, v{vT3}, 4, s{sT}
    s_nop 7
    s_nop 1
    s_cmp_eq_u32 s{sW}, 3
    s_cbranch_scc1 {pfx}_nocs
    s_mov_b32 exec_lo, 1
    s_mov_b32 exec_hi, 1
    """)
    for i in range(4): a(f"ds_write_b128 v{vT}, {vr(vCS+4*i,4)} offset:{32*i}")
    a("s_mov_b64 exec, -1")
    a.label(f"{pfx}_nocs")
    a("s_waitcnt lgkmcnt(0)\ns_barrier")
    gelu_consts(a, 118)
    a(f"v_lshlrev_b32 v{vT3}, 4, v{vT3}")
    for p in range(3):
        a(f"s_lshl_b32 s{sT}, s{sS[p]}, 7\ns_add_u32 s{sT}, s{sT}, {G2_CS}\nv_add_u32 v{vT}, s{sT}, v{vT3}")
        for i in range(4): a(f"ds_read_b128 {vr(vCS+4*i,4)}, v{vT} offset:{32*i}")
        a("s_waitcnt lgkmcnt(0)")
        emit_interleaved(a, [ln_pk(vA[p] + 2*i, vCS + 2*i, vSt) for i in range(8)])
        for g in range(0, 16, 8):
            emit_interleaved(a, [gelu_pk(vA[p] + g + 2*i, 12 + 2*i, 118) for i in range(4)])
        for i in range(8): a(f"v_cvt_pk_bf16_f32 v{20+i}, v{vA[p]+2*i}, v{vA[p]+2*i+1}")
        a(f"""s_mul_i32 s{sT}, s{sC2b}, 6
        s_lshl_b32 s{sT2}, s{sS[p]}, 1
        s_add_u32 s{sT}, s{sT}, s{sT2}
        s_cmp_ge_u32 s{sT}, 86
        s_cbranch_scc1 {pfx}_ns{p}
        s_mul_i32 s{sT2}, s{sTbk}, 86
        s_add_u32 s{sT}, s{sT}, s{sT2}
        s_lshl_b32 s{sT}, s{sT}, 10
        s_add_u32 s{sT}, s{sT}, {hex(WS_H2)}
        buffer_store_dwordx4 {vr(20,4)}, v{vL16}, s[{sWS}:{sWS+3}], s{sT} offen sc1
        buffer_store_dwordx4 {vr(24,4)}, v{vL16}, s[{sWS}:{sWS+3}], s{sT} offen offset:1024 sc1""")
        a.label(f"{pfx}_ns{p}")
        a("s_nop 1")
    a(f"""s_waitcnt vmcnt(0)
    s_barrier
    s_lshl_b32 s{sT}, s{sR2}, 7
    s_lshl_b32 s{sT2}, s{sC2b}, 2
    s_add_u32 s41, s{sT}, s{sT2}
    s_add_u32 s41, s41, {hex(WS_FLAGS + 2048)}
    s_cmp_eq_u32 s{sW}, 0
    s_cbranch_scc0 {pfx}_end""")
    set_flag(a, 41)
    a.label(f"{pfx}_end")
    prof_stamp(a, 2); prof_stamp(a, 3)
    prof_end(a, s_id, sW, 8, sWS, vtmp=64)

def gen_g4(a, pfx, s_id, fuse_final=False):
    NS = 5
    a.c("==== G4 ====")
    prof_start(a)
    t64_setup(a)
    t64_tile(a, s_id)
    a(f"s_mov_b32 s{sWm}, s46\ns_mov_b32 s{sWm+1}, s47\ns_mov_b32 s{sWm+2}, {1376*512*2}")
    a(f"s_lshr_b32 s{sT}, s{sRB}, 1\ns_lshl_b32 s{sT}, s{sT}, 7\ns_add_u32 s41, s{sT}, {hex(WS_FLAGS + 2048)}")
    a("s_barrier")
    wait_flags(a, pfx + "f", 41, 15)
    t64_seg(a, WS_H2, 86)
    a(f"s_mov_b32 s{sSlotD}, 0\ns_mov_b32 s{sSlot}, 0")
    D = NS - 1
    vR = 60
    a(f"""s_lshl_b32 s{sT}, s{sRow}, 5
    s_add_u32 s{sT}, s{sT}, s{sN0}
    s_lshl_b32 s33, s{sT}, 10
    s_add_u32 s{sT}, s33, {hex(WS_X1)}
    buffer_load_dwordx4 {vr(vR,4)}, v{vL16}, s[{sWS}:{sWS+3}], s{sT} offen sc1
    buffer_load_dwordx4 {vr(vR+4,4)}, v{vL16}, s[{sWS}:{sWS+3}], s{sT} offen offset:1024 sc1""")
    for c in range(D): t64_dma(a, vL16, 86, NS, "sc1")
    prof_stamp(a, 0)
    iss = lambda: t64_dma(a, vL16, 86, NS, "sc1")
    DI = int(os.environ.get("G4_DIST", "2"))
    t64_chunk(a, 4*(D-1), NS, iss, first=True, dist=DI)
    NCH = 22
    a(f"s_mov_b32 s{sC}, {NCH - D - 1}")
    a.L.append(".p2align 6")
    a.label(f"{pfx}_loop")
    t64_chunk(a, 4*(D-1), NS, iss, dist=DI)
    a(f"s_sub_u32 s{sC}, s{sC}, 1\ns_cmp_lg_u32 s{sC}, 0\ns_cbranch_scc1 {pfx}_loop")
    if fuse_final:
        a(f"""s_load_dwordx2 s[42:43], s[0:1], {KA['wo']}
        s_load_dwordx2 s[44:45], s[0:1], {KA['out']}
        s_lshl_b32 s34, s{sW}, 15
        s_lshl_b32 s{sT2}, s{sCB}, 7
        s_add_u32 s34, s34, s{sT2}
        s_lshl_b32 s35, s{sW}, 12
        s_waitcnt lgkmcnt(0)""")
        srd(a, 36, 42, 43, 512*512*2)
    for i in range(D):
        def wo_part(i=i):
            slot = ((17 + i) % NS) * 16384
            a(f"s_add_u32 m0, s35, {slot}\ns_add_u32 s{sT}, s34, {i * 8 * 16384}")
            for j in range(4):
                a(f"buffer_load_dwordx4 v{vWd}, s[36:39], s{sT} offen lds")
                if j < 3: a(f"s_add_u32 m0, m0, 1024\ns_add_u32 s{sT}, s{sT}, 8192")
        t64_chunk(a, 4*(D-1) if fuse_final else 4*(D-1-i), NS, wo_part if fuse_final else None, nks=(2 if i == D-1 else 4), dist=DI)
    prof_stamp(a, 1)
    U = 20
    a("s_nop 7\ns_nop 3")
    for i in range(8): a(f"v_lshlrev_b32 v{U+2*i}, 16, v{vR+i}\nv_and_b32 v{U+2*i+1}, 0xffff0000, v{vR+i}")
    for i in range(0, 16, 2): a(f"v_pk_add_f32 {P(vAcc+i)}, {P(vAcc+i)}, {P(U+i)}")
    if not fuse_final:
        for i in range(8): a(f"v_cvt_pk_bf16_f32 v{12+i}, v{vAcc+2*i}, v{vAcc+2*i+1}")
        a(f"""s_add_u32 s{sT}, s33, {hex(WS_BF)}
        buffer_store_dwordx4 {vr(12,4)}, v{vL16}, s[{sWS}:{sWS+3}], s{sT} offen
        buffer_store_dwordx4 {vr(16,4)}, v{vL16}, s[{sWS}:{sWS+3}], s{sT} offen offset:1024""")
    prof_stamp(a, 2); prof_stamp(a, 3)
    prof_end(a, s_id, sW, 8, sWS, vtmp=64)

FS = ((21 % 5) * 16384)
FPART = [((17 + j) % 5) * 16384 for j in range(4)]
def gen_fin(a, pfx, s_id):
    a.c("==== F ====")
    prof_start(a)
    sO = 52
    vX = 12; vA = [76, 92]; vW = 108; vWs = [[124, 125], [4, 6]]; vG = 126
    a(f"""s_barrier
    s_lshl_b32 s{sT}, s{sW}, 12
    s_add_u32 s{sT}, s{sT}, {FS}
    v_add_u32 v{vT3}, s{sT}, v{vL16}""")
    for i in range(4): a(f"ds_write_b128 v{vT3}, {vr(vAcc+4*i,4)} offset:{1024*i}")
    srd(a, sO, 44, 45, 2048*512*2)
    a(f"""v_and_b32 v{vT}, 31, v{vL}
    v_lshlrev_b32 v{vT}, 2, v{vT}
    s_lshl_b32 s{sT2}, s{sRow}, 7
    s_add_u32 s{sT2}, s{sT2}, {hex(WS_G)}
    buffer_load_dword v{vG}, v{vT}, s[{sWS}:{sWS+3}], s{sT2} offen
    v_subrev_u32 v{vT}, 8192, v{vWa0}
    v_xor_b32 v{vT2}, 64, v{vT}
    s_cmp_eq_u32 s{sWC}, 0
    s_cselect_b32 s{sT}, {FPART[0]}, {0}
    s_cselect_b32 s{sT2}, {FPART[1]}, {0}
    s_cbranch_scc1 {pfx}_k0
    s_mov_b32 s{sT}, {FPART[2]}
    s_mov_b32 s{sT2}, {FPART[3]}
    v_add_u32 v{vWs[0][1]}, s{sT}, v{vT}
    v_add_u32 v{vWs[0][0]}, s{sT}, v{vT2}
    v_add_u32 v{vWs[1][1]}, s{sT2}, v{vT}
    v_add_u32 v{vWs[1][0]}, s{sT2}, v{vT2}
    s_branch {pfx}_k1
    {pfx}_k0:
    v_add_u32 v{vWs[0][0]}, s{sT}, v{vT}
    v_add_u32 v{vWs[0][1]}, s{sT}, v{vT2}
    v_add_u32 v{vWs[1][0]}, s{sT2}, v{vT}
    v_add_u32 v{vWs[1][1]}, s{sT2}, v{vT2}
    {pfx}_k1:
    s_lshl_b32 s{sT}, s{sRB}, 8
    s_add_u32 s41, s{sT}, {hex(WS_FLAGS + 4096)}
    s_lshl_b32 s{sXb}, s{sRow}, 15
    s_lshl_b32 s{sT}, s{sWC}, 14
    s_add_u32 s{sXb}, s{sXb}, s{sT}
    s_add_u32 s{sXb}, s{sXb}, {hex(WS_OF)}
    s_waitcnt vmcnt(0) lgkmcnt(0)""")
    prof_stamp(a, 0)
    wait_flags(a, pfx + "f", 41, 64)
    prof_stamp(a, 1)
    for i in range(16):
        a(f"buffer_load_dwordx4 {vr(vX+4*i,4)}, v{vL16}, s[{sWS}:{sWS+3}], s{sXb} offen sc1")
        if i < 15: a(f"s_add_u32 s{sXb}, s{sXb}, 1024")
    def wr(i, b):
        return [f"ds_read_b64_tr_b16 {vr(vW+8*b+4*s_+2*jj,2)}, v{vWs[i >> 3][s_]} offset:{(i & 7)*2048 + jj*1024}" for s_ in range(2) for jj in range(2)]
    for r in wr(0, 0): a(r)
    for i in range(16):
        b = i & 1
        if i < 15:
            for r in wr(i + 1, b ^ 1): a(r)
        a(f"s_waitcnt vmcnt({15-i}) lgkmcnt({4 if i < 15 else 0})")
        for s_ in range(2):
            a(f"v_mfma_f32_32x32x16_bf16 {vr(vA[s_],16)}, {vr(vW+8*b+4*s_,4)}, {vr(vX+4*i,4)}, {'0' if i == 0 else vr(vA[s_],16)}")
    prof_stamp(a, 2)
    a(f"""s_lshl_b32 s{sT}, s{sW}, 12
    s_xor_b32 s{sT2}, s{sT}, 4096
    s_add_u32 s{sT}, s{sT}, {FPART[0]}
    s_add_u32 s{sT2}, s{sT2}, {FPART[0]}
    v_add_u32 v{vT}, s{sT}, v{vL16}
    v_add_u32 v{vT2}, s{sT2}, v{vL16}
    s_barrier
    s_nop 7
    s_cmp_eq_u32 s{sWC}, 0
    s_cbranch_scc0 {pfx}_x1""")
    for i in range(4): a(f"ds_write_b128 v{vT}, {vr(vA[1]+4*i,4)} offset:{1024*i}")
    a("s_waitcnt lgkmcnt(0)\ns_barrier")
    for i in range(4): a(f"ds_read_b128 {vr(vA[1]+4*i,4)}, v{vT2} offset:{1024*i}")
    a(f"s_branch {pfx}_x2")
    a.label(f"{pfx}_x1")
    for i in range(4): a(f"ds_write_b128 v{vT}, {vr(vA[0]+4*i,4)} offset:{1024*i}")
    a("s_waitcnt lgkmcnt(0)\ns_barrier")
    for i in range(4): a(f"ds_read_b128 {vr(vA[0]+4*i,4)}, v{vT2} offset:{1024*i}")
    a.label(f"{pfx}_x2")
    for i in range(4): a(f"ds_read_b128 {vr(vX+4*i,4)}, v{vT3} offset:{1024*i}")
    a(f"""v_sub_f32 v{vT}, 1.0, v{vG}
    v_mov_b32 v{vG+1}, v{vT}
    s_waitcnt lgkmcnt(0)""")
    GP = f"v[{vG}:{vG+1}]"
    for i in range(0, 16, 2): a(f"v_pk_add_f32 {P(vA[0]+i)}, {P(vA[0]+i)}, {P(vA[1]+i)}")
    for i in range(0, 16, 2): a(f"v_pk_mul_f32 {P(vX+i)}, {P(vX+i)}, {GP} op_sel:[0,1] op_sel_hi:[1,1]")
    for i in range(0, 16, 2): a(f"v_pk_fma_f32 {P(vX+i)}, {P(vA[0]+i)}, {GP}, {P(vX+i)} op_sel_hi:[1,0,1]")
    for i in range(8): a(f"v_cvt_pk_bf16_f32 v{32+i}, v{vX+2*i}, v{vX+2*i+1}")
    a(f"""s_nop 1
    v_permlane32_swap_b32 v32, v34
    v_permlane32_swap_b32 v33, v35
    v_permlane32_swap_b32 v36, v38
    v_permlane32_swap_b32 v37, v39
    v_and_b32 v{vT}, 31, v{vL}
    v_lshlrev_b32 v{vT}, 10, v{vT}
    v_lshrrev_b32 v{vT2}, 5, v{vL}
    v_lshl_add_u32 v{vT}, v{vT2}, 4, v{vT}
    s_lshl_b32 s{sT}, s{sRow}, 15
    s_lshl_b32 s{sT2}, s{sN0}, 5
    s_add_u32 s{sT}, s{sT}, s{sT2}
    buffer_store_dwordx4 v[32:35], v{vT}, s[{sO}:{sO+3}], s{sT} offen
    buffer_store_dwordx4 v[36:39], v{vT}, s[{sO}:{sO+3}], s{sT} offen offset:32""")
    prof_stamp(a, 3)
    prof_end(a, s_id, sW, 8, sWS, vtmp=64)

def gen_chain(a, pfx, s_id, with_g4=True, fuse_final=False):
    import common
    a = PkAsm(a)
    a(f"""s_load_dwordx2 s[40:41], s[0:1], {KA['ws']}
    s_load_dwordx2 s[42:43], s[0:1], {KA['w2']}
    s_load_dwordx2 s[44:45], s[0:1], {KA['w3']}
    s_load_dwordx2 s[46:47], s[0:1], {KA['w4']}
    s_load_dwordx2 s[52:53], s[0:1], {KA['x']}
    v_lshrrev_b32 v{vT}, 6, v0
    v_and_b32 v{vL}, 63, v0
    v_readfirstlane_b32 s{sW}, v{vT}
    v_lshlrev_b32 v{vL16}, 4, v{vL}
    s_cmp_ge_u32 s{sW}, 4
    s_cbranch_scc1 {pfx}_exit""")
    t64_setup(a)
    a("s_waitcnt lgkmcnt(0)")
    srd(a, sWS, 40, 41, WS_USED); srd(a, sX, 52, 53, 2048*512*2)
    a(f"s_mov_b32 s{sWm+3}, 0x20000")
    common.PROF_BASE = 2 * 0x10000
    gen_g0(a, pfx + "0", s_id)
    a("s_barrier")
    common.PROF_BASE = 3 * 0x10000
    gen_g2(a, pfx + "2", s_id)
    if with_g4:
        common.PROF_BASE = 5 * 0x10000
        gen_g4(a, pfx + "4", s_id, fuse_final)
        if fuse_final:
            common.PROF_BASE = 4 * 0x10000
            gen_fin(a, pfx + "F", s_id)
    a.label(f"{pfx}_exit")
    a("s_endpgm")
    return 128
```

```python
from common import *
import struct
K1_XS = 0
K1_WS = 65536
K1_ST = 131072
K1_LDS = K1_ST + 1024 + 256 + 1024
QSCALE = 0.25 * 1.4426950408889634
def vr(b, n=1): return f"v{b}" if n == 1 else f"v[{b}:{b+n-1}]"
def f2u(x): return struct.unpack("<I", struct.pack("<f", x))[0]
GC1 = -2.0 * 1.4426950408889634 * 0.7978845608028654
GC2 = GC1 * 0.044715

def gelu_ops(a, x, t, vC1, sC2):
    return [f"v_mul_f32 v{t}, v{x}, v{x}",
            f"v_fma_f32 v{t}, v{t}, s{sC2}, v{vC1}",
            f"v_mul_f32 v{t}, v{t}, v{x}",
            f"v_exp_f32 v{t}, v{t}",
            f"v_add_f32 v{t}, 1.0, v{t}",
            f"v_rcp_f32 v{t}, v{t}",
            f"v_mul_f32 v{x}, v{x}, v{t}"]
def gelu_pk(x, t, vC, vOne=None):
    P = lambda r: f"v[{r}:{r+1}]"
    return [f"v_pk_mul_f32 {P(t)}, {P(x)}, {P(x)}",
            f"v_pk_fma_f32 {P(t)}, {P(t)}, {P(vC+2)}, {P(vC)}",
            f"v_pk_mul_f32 {P(t)}, {P(t)}, {P(x)}",
            f"v_exp_f32 v{t}, v{t}", f"v_exp_f32 v{t+1}, v{t+1}",
            f"v_pk_add_f32 {P(t)}, {P(t)}, {P(vC+4)}",
            f"v_rcp_f32 v{t}, v{t}", f"v_rcp_f32 v{t+1}, v{t+1}",
            f"v_pk_mul_f32 {P(x)}, {P(x)}, {P(t)}"]
def gelu_consts(a, vC):
    a(f"v_mov_b32 v{vC}, {hex(f2u(GC1))}\nv_mov_b32 v{vC+1}, v{vC}\nv_mov_b32 v{vC+2}, {hex(f2u(GC2))}\nv_mov_b32 v{vC+3}, v{vC+2}\nv_mov_b32 v{vC+4}, 1.0\nv_mov_b32 v{vC+5}, 1.0")
def ln_pk(x, cs, vS):
    P = lambda r: f"v[{r}:{r+1}]"
    return [f"v_pk_mul_f32 {P(x)}, {P(x)}, {P(vS)} op_sel_hi:[1,0]",
            f"v_pk_fma_f32 {P(x)}, {P(cs)}, {P(vS)}, {P(x)} op_sel:[0,1,0] op_sel_hi:[1,1,1]"]
def emit_interleaved(a, seqs):
    n = max(len(s) for s in seqs)
    for i in range(n):
        for s in seqs:
            if i < len(s): a(s[i])


def gen_k1(a, pfx, X=None):
    X = X or {}
    import os
    SF = os.environ.get('K1SF', '')
    sX = 8; sWq = 12; sWS = 16; sDB = 52
    sW = 20; sRB = 21; sWR = 22; sC = 23; sT = 24; sT2 = 25
    sXsrc = 26; sWsrc = 27; sWstep = 28; sWi = 29; sLX = 30; sLW = 31; sSlot = 32; sSlotD = 33
    sTB = 34; sC2 = 35; sJ = 44; sXb = 45; sWb = 46; sX2 = 47; sCk = 48; sTyp = 49; sWC = 50
    vL = 1; vT = 2; vT2 = 3; vT3 = 4
    a.c("==== K1 ====")
    prof_start(a)
    a(f"""
    s_load_dwordx4 s[36:39], s[0:1], {KA['x']}        ; x, wqkv
    s_load_dwordx2 s[40:41], s[0:1], {KA['w1']}
    s_load_dwordx2 s[42:43], s[0:1], {KA['ws']}
    s_load_dwordx2 s[56:57], s[0:1], {KA['dbg']}
    s_load_dwordx2 s[58:59], s[0:1], {KA['gw']}
    """)
    if not os.environ.get("NOCPF"):
        a(f"""s_getpc_b64 s[64:65]
        {pfx}_pc:
        s_lshr_b32 s{sT}, s2, 3
        s_lshl_b32 s{sT}, s{sT}, 13
        v_lshl_add_u32 v148, v0, 4, s{sT}
        s_sub_u32 s64, s64, {pfx}_pc-k1_kernel
        s_subb_u32 s65, s65, 0
        v_min_u32 v148, L_text_end-k1_kernel-16, v148
        v_mov_b32 v149, s65
        v_add_co_u32 v148, vcc, s64, v148
        s_nop 1
        v_addc_co_u32 v149, vcc, 0, v149, vcc
        global_load_dwordx4 v[148:151], v[148:149], off""")
    a(f"""
    v_lshrrev_b32 v{vT}, 6, v0
    v_and_b32 v{vL}, 63, v0
    v_readfirstlane_b32 s{sW}, v{vT}
    s_and_b32 s{sT}, s2, 7                   ; xcd
    s_lshr_b32 s{sT2}, s2, 3                 ; j
    s_lshr_b32 s{sRB}, s{sT}, 1
    s_lshl_b32 s{sRB}, s{sRB}, 2
    s_and_b32 s{sTB}, s{sT2}, 3
    s_add_u32 s{sRB}, s{sRB}, s{sTB}
    s_and_b32 s{sTyp}, s{sT}, 1
    s_lshr_b32 s{sJ}, s{sT2}, 2
    s_and_b32 s{sTB}, s{sW}, 3
    s_cmp_lt_u32 s{sW}, 4
    s_cbranch_scc1 {pfx}_gemm
    """)
    vXd = [5, 6]; vWd = 7; vWa = [8, 9]; vWa0 = [10, 11]
    a(f"""
    v_lshrrev_b32 v{vT}, 3, v{vL}            ; r
    v_lshrrev_b32 v{vT2}, 4, v{vL}           ; r>>1
    v_and_b32 v{vT3}, 7, v{vL}
    v_xor_b32 v{vXd[0]}, v{vT3}, v{vT2}
    v_xor_b32 v{vXd[1]}, 4, v{vXd[0]}
    v_lshlrev_b32 v{vWd}, 10, v{vT}
    v_lshl_add_u32 v{vXd[0]}, v{vXd[0]}, 4, v{vWd}
    v_lshl_add_u32 v{vXd[1]}, v{vXd[1]}, 4, v{vWd}
    v_add_u32 v{vXd[1]}, 8192, v{vXd[1]}
    v_and_b32 v{vT2}, 1, v{vT2}              ; (r>>1)&1
    v_lshlrev_b32 v{vT2}, 2, v{vT2}
    v_xor_b32 v{vT3}, v{vT3}, v{vT2}
    s_lshl_b32 s{sXsrc}, s{sRB}, 7
    s_lshl_b32 s{sT}, s{sTB}, 5
    s_add_u32 s{sXsrc}, s{sXsrc}, s{sT}
    s_lshl_b32 s{sXb}, s{sXsrc}, 10
    s_lshl_b32 s{sLX}, s{sTB}, 12
    s_lshl_b32 s{sLW}, s{sTB}, 12
    s_add_u32 s{sLW}, s{sLW}, {K1_WS}
    s_lshr_b32 s{sT}, s{sTB}, 1              ; strip s
    s_lshl_b32 s{sT2}, s{sTyp}, 1
    s_add_u32 s{sT2}, s{sT2}, s{sT}          ; matrix: 0 Q, 1 K, 2 V, 3 h
    s_cmp_eq_u32 s{sT2}, 3
    s_mov_b32 s{sWi}, 3072
    s_cmov_b32 s{sWi}, 1024
    s_cselect_b32 s{sT2}, 0, s{sT2}
    s_lshl_b32 s{sT2}, s{sT2}, 10
    s_lshl_b32 s{sWb}, s{sJ}, 7              ; 64 j * 2
    s_add_u32 s{sWb}, s{sWb}, s{sT2}
    s_and_b32 s{sT}, s{sTB}, 1
    s_lshl_b32 s{sT}, s{sT}, 5
    s_mul_i32 s{sT}, s{sT}, s{sWi}
    s_add_u32 s{sWb}, s{sWb}, s{sT}
    s_lshl_b32 s{sWstep}, s{sWi}, 6          ; 64 rows
    v_mul_lo_u32 v{vT}, v{vT}, s{sWi}
    v_lshl_add_u32 v{vWd}, v{vT3}, 4, v{vT}
    s_lshl_b32 s{sT2}, s{sWi}, 3
    s_cmp_eq_u32 s{sWi}, 1024
    s_mov_b32 s{sWi}, s{sT2}
    s_waitcnt lgkmcnt(0)
    s_cselect_b32 s{sWq}, s40, s38
    s_cselect_b32 s{sWq+1}, s41, s39
    s_mov_b32 s{sWq+2}, {512*1536*2}
    s_cmov_b32 s{sWq+2}, {512*512*2}
    s_mov_b32 s{sWq+3}, 0x20000
    s_and_b32 s{sCk}, s{sRB}, 3
    s_lshl_b32 s{sCk}, s{sCk}, 1
    s_add_u32 s{sCk}, s{sCk}, s{sJ}
    s_and_b32 s{sCk}, s{sCk}, {0 if X.get("norot") else 7}
    """)
    srd(a, sX, 36, 37, 2048*512*2)
    a(f"s_cmp_eq_u32 s{sTyp}, 0\ns_cbranch_scc0 {pfx}_norow")
    srd(a, 60, 58, 59, 1024)
    a(f"""s_lshl_b32 s{sT}, s{sRB}, 7
    s_lshl_b32 s{sT2}, s{sJ}, 4
    s_add_u32 s{sT}, s{sT}, s{sT2}
    s_lshl_b32 s{sT2}, s{sTB}, 2
    s_add_u32 s51, s{sT}, s{sT2}
    s_lshl_b32 s{sT}, s51, 10
    v_lshlrev_b32 v{vT}, 4, v{vL}
    buffer_load_dwordx4 v[20:23], v{vT}, s[{sX}:{sX+3}], s{sT} offen
    buffer_load_dwordx4 v[24:27], v{vT}, s[{sX}:{sX+3}], s{sT} offen offset:1024
    buffer_load_dwordx4 v[28:31], v{vT}, s[{sX}:{sX+3}], s{sT} offen offset:2048
    buffer_load_dwordx4 v[32:35], v{vT}, s[{sX}:{sX+3}], s{sT} offen offset:3072
    buffer_load_dwordx4 v[36:39], v{vT}, s[60:63], 0 offen
    """)
    a.label(f"{pfx}_norow")
    def dma_begin():
        return [f"s_lshl_b32 s{sT}, s{sCk}, 7", f"s_add_u32 s{sXsrc}, s{sXb}, s{sT}", f"s_add_u32 s{sX2}, s{sXsrc}, 16384",
                f"s_mul_i32 s{sT}, s{sCk}, s{sWstep}", f"s_add_u32 s{sWsrc}, s{sWb}, s{sT}", f"s_add_u32 s{sCk}, s{sCk}, 1", f"s_and_b32 s{sCk}, s{sCk}, 7",
                f"s_add_u32 s{sT}, s{sSlotD}, s{sLX}", f"s_add_u32 s{sT2}, s{sSlotD}, s{sLW}"]
    def dma_one(i):
        j = i >> 1
        if i & 1 == 0:
            return [f"s_add_u32 m0, s{sT}, {j*1024}", "s_nop 0",
                    f"buffer_load_dwordx4 v{vXd[j&1]}, s[{sX}:{sX+3}], s{sXsrc if j < 2 else sX2} offen lds"]
        L = [f"s_add_u32 m0, s{sT2}, {j*1024}", "s_nop 0",
             f"buffer_load_dwordx4 v{vWd}, s[{sWq}:{sWq+3}], s{sWsrc} offen lds"]
        if j < 3: L.append(f"s_add_u32 s{sWsrc}, s{sWsrc}, s{sWi}")
        return L
    def dma_all():
        if X.get("nodma"): return
        for x in dma_begin(): a(x)
        for i in range(8):
            for x in dma_one(i): a(x)
    for c in range(2):
        a(f"s_mov_b32 s{sSlotD}, {c*16384}")
        dma_all()
    a(f"s_mov_b32 s{sSlotD}, {2*16384}\ns_mov_b32 s{sSlot}, 0\ns_mov_b32 s{sC}, 0")
    srd(a, sWS, 42, 43, WS_USED)
    def w_addrs(dst, nbs, strip_off):
        a(f"""
        v_lshrrev_b32 v{vT2}, 5, v{vL}
        v_lshlrev_b32 v{vT}, 10, v{vT2}          ; h*8*128
        v_bfe_u32 v{vT2}, v{vL}, 2, 2            ; r
        v_lshl_add_u32 v{vT}, v{vT2}, 7, v{vT}
        v_bfe_u32 v{vT3}, v{vL}, 4, 1            ; nhalf
        v_lshl_add_u32 v{vT}, v{vT3}, 5, v{vT}
        v_and_b32 v{vT3}, 3, v{vL}
        v_lshl_add_u32 v{vT}, v{vT3}, 3, v{vT}
        v_add_u32 v{vT}, {K1_WS + strip_off}, v{vT}
        v_lshrrev_b32 v{vT2}, 1, v{vT2}          ; r>>1
        """)
        for d, nb in zip(dst, nbs):
            if isinstance(nb, int):
                a(f"v_xor_b32 v{vT3}, {nb}, v{vT2}\nv_lshl_add_u32 v{d}, v{vT3}, 6, v{vT}")
            else:
                a(f"v_xor_b32 v{vT3}, s{nb[1:]}, v{vT2}\nv_lshl_add_u32 v{d}, v{vT3}, 6, v{vT}")
    def loader_wait(lbl, tail=(8, 0)):
        a(f"""s_cmp_lt_u32 s{sC}, 6
        s_cbranch_scc1 {lbl}_w8
        s_cmp_eq_u32 s{sC}, 6
        s_cbranch_scc1 {lbl}_w4
        s_waitcnt vmcnt({tail[1]})
        s_branch {lbl}_wd
        {lbl}_w4:
        s_waitcnt vmcnt({tail[0]})
        s_branch {lbl}_wd
        {lbl}_w8:
        s_waitcnt vmcnt(16)
        {lbl}_wd:
        s_waitcnt lgkmcnt(0)
        s_barrier""")
    a(f"""s_cmp_eq_u32 s{sW}, 5
    s_cbranch_scc0 {pfx}_npad
    s_lshl_b32 s{sT}, s2, 8
    s_cmp_ge_u32 s{sT}, 32768
    s_cselect_b32 s{sT2}, {hex(2*1024*1024)}, 0
    s_add_u32 s{sT}, s{sT}, s{sT2}
    s_add_u32 s{sT}, s{sT}, {hex(WS_H1 - 32768)}
    v_mov_b32 v12, 0
    v_mov_b32 v13, 0
    v_mov_b32 v14, 0
    v_mov_b32 v15, 0
    v_lshlrev_b32 v16, 4, v{vL}
    s_mov_b64 exec, 0xffff
    buffer_store_dwordx4 v[12:15], v16, s[{sWS}:{sWS+3}], s{sT} offen
    s_mov_b64 exec, -1""")
    a.label(f"{pfx}_npad")
    a(f"s_cmp_eq_u32 s{sTyp}, 0\ns_cbranch_scc0 {pfx}_lb")
    a(f"s_cmp_eq_u32 s2, 0\ns_cbranch_scc0 {pfx}_nzf\ns_cmp_eq_u32 s{sW}, 4\ns_cbranch_scc0 {pfx}_nzf")
    a(f"""v_mov_b32 v12, 0
    v_mov_b32 v13, 0
    v_mov_b32 v14, 0
    v_mov_b32 v15, 0
    v_lshlrev_b32 v16, 4, v{vL}
    s_mov_b32 s{sT}, {hex(WS_FLAGS)}
    """)
    for j in range(3):
        for o in range(4): a(f"buffer_store_dwordx4 v[12:15], v16, s[{sWS}:{sWS+3}], s{sT} offen offset:{o*1024}")
        if j < 2: a(f"s_add_u32 s{sT}, s{sT}, 4096\ns_nop 0")
    a.label(f"{pfx}_nzf")
    srd(a, sDB, 56, 57, 256)
    G = 40
    st = []
    def S_(x): st.extend([l.strip() for l in x.split("\n") if l.strip()])
    for p in range(4): S_(f"v_lshlrev_b32 v{G+2*p}, 16, v{36+p}\nv_and_b32 v{G+2*p+1}, 0xffff0000, v{36+p}")
    for i in range(4):
        for p in range(4):
            x = 20 + 4*i + p
            S_(f"v_lshlrev_b32 v60, 16, v{x}\nv_and_b32 v61, 0xffff0000, v{x}")
            if p == 0:
                S_(f"v_add_f32 v{48+i}, v60, v61\nv_mul_f32 v{52+i}, v60, v60\nv_mul_f32 v{56+i}, v60, v{G}")
                S_(f"v_fmac_f32 v{52+i}, v61, v61\nv_fmac_f32 v{56+i}, v61, v{G+1}")
            else:
                S_(f"v_add_f32 v{48+i}, v{48+i}, v60\nv_fmac_f32 v{52+i}, v60, v60\nv_fmac_f32 v{56+i}, v60, v{G+2*p}")
                S_(f"v_add_f32 v{48+i}, v{48+i}, v61\nv_fmac_f32 v{52+i}, v61, v61\nv_fmac_f32 v{56+i}, v61, v{G+2*p+1}")
    n1 = len(st)
    S_("s_nop 1")
    for mod in ["row_shr:1 row_mask:0xf bank_mask:0xf bound_ctrl:1", "row_shr:2 row_mask:0xf bank_mask:0xf bound_ctrl:1",
                "row_shr:4 row_mask:0xf bank_mask:0xf bound_ctrl:1", "row_shr:8 row_mask:0xf bank_mask:0xf bound_ctrl:1",
                "row_bcast:15 row_mask:0xa bank_mask:0xf", "row_bcast:31 row_mask:0xc bank_mask:0xf"]:
        for r in range(48, 60): S_(f"v_add_f32_dpp v{r}, v{r}, v{r} {mod}")
    S_("s_nop 1")
    for i in range(4):
        S_(f"""v_mul_f32 v{48+i}, {hex(f2u(1/512))}, v{48+i}
        v_mul_f32 v{52+i}, {hex(f2u(1/512))}, v{52+i}
        v_mul_f32 v{56+i}, {hex(f2u(-1.4426950408889634))}, v{56+i}""")
    for i in range(4): S_(f"v_fma_f32 v{52+i}, -v{48+i}, v{48+i}, v{52+i}\nv_exp_f32 v{56+i}, v{56+i}")
    for i in range(4): S_(f"v_max_f32 v{52+i}, 0, v{52+i}\nv_add_f32 v{56+i}, 1.0, v{56+i}")
    for i in range(4): S_(f"v_add_f32 v{52+i}, {hex(f2u(1e-5))}, v{52+i}\nv_rcp_f32 v{56+i}, v{56+i}")
    for i in range(4): S_(f"v_rsq_f32 v{60+2*i}, v{52+i}")
    S_("s_nop 0")
    for i in range(4): S_(f"v_mul_f32 v{61+2*i}, v{48+i}, v{60+2*i}")
    for i in range(4): S_(f"v_sub_f32 v{61+2*i}, 0, v{61+2*i}")
    S_(f"""s_lshl_b32 s61, s51, 3
    s_add_u32 s61, s61, {hex(WS_XST)}
    s_lshl_b32 s62, s51, 2
    s_add_u32 s62, s62, {hex(WS_G)}
    v_mov_b32 v{vT}, 0
    s_mov_b32 exec_lo, 0
    s_mov_b32 exec_hi, 0x80000000
    buffer_store_dwordx4 v[60:63], v{vT}, s[{sWS}:{sWS+3}], s61 offen sc1
    buffer_store_dwordx4 v[64:67], v{vT}, s[{sWS}:{sWS+3}], s61 offen offset:16 sc1
    buffer_store_dwordx4 v[56:59], v{vT}, s[{sWS}:{sWS+3}], s62 offen sc1
    s_mov_b64 exec, -1""")
    prof_stamp(a, 0)
    def la_iter(c, extra=None, vm=16):
        a(f"s_waitcnt vmcnt({vm})\ns_barrier")
        if c < 5:
            dma_all()
            a(f"s_add_u32 s{sSlotD}, s{sSlotD}, 16384\ns_and_b32 s{sSlotD}, s{sSlotD}, 0xffff")
        for x in (extra or []): a(x)
    a("s_waitcnt vmcnt(16)")
    for x in st: a(x)
    a("s_waitcnt vmcnt(11)\ns_barrier")
    for _ in range(2):
        dma_all()
        a(f"s_add_u32 s{sSlotD}, s{sSlotD}, 16384\ns_and_b32 s{sSlotD}, s{sSlotD}, 0xffff")
    la_iter(1, vm=16)
    a(f"""s_cmp_eq_u32 s{sW}, 4
    s_cbranch_scc0 {pfx}_la_nf
    s_lshl_b32 s{sT}, s{sRB}, 4
    s_add_u32 s{sT}, s{sT}, s{sJ}
    v_mov_b32 v{vT}, 0
    v_mov_b32 v{vT2}, 1
    s_mov_b64 exec, 1
    buffer_store_byte v{vT2}, v{vT}, s[{sDB}:{sDB+3}], s{sT} offen sc1
    s_mov_b64 exec, -1""")
    a.label(f"{pfx}_la_nf")
    la_iter(2, vm=16)
    la_iter(3, vm=16)
    la_iter(4, vm=16)
    NPF = 0 if X.get("nopf") or os.environ.get("NOPF") else 8
    if NPF:
        a(f"""s_load_dwordx2 s[64:65], s[0:1], {KA['w2']}
        s_load_dwordx2 s[66:67], s[0:1], {KA['w3']}
        s_load_dwordx2 s[68:69], s[0:1], {KA['w4']}
        s_load_dwordx2 s[70:71], s[0:1], {KA['wo']}
        s_lshl_b32 s72, s{sRB}, 3
        s_add_u32 s72, s72, s{sJ}
        s_lshl_b32 s72, s72, 2
        s_add_u32 s72, s72, s{sTB}
        s_lshl_b32 s72, s72, 10
        v_lshlrev_b32 v12, 4, v{vL}
        s_waitcnt lgkmcnt(0)""")
        def pf(lo, hi, size, n):
            a(f"s_mov_b32 s76, s{lo}\ns_mov_b32 s77, s{hi}\ns_mov_b32 s78, {size}\ns_mov_b32 s79, 0x20000\ns_mov_b32 s73, s72")
            for j in range(n):
                a(f"buffer_load_dwordx4 v[16:19], v12, s[76:79], s73 offen")
                if j + 1 < n: a("s_add_u32 s73, s73, 0x80000")
        pf(64, 65, 512*512*2, 1); pf(66, 67, 512*1376*2, 3); pf(68, 69, 1376*512*2, 3); pf(70, 71, 512*512*2, 1)
    la_iter(5, vm=16 + NPF)
    la_iter(6, vm=8 + NPF)
    la_iter(7, vm=0 + NPF)
    prof_stamp(a, 1); prof_stamp(a, 2); prof_stamp(a, 3)
    prof_end(a, 2, sW, 8, sWS, vtmp=20)
    a("s_endpgm")
    a.label(f"{pfx}_lb")
    w_addrs(vWa0, [0, 1], 8192)
    vc = [24, 25, 26, 27]; vG = 44; vU = 52
    for r in vc: a(f"v_mov_b32 v{r}, 0")
    srd(a, sDB, 56, 57, 256)
    a(f"s_lshl_b32 s60, s{sRB}, 4\nv_mov_b32 v30, 0")
    a(f"""s_lshl_b32 s62, s{sRB}, 10
    s_add_u32 s62, s62, {hex(WS_XST)}
    v_lshlrev_b32 v34, 4, v{vL}
    s_mov_b32 s63, 0""")
    prof_stamp(a, 0)
    a("s_waitcnt vmcnt(8) lgkmcnt(0)\ns_barrier")
    dma_all()
    a(f"s_add_u32 s{sSlotD}, s{sSlotD}, 16384\ns_branch {pfx}_sl0")
    a.label(f"{pfx}_sl")
    loader_wait(f"{pfx}_s", tail=(8, 0))
    a.label(f"{pfx}_sl0")
    a(f"s_lshl_b32 s{sT}, s{sTB}, 11\ns_add_u32 s{sT}, s{sT}, s{sSlot}")
    for nb in range(2):
        a(f"v_add_u32 v54, s{sT}, v{vWa0[nb]}")
        a(f"ds_read_b64_tr_b16 {vr(vG+4*nb,2)}, v54\nds_read_b64_tr_b16 {vr(vG+4*nb+2,2)}, v54 offset:512")
    ops = ["s_waitcnt lgkmcnt(0)"]
    for nb in range(2):
        for i in range(4):
            x = vG + 4*nb + i
            ops += [f"v_lshlrev_b32 v{vU}, 16, v{x}", f"v_and_b32 v{vU+1}, 0xffff0000, v{x}",
                    f"v_add_f32 v{vc[2*nb]}, v{vc[2*nb]}, v{vU}", f"v_add_f32 v{vc[2*nb+1]}, v{vc[2*nb+1]}, v{vU+1}"]
    a(f"s_cmp_ge_u32 s{sC}, 5\ns_cbranch_scc1 {pfx}_s_nd")
    for x in dma_begin(): a(x)
    step = max(1, len(ops) // 8); k = 0
    for i in range(8):
        for x in (dma_one(i) if not X.get("nodma") else []): a(x)
        hi = len(ops) if i == 7 else min(len(ops), k + step)
        for x in ops[k:hi]: a(x)
        k = hi
    a(f"s_add_u32 s{sSlotD}, s{sSlotD}, 16384\ns_and_b32 s{sSlotD}, s{sSlotD}, 0xffff\ns_branch {pfx}_s_nx")
    a.label(f"{pfx}_s_nd")
    a(f"s_cmp_eq_u32 s{sC}, {X.get('fc', 6)}\ns_cbranch_scc0 {pfx}_s_nf\ns_cmp_eq_u32 s{sW}, 4\ns_cbranch_scc0 {pfx}_s_nf")
    a(f"buffer_load_dwordx2 v[32:33], v30, s[{sDB}:{sDB+3}], s60 offen sc1")
    a.label(f"{pfx}_s_nf")
    a(f"""s_cmp_eq_u32 s{sC}, {X.get('fc', 6) + 1}
    s_cbranch_scc0 {pfx}_s_ng
    s_cmp_eq_u32 s{sW}, 4
    s_cbranch_scc0 {pfx}_s_ng
    s_waitcnt vmcnt(0)
    v_and_b32 v32, v32, v33
    s_nop 0
    v_readfirstlane_b32 s{sT}, v32
    s_cmp_eq_u32 s{sT}, 0x01010101
    s_cbranch_scc0 {pfx}_s_ng
    s_mov_b32 s63, 1
    buffer_load_dwordx4 v[28:31], v34, s[{sWS}:{sWS+3}], s62 offen sc1""")
    a.label(f"{pfx}_s_ng")
    for x in ops: a(x)
    a.label(f"{pfx}_s_nx")
    a(f"""s_add_u32 s{sSlot}, s{sSlot}, 16384
    s_and_b32 s{sSlot}, s{sSlot}, 0xffff
    s_add_u32 s{sC}, s{sC}, 1
    s_cmp_lt_u32 s{sC}, 8
    s_cbranch_scc1 {pfx}_sl""")
    prof_stamp(a, 1)
    a(f"""
    v_add_f32 v24, v24, v25
    v_add_f32 v26, v26, v27
    v_lshlrev_b32 v55, 2, v{vL}
    s_lshl_b32 s{sT}, s{sTB}, 8
    s_add_u32 s{sT}, s{sT}, {K1_ST + 1280}
    v_permlane32_swap_b32 v24, v26
    v_add_u32 v54, s{sT}, v55
    s_nop 0
    v_add_f32 v24, v24, v26
    s_nop 0
    ds_write_b32 v54, v24
    s_waitcnt lgkmcnt(0)
    s_barrier                                  ; F1
    s_cmp_eq_u32 s{sW}, 4
    s_cbranch_scc0 {pfx}_pdone
    v_add_u32 v54, {K1_ST + 1280}, v55
    ds_read_b32 v36, v54
    ds_read_b32 v37, v54 offset:256
    ds_read_b32 v38, v54 offset:512
    ds_read_b32 v39, v54 offset:768
    s_cmp_eq_u32 s63, 1
    s_cbranch_scc1 {pfx}_pdone0
    s_branch {pfx}_pchk
    """)
    a.label(f"{pfx}_poll")
    a(f"""s_sleep 1
    buffer_load_dwordx2 v[32:33], v30, s[{sDB}:{sDB+3}], s60 offen sc1
    s_waitcnt vmcnt(0)""")
    a.label(f"{pfx}_pchk")
    a(f"""v_and_b32 v32, v32, v33
    s_nop 0
    v_readfirstlane_b32 s{sT}, v32
    s_cmp_eq_u32 s{sT}, 0x01010101
    s_cbranch_scc0 {pfx}_poll
    buffer_load_dwordx4 v[28:31], v34, s[{sWS}:{sWS+3}], s62 offen sc1""")
    a.label(f"{pfx}_pdone0")
    a(f"""s_waitcnt lgkmcnt(0)
    v_add_f32 v36, v36, v37
    v_add_f32 v38, v38, v39
    v_add_u32 v54, {K1_ST + 1024}, v55
    v_add_f32 v36, v36, v38
    v_add_u32 v55, {K1_ST}, v34
    ds_write_b32 v54, v36
    s_waitcnt vmcnt(0)
    ds_write_b128 v55, v[28:31]""")
    a.label(f"{pfx}_pdone")
    a("s_waitcnt lgkmcnt(0)\ns_barrier")
    prof_stamp(a, 2); prof_stamp(a, 3)
    prof_end(a, 2, sW, 8, sWS, vtmp=20)
    a("s_endpgm")
    a.label(f"{pfx}_gemm")
    vXa0 = [8, 9, 10, 11]; vWa0 = 12; vXa = [13, 14, 15, 16]; vWa = 17
    vXf = [20, 28, 36, 44]; vWf = [52, 60, 68, 76]; vA = [[84, 100], [116, 132]]
    a(f"""s_lshr_b32 s{sWR}, s{sW}, 1
    s_and_b32 s{sWC}, s{sW}, 1
    s_waitcnt lgkmcnt(0)""")
    srd(a, sX, 36, 37, 2048*512*2)
    srd(a, sWS, 42, 43, WS_USED)
    a(f"""
    v_and_b32 v{vT}, 31, v{vL}               ; t
    v_lshrrev_b32 v{vT2}, 5, v{vL}           ; h
    v_lshrrev_b32 v{vT3}, 1, v{vT}
    v_and_b32 v{vT3}, 7, v{vT3}              ; f
    v_xor_b32 v{vT3}, v{vT3}, v{vT2}         ; f ^ h
    s_lshl_b32 s{sT}, s{sWR}, 13
    v_lshlrev_b32 v{vT}, 7, v{vT}
    v_add_u32 v{vT}, s{sT}, v{vT}            ; row*128
    """)
    for ks in range(4):
        a(f"v_xor_b32 v{vXa0[ks]}, {2*ks}, v{vT3}\nv_lshl_add_u32 v{vXa0[ks]}, v{vXa0[ks]}, 4, v{vT}")
    w_addrs([vWa0], [f"s{sWC}"], 0)
    for i in range(64): a(f"v_mov_b32 v{84+i}, 0")
    for b in (2, 3):
        for i in range(8): a(f"v_mov_b32 v{vXf[b]+i}, 0\nv_mov_b32 v{vWf[b]+i}, 0")
    a(f"s_mov_b32 s{sC}, 0")
    def reads(ks, slot):
        L = [f"ds_read_b128 {vr(vXf[ks]+4*t,4)}, v{vXa0[ks]} offset:{slot*16384 + t*4096}" for t in range(2)]
        for s_ in range(2):
            for jj in range(2):
                L.append(f"ds_read_b64_tr_b16 {vr(vWf[ks]+4*s_+2*jj,2)}, v{vWa0} offset:{slot*16384 + s_*8192 + ks*2048 + jj*512}")
        return L
    def mfmas(ks, typ):
        L = []
        for t in range(2):
            for s_ in range(2):
                x, w = vr(vXf[ks] + 4*t, 4), vr(vWf[ks] + 4*s_, 4)
                ops = f"{x}, {w}" if (typ == 1 and s_ == 0) else f"{w}, {x}"
                L.append(f"v_mfma_f32_32x32x16_bf16 {vr(vA[t][s_],16)}, {ops}, {vr(vA[t][s_],16)}")
        return L
    def interleave(m, r, split):
        k = 0
        if X.get("nomfma"): m = ["s_nop 0"] * 4
        if X.get("noread"): r = []
        for j in range(4):
            a(m[j])
            for _ in range(split[j]):
                if k < len(r): a(r[k]); k += 1
    def gemm_loop(typ):
        p = f"{pfx}_g{typ}"
        sp = X.get("split", [2, 2, 2, 0]); spl = X.get("splitl", [3, 3, 0, 0])
        prof_stamp(a, 0)
        a.L.append(".p2align 6")
        a.label(p)
        for slot in range(4):
            a("s_waitcnt lgkmcnt(0)\ns_barrier")
            interleave(mfmas(2, typ), reads(0, slot), sp)
            interleave(mfmas(3, typ), reads(1, slot), sp)
            a("s_waitcnt lgkmcnt(6)")
            interleave(mfmas(0, typ), reads(2, slot), sp)
            a("s_waitcnt lgkmcnt(6)")
            m = mfmas(1, typ)
            if slot == 3:
                interleave(m[:4], reads(3, slot), spl) if False else None
                a(m[0] if not X.get("nomfma") else "s_nop 0")
                rr = [] if X.get("noread") else reads(3, slot)
                for r in rr[:3]: a(r)
                a(m[1] if not X.get("nomfma") else "s_nop 0")
                for r in rr[3:]: a(r)
                a(f"s_add_u32 s{sC}, s{sC}, 1\ns_cmp_lt_u32 s{sC}, 2")
                a(m[2] if not X.get("nomfma") else "s_nop 0")
                a(m[3] if not X.get("nomfma") else "s_nop 0")
                a(f"s_cbranch_scc1 {p}")
            else:
                interleave(m, reads(3, slot), spl)
        prof_stamp(a, 1)
        a("s_waitcnt lgkmcnt(0)")
        if typ == 1: a("s_barrier")
        for m in mfmas(2, typ) + mfmas(3, typ): a(m)
    S = f"s[{sWS}:{sWS+3}]"
    vLa = 2; vKo = 3; vVo = 4
    def epi_common():
        a(f"""
        v_lshlrev_b32 v{vLa}, 4, v{vL}            ; lane*16
        v_and_b32 v5, 31, v{vL}                   ; t / n
        v_lshrrev_b32 v6, 5, v{vL}                ; h
        s_lshl_b32 s36, s{sRB}, 2
        s_lshl_b32 s{sT}, s{sWR}, 1
        s_add_u32 s36, s36, s{sT}
        s_lshl_b32 s37, s{sJ}, 2
        s_lshl_b32 s{sT}, s{sWC}, 1
        s_add_u32 s37, s37, s{sT}
        s_lshl_b32 s38, s37, 16
        s_lshl_b32 s{sT2}, s36, 10
        s_add_u32 s38, s38, s{sT2}
        """)
    a(f"s_cmp_eq_u32 s{sTyp}, 0\ns_cbranch_scc0 {pfx}_gB")
    gemm_loop(0)
    epi_common()
    a(f"""
    v_and_b32 v7, 19, v5
    v_bfe_u32 v8, v5, 2, 1
    v_lshl_or_b32 v7, v8, 3, v7
    v_bfe_u32 v8, v5, 3, 1
    v_lshl_or_b32 v7, v8, 2, v7               ; pi(t)
    v_lshl_add_u32 v7, v6, 5, v7
    v_lshlrev_b32 v{vKo}, 4, v7               ; (h*32 + pi(t))*16
    s_mov_b32 s{sT2}, {hex(f2u(QSCALE))}
    s_nop 7
    """)
    prof_stamp(a, 2)
    for t in range(2):
        A = vA[t][1]
        for i in range(8): a(f"v_cvt_pk_bf16_f32 v{20+8*t+i}, v{A+2*i}, v{A+2*i+1}")
        for hh in range(2):
            a(f"s_add_u32 s{sT}, s38, {hex(WS_KF + hh*65536 + t*1024)}\nbuffer_store_dwordx4 {vr(20+8*t+4*hh,4)}, v{vKo}, {S}, s{sT} offen {SF}")
    for t in range(2):
        A = vA[t][0]
        for i in range(16): a(f"v_mul_f32 v{A+i}, s{sT2}, v{A+i}")
        for i in range(8): a(f"v_cvt_pk_bf16_f32 v{36+8*t+i}, v{A+2*i}, v{A+2*i+1}")
        for hh in range(2):
            a(f"s_add_u32 s{sT}, s38, {hh*65536 + t*1024}\nbuffer_store_dwordx4 {vr(36+8*t+4*hh,4)}, v{vLa}, {S}, s{sT} offen {SF}")
    prof_stamp(a, 3)
    prof_end(a, 2, sW, 8, sWS, vtmp=20)
    a("s_endpgm")
    a.label(f"{pfx}_gB")
    gemm_loop(1)
    epi_common()
    a(f"""
    v_lshrrev_b32 v7, 4, v5                   ; n>>4
    v_lshlrev_b32 v7, 16, v7
    v_lshl_add_u32 v7, v6, 8, v7
    v_and_b32 v8, 15, v5
    v_lshl_add_u32 v{vVo}, v8, 4, v7          ; (n>>4)*65536 + h*256 + d*16
    s_lshl_b32 s39, s36, 15                   ; tblock*32*1024
    s_lshl_b32 s{sT2}, s37, 10
    s_add_u32 s39, s39, s{sT2}
    s_add_u32 s39, s39, {hex(WS_H1)}
    s_lshl_b32 s{sT2}, s{sWR}, 9
    s_add_u32 s{sT2}, s{sT2}, {K1_ST}
    v_lshl_add_u32 v9, v5, 3, s{sT2}
    s_lshl_b32 s{sT2}, s{sWC}, 7
    s_add_u32 s{sT2}, s{sT2}, {K1_ST + 1024}
    v_lshl_add_u32 v10, v6, 4, s{sT2}
    s_nop 4
    """)
    for t in range(2):
        A = vA[t][0]
        for i in range(8): a(f"v_cvt_pk_bf16_f32 v{20+8*t+i}, v{A+2*i}, v{A+2*i+1}")
        a(f"s_add_u32 s{sT}, s38, {hex(WS_VF + t*1024)}")
        a(f"buffer_store_dwordx4 {vr(20+8*t,4)}, v{vVo}, {S}, s{sT} offen {SF}")
        a(f"buffer_store_dwordx4 {vr(24+8*t,4)}, v{vVo}, {S}, s{sT} offen offset:512 {SF}")
    a("s_barrier")
    prof_stamp(a, 2)
    a("ds_read_b64 v[12:13], v9\nds_read_b64 v[14:15], v9 offset:256")
    for i in range(4): a(f"ds_read_b128 {vr(36+4*i,4)}, v10 offset:{32*i}")
    gelu_consts(a, 52)
    a("s_waitcnt lgkmcnt(0)")
    for t in range(2):
        h = vA[t][1]
        emit_interleaved(a, [ln_pk(h + 2*i, 36 + 2*i, 12 + 2*t) for i in range(8)])
        for g in range(0, 16, 8):
            emit_interleaved(a, [gelu_pk(h + g + 2*i, 60 + 2*i, 52) for i in range(4)])
        for i in range(8): a(f"v_cvt_pk_bf16_f32 v{72+i}, v{h+2*i}, v{h+2*i+1}")
        a(f"s_add_u32 s{sT}, s39, {t*32768}")
        a(f"buffer_store_dwordx4 {vr(72,4)}, v{vLa}, {S}, s{sT} offen {SF}")
        a(f"buffer_store_dwordx4 {vr(76,4)}, v{vLa}, {S}, s{sT} offen offset:1024 {SF}")
        a("s_nop 1")
    prof_stamp(a, 3)
    prof_end(a, 2, sW, 8, sWS, vtmp=20)
    a("s_endpgm")
    return 152
```

```python
import sys, os
from common import *
import k1, attn2, roles64, role_w3, gemm64, chain4
MAIN = "gated_mix__softmax_full_mha__mixer_s_mlp__prompt_kernel"
def build(path, variant="seq5", nempty=0):
    a = Asm()
    hdr = open("gated_mix__softmax_full_mha__mixer_s_mlp__prompt.s.ref").read().split("\n")
    for l in hdr:
        if l.startswith("; Override") : break
        a.L.append(l)
    ks = [("k1_kernel", 256, k1.K1_LDS, lambda p: k1.gen_k1(a, p)),
          ("attn_kernel", 256, attn2.ATT_LDS, lambda p: attn2.gen_attn(a, p, 2)),
          ("w2_kernel", 256, roles64.W2_LDS, lambda p: roles64.gen_w2(a, p, 2)),
          ("w3_kernel", 256, role_w3.W3_LDS, lambda p: role_w3.gen_w3(a, p, 2)),
          (MAIN, 256, roles64.FIN_LDS, lambda p: roles64.gen_final(a, p, 2))]
    if variant == "merge3":
        def mid(p):
            import common
            a(f"s_cmp_lt_u32 s2, 256\ns_cbranch_scc1 {p}_att")
            a(f"s_cmp_lt_u32 s2, 512\ns_cbranch_scc1 {p}_w2")
            a("s_sub_u32 s3, s2, 512")
            common.PROF_BASE = 3 * 0x10000
            n3 = role_w3.gen_w3(a, p + "C", 3, merged=True, prio=int(os.environ.get("PRIO3", "2")))
            a.label(f"{p}_w2")
            a("s_sub_u32 s3, s2, 256")
            common.PROF_BASE = 2 * 0x10000
            n2 = roles64.gen_w2(a, p + "B", 3, publish=True, prio=int(os.environ.get("PRIO2", "2")))
            a.label(f"{p}_att")
            common.PROF_BASE = 1 * 0x10000
            n1 = attn2.gen_attn(a, p + "A", 2, prefetch=True)
            return max(n1, n2, n3)
        ks = [ks[0], ("mid_kernel", 768, max(attn2.ATT_LDS, roles64.W2_LDS, role_w3.W3_LDS), mid), ks[4]]
    if variant == "chain3":
        def mid(p):
            import common
            a(f"s_cmp_lt_u32 s2, 256\ns_cbranch_scc0 {p}_att")
            a("s_mov_b32 s3, s2")
            syn = os.environ.get("SYN")
            if syn == "exit": a("s_endpgm")
            if syn == "sleep": a("\n".join(["s_sleep 127"]*4) + "\ns_endpgm")
            if syn and syn.startswith("valu"):
                n = int(syn[4:])
                a(f"s_mov_b32 s10, {n}\nL_syn:\n" + "\n".join(["v_add_f32 v8, v8, v8"]*8) + "\ns_sleep 2\ns_sub_u32 s10, s10, 1\ns_cmp_lg_u32 s10, 0\ns_cbranch_scc1 L_syn\ns_endpgm")
            if syn and syn.startswith("mfma"):
                n = int(syn[4:])
                a(f"s_mov_b32 s10, {n}\nL_syn:\n" + "\n".join(["v_mfma_f32_32x32x16_bf16 v[16:31], v[8:11], v[12:15], v[16:31]"]*4) + "\ns_sleep 4\ns_sub_u32 s10, s10, 1\ns_cmp_lg_u32 s10, 0\ns_cbranch_scc1 L_syn\ns_endpgm")
            if syn and syn.startswith("pace"):
                n, m, k = [int(x) for x in syn[4:].split("_")]
                a("v_lshrrev_b32 v8, 6, v0\ns_nop 1\nv_readfirstlane_b32 s11, v8\ns_cmp_ge_u32 s11, 4\ns_cbranch_scc1 L_syn_x")
                pad = "\n".join(["s_nop 15"] * (k // 16)) if k else ""
                a(f"s_mov_b32 s10, {n}\nL_syn:\n" + "\n".join(["v_mfma_f32_32x32x16_bf16 v[16:31], v[8:11], v[12:15], v[16:31]"]*m) + "\n" + pad + "\ns_sub_u32 s10, s10, 1\ns_cmp_lg_u32 s10, 0\ns_cbranch_scc1 L_syn\nL_syn_x:\ns_endpgm")
            if syn and syn.startswith("dsrd"):
                n = int(syn[4:])
                a(f"v_and_b32 v1, 63, v0\nv_lshlrev_b32 v1, 4, v1\ns_mov_b32 s10, {n}\nL_syn:\n" + "\n".join(["ds_read_b64_tr_b16 v[16:17], v1"]*6) + "\ns_waitcnt lgkmcnt(0)\ns_sleep 2\ns_sub_u32 s10, s10, 1\ns_cmp_lg_u32 s10, 0\ns_cbranch_scc1 L_syn\ns_endpgm")
            common.PROF_BASE = 2 * 0x10000
            pr = os.environ.get("PRIOC")
            n2 = roles64.gen_w2(a, p + "B", 3, publish=True, prio=int(pr) if pr else None, cont=p + "C_start")
            a.label(p + "C_start")
            common.PROF_BASE = 3 * 0x10000
            n3 = role_w3.gen_w3(a, p + "C", 3, merged=True)
            a.label(f"{p}_att")
            a("s_sub_u32 s3, s2, 256")
            common.PROF_BASE = 1 * 0x10000
            n1 = attn2.gen_attn(a, p + "A", 3, prefetch=True, setprio0=os.environ.get("PRIOA"))
            return max(n1, n2, n3)
        ks = [ks[0], ("mid_kernel", 512, max(attn2.ATT_LDS, roles64.W2_LDS, role_w3.W3_LDS), mid), ks[4]]
    if variant in ("chain4", "chain4b"):
        g4 = variant == "chain4"
        def mid(p):
            import common
            a(f"s_cmp_lt_u32 s2, 256\ns_cbranch_scc0 {p}_att")
            a("s_mov_b32 s3, s2")
            n2 = chain4.gen_chain(a, p + "C", 3, with_g4=g4)
            a.label(f"{p}_att")
            a("s_sub_u32 s3, s2, 256")
            common.PROF_BASE = 1 * 0x10000
            n1 = attn2.gen_attn(a, p + "A", 3, prefetch=True, setprio0=os.environ.get("PRIOA", "1"), pf_w4=not g4)
            return max(n1, n2)
        ks = [ks[0], ("mid_kernel", 512, max(attn2.ATT_LDS, chain4.CH_LDS), mid),
              (MAIN, 256, roles64.FO_LDS, lambda p: roles64.gen_final_wo(a, p, 2)) if g4 else ks[4]]
    if variant == "two":
        def mid(p):
            import common
            a(f"s_cmp_lt_u32 s2, 256\ns_cbranch_scc0 {p}_att")
            a("s_mov_b32 s3, s2")
            n2 = chain4.gen_chain(a, p + "C", 3, with_g4=True, fuse_final=True)
            a.label(f"{p}_att")
            a("s_sub_u32 s3, s2, 256")
            common.PROF_BASE = 1 * 0x10000
            n1 = attn2.gen_attn(a, p + "A", 3, prefetch=True, setprio0=os.environ.get("PRIOA", "1"), pf_w4=False, publish=True)
            return max(n1, n2)
        ks = [ks[0], (MAIN, 512, max(attn2.ATT_LDS, chain4.CH_LDS), mid)]
    for e in range(nempty):
        ks.insert(1, ("empty_kernel", 256, 0, None))
    for n, g, lds, _ in ks:
        a.L.append(f"; @launch kernel={n} grid=({g},1,1) block=(512,1,1) lds={lds}")
    a.L.append('.amdgcn_target "amdgcn-amd-amdhsa--gfx950"\n.text')
    descs = ""
    done = set()
    for i, (n, g, lds, f) in enumerate(ks):
        if n in done: continue
        done.add(n)
        if f is None:
            kernel_header(a, n); a("s_endpgm"); descs += kernel_desc(n, 8); continue
        kernel_header(a, n)
        a(f"s_cmp_ge_u32 s2, {g}\ns_cbranch_scc1 L_exit{i}")
        import common
        common.PROF_BASE = (i if variant == "seq5" else [0, 1, 4][i]) * 0x10000
        nv = f(f"K{i}")
        a.label(f"L_exit{i}"); a("s_endpgm")
        descs += kernel_desc(n, nv)
    a.label("L_text_end")
    a("s_endpgm")
    s = a.text() + '.section .rodata,"a"\n.p2align 6\n' + descs
    open(path, "w").write(s)
if __name__ == "__main__":
    import os
    build(sys.argv[1] if len(sys.argv) > 1 else "all.s", variant=os.environ.get("VARIANT", "seq5"), nempty=int(sys.argv[2]) if len(sys.argv) > 2 else 0)
```

```python
from common import *
import struct
K1_XS = 0
K1_WS = 65536
K1_ST = 131072
K1_LDS = K1_ST + 1024 + 256 + 1024
QSCALE = 0.25 * 1.4426950408889634
def vr(b, n=1): return f"v{b}" if n == 1 else f"v[{b}:{b+n-1}]"
def f2u(x): return struct.unpack("<I", struct.pack("<f", x))[0]
GC1 = -2.0 * 1.4426950408889634 * 0.7978845608028654
GC2 = GC1 * 0.044715

def gelu_ops(a, x, t, vC1, sC2):
    return [f"v_mul_f32 v{t}, v{x}, v{x}",
            f"v_fma_f32 v{t}, v{t}, s{sC2}, v{vC1}",
            f"v_mul_f32 v{t}, v{t}, v{x}",
            f"v_exp_f32 v{t}, v{t}",
            f"v_add_f32 v{t}, 1.0, v{t}",
            f"v_rcp_f32 v{t}, v{t}",
            f"v_mul_f32 v{x}, v{x}, v{t}"]
def gelu_pk(x, t, vC, vOne=None):
    P = lambda r: f"v[{r}:{r+1}]"
    return [f"v_pk_mul_f32 {P(t)}, {P(x)}, {P(x)}",
            f"v_pk_fma_f32 {P(t)}, {P(t)}, {P(vC+2)}, {P(vC)}",
            f"v_pk_mul_f32 {P(t)}, {P(t)}, {P(x)}",
            f"v_exp_f32 v{t}, v{t}", f"v_exp_f32 v{t+1}, v{t+1}",
            f"v_pk_add_f32 {P(t)}, {P(t)}, {P(vC+4)}",
            f"v_rcp_f32 v{t}, v{t}", f"v_rcp_f32 v{t+1}, v{t+1}",
            f"v_pk_mul_f32 {P(x)}, {P(x)}, {P(t)}"]
def gelu_consts(a, vC):
    a(f"v_mov_b32 v{vC}, {hex(f2u(GC1))}\nv_mov_b32 v{vC+1}, v{vC}\nv_mov_b32 v{vC+2}, {hex(f2u(GC2))}\nv_mov_b32 v{vC+3}, v{vC+2}\nv_mov_b32 v{vC+4}, 1.0\nv_mov_b32 v{vC+5}, 1.0")
def ln_pk(x, cs, vS):
    P = lambda r: f"v[{r}:{r+1}]"
    return [f"v_pk_mul_f32 {P(x)}, {P(x)}, {P(vS)} op_sel_hi:[1,0]",
            f"v_pk_fma_f32 {P(x)}, {P(cs)}, {P(vS)}, {P(x)} op_sel:[0,1,0] op_sel_hi:[1,1,1]"]
def emit_interleaved(a, seqs):
    n = max(len(s) for s in seqs)
    for i in range(n):
        for s in seqs:
            if i < len(s): a(s[i])


def gen_k1(a, pfx, X=None):
    X = X or {}
    import os
    SF = os.environ.get('K1SF', '')
    sX = 8; sWq = 12; sWS = 16; sDB = 52
    sW = 20; sRB = 21; sWR = 22; sC = 23; sT = 24; sT2 = 25
    sXsrc = 26; sWsrc = 27; sWstep = 28; sWi = 29; sLX = 30; sLW = 31; sSlot = 32; sSlotD = 33
    sTB = 34; sC2 = 35; sJ = 44; sXb = 45; sWb = 46; sX2 = 47; sCk = 48; sTyp = 49; sWC = 50
    vL = 1; vT = 2; vT2 = 3; vT3 = 4
    a.c("==== K1 ====")
    prof_start(a)
    a(f"""
    s_load_dwordx4 s[36:39], s[0:1], {KA['x']}        ; x, wqkv
    s_load_dwordx2 s[40:41], s[0:1], {KA['w1']}
    s_load_dwordx2 s[42:43], s[0:1], {KA['ws']}
    s_load_dwordx2 s[56:57], s[0:1], {KA['dbg']}
    s_load_dwordx2 s[58:59], s[0:1], {KA['gw']}
    """)
    if not os.environ.get("NOCPF"):
        a(f"""s_getpc_b64 s[64:65]
        {pfx}_pc:
        s_lshr_b32 s{sT}, s2, 3
        s_lshl_b32 s{sT}, s{sT}, 13
        v_lshl_add_u32 v148, v0, 4, s{sT}
        s_sub_u32 s64, s64, {pfx}_pc-k1_kernel
        s_subb_u32 s65, s65, 0
        v_min_u32 v148, L_text_end-k1_kernel-16, v148
        v_mov_b32 v149, s65
        v_add_co_u32 v148, vcc, s64, v148
        s_nop 1
        v_addc_co_u32 v149, vcc, 0, v149, vcc
        global_load_dwordx4 v[148:151], v[148:149], off""")
    a(f"""
    v_lshrrev_b32 v{vT}, 6, v0
    v_and_b32 v{vL}, 63, v0
    v_readfirstlane_b32 s{sW}, v{vT}
    s_and_b32 s{sT}, s2, 7                   ; xcd
    s_lshr_b32 s{sT2}, s2, 3                 ; j
    s_lshr_b32 s{sRB}, s{sT}, 1
    s_lshl_b32 s{sRB}, s{sRB}, 2
    s_and_b32 s{sTB}, s{sT2}, 3
    s_add_u32 s{sRB}, s{sRB}, s{sTB}
    s_and_b32 s{sTyp}, s{sT}, 1
    s_lshr_b32 s{sJ}, s{sT2}, 2
    s_and_b32 s{sTB}, s{sW}, 3
    s_cmp_lt_u32 s{sW}, 4
    s_cbranch_scc1 {pfx}_gemm
    """)
    vXd = [5, 6]; vWd = 7; vWa = [8, 9]; vWa0 = [10, 11]
    a(f"""
    v_lshrrev_b32 v{vT}, 3, v{vL}            ; r
    v_lshrrev_b32 v{vT2}, 4, v{vL}           ; r>>1
    v_and_b32 v{vT3}, 7, v{vL}
    v_xor_b32 v{vXd[0]}, v{vT3}, v{vT2}
    v_xor_b32 v{vXd[1]}, 4, v{vXd[0]}
    v_lshlrev_b32 v{vWd}, 10, v{vT}
    v_lshl_add_u32 v{vXd[0]}, v{vXd[0]}, 4, v{vWd}
    v_lshl_add_u32 v{vXd[1]}, v{vXd[1]}, 4, v{vWd}
    v_add_u32 v{vXd[1]}, 8192, v{vXd[1]}
    v_and_b32 v{vT2}, 1, v{vT2}              ; (r>>1)&1
    v_lshlrev_b32 v{vT2}, 2, v{vT2}
    v_xor_b32 v{vT3}, v{vT3}, v{vT2}
    s_lshl_b32 s{sXsrc}, s{sRB}, 7
    s_lshl_b32 s{sT}, s{sTB}, 5
    s_add_u32 s{sXsrc}, s{sXsrc}, s{sT}
    s_lshl_b32 s{sXb}, s{sXsrc}, 10
    s_lshl_b32 s{sLX}, s{sTB}, 12
    s_lshl_b32 s{sLW}, s{sTB}, 12
    s_add_u32 s{sLW}, s{sLW}, {K1_WS}
    s_lshr_b32 s{sT}, s{sTB}, 1              ; strip s
    s_lshl_b32 s{sT2}, s{sTyp}, 1
    s_add_u32 s{sT2}, s{sT2}, s{sT}          ; matrix: 0 Q, 1 K, 2 V, 3 h
    s_cmp_eq_u32 s{sT2}, 3
    s_mov_b32 s{sWi}, 3072
    s_cmov_b32 s{sWi}, 1024
    s_cselect_b32 s{sT2}, 0, s{sT2}
    s_lshl_b32 s{sT2}, s{sT2}, 10
    s_lshl_b32 s{sWb}, s{sJ}, 7              ; 64 j * 2
    s_add_u32 s{sWb}, s{sWb}, s{sT2}
    s_and_b32 s{sT}, s{sTB}, 1
    s_lshl_b32 s{sT}, s{sT}, 5
    s_mul_i32 s{sT}, s{sT}, s{sWi}
    s_add_u32 s{sWb}, s{sWb}, s{sT}
    s_lshl_b32 s{sWstep}, s{sWi}, 6          ; 64 rows
    v_mul_lo_u32 v{vT}, v{vT}, s{sWi}
    v_lshl_add_u32 v{vWd}, v{vT3}, 4, v{vT}
    s_lshl_b32 s{sT2}, s{sWi}, 3
    s_cmp_eq_u32 s{sWi}, 1024
    s_mov_b32 s{sWi}, s{sT2}
    s_waitcnt lgkmcnt(0)
    s_cselect_b32 s{sWq}, s40, s38
    s_cselect_b32 s{sWq+1}, s41, s39
    s_mov_b32 s{sWq+2}, {512*1536*2}
    s_cmov_b32 s{sWq+2}, {512*512*2}
    s_mov_b32 s{sWq+3}, 0x20000
    s_and_b32 s{sCk}, s{sRB}, 3
    s_lshl_b32 s{sCk}, s{sCk}, 1
    s_add_u32 s{sCk}, s{sCk}, s{sJ}
    s_and_b32 s{sCk}, s{sCk}, {0 if X.get("norot") else 7}
    """)
    srd(a, sX, 36, 37, 2048*512*2)
    a(f"s_cmp_eq_u32 s{sTyp}, 0\ns_cbranch_scc0 {pfx}_norow")
    srd(a, 60, 58, 59, 1024)
    a(f"""s_lshl_b32 s{sT}, s{sRB}, 7
    s_lshl_b32 s{sT2}, s{sJ}, 4
    s_add_u32 s{sT}, s{sT}, s{sT2}
    s_lshl_b32 s{sT2}, s{sTB}, 2
    s_add_u32 s51, s{sT}, s{sT2}
    s_lshl_b32 s{sT}, s51, 10
    v_lshlrev_b32 v{vT}, 4, v{vL}
    buffer_load_dwordx4 v[20:23], v{vT}, s[{sX}:{sX+3}], s{sT} offen
    buffer_load_dwordx4 v[24:27], v{vT}, s[{sX}:{sX+3}], s{sT} offen offset:1024
    buffer_load_dwordx4 v[28:31], v{vT}, s[{sX}:{sX+3}], s{sT} offen offset:2048
    buffer_load_dwordx4 v[32:35], v{vT}, s[{sX}:{sX+3}], s{sT} offen offset:3072
    buffer_load_dwordx4 v[36:39], v{vT}, s[60:63], 0 offen
    """)
    a.label(f"{pfx}_norow")
    def dma_begin():
        return [f"s_lshl_b32 s{sT}, s{sCk}, 7", f"s_add_u32 s{sXsrc}, s{sXb}, s{sT}", f"s_add_u32 s{sX2}, s{sXsrc}, 16384",
                f"s_mul_i32 s{sT}, s{sCk}, s{sWstep}", f"s_add_u32 s{sWsrc}, s{sWb}, s{sT}", f"s_add_u32 s{sCk}, s{sCk}, 1", f"s_and_b32 s{sCk}, s{sCk}, 7",
                f"s_add_u32 s{sT}, s{sSlotD}, s{sLX}", f"s_add_u32 s{sT2}, s{sSlotD}, s{sLW}"]
    def dma_one(i):
        j = i >> 1
        if i & 1 == 0:
            return [f"s_add_u32 m0, s{sT}, {j*1024}", "s_nop 0",
                    f"buffer_load_dwordx4 v{vXd[j&1]}, s[{sX}:{sX+3}], s{sXsrc if j < 2 else sX2} offen lds"]
        L = [f"s_add_u32 m0, s{sT2}, {j*1024}", "s_nop 0",
             f"buffer_load_dwordx4 v{vWd}, s[{sWq}:{sWq+3}], s{sWsrc} offen lds"]
        if j < 3: L.append(f"s_add_u32 s{sWsrc}, s{sWsrc}, s{sWi}")
        return L
    def dma_all():
        if X.get("nodma"): return
        for x in dma_begin(): a(x)
        for i in range(8):
            for x in dma_one(i): a(x)
    for c in range(2):
        a(f"s_mov_b32 s{sSlotD}, {c*16384}")
        dma_all()
    a(f"s_mov_b32 s{sSlotD}, {2*16384}\ns_mov_b32 s{sSlot}, 0\ns_mov_b32 s{sC}, 0")
    srd(a, sWS, 42, 43, WS_USED)
    def w_addrs(dst, nbs, strip_off):
        a(f"""
        v_lshrrev_b32 v{vT2}, 5, v{vL}
        v_lshlrev_b32 v{vT}, 10, v{vT2}          ; h*8*128
        v_bfe_u32 v{vT2}, v{vL}, 2, 2            ; r
        v_lshl_add_u32 v{vT}, v{vT2}, 7, v{vT}
        v_bfe_u32 v{vT3}, v{vL}, 4, 1            ; nhalf
        v_lshl_add_u32 v{vT}, v{vT3}, 5, v{vT}
        v_and_b32 v{vT3}, 3, v{vL}
        v_lshl_add_u32 v{vT}, v{vT3}, 3, v{vT}
        v_add_u32 v{vT}, {K1_WS + strip_off}, v{vT}
        v_lshrrev_b32 v{vT2}, 1, v{vT2}          ; r>>1
        """)
        for d, nb in zip(dst, nbs):
            if isinstance(nb, int):
                a(f"v_xor_b32 v{vT3}, {nb}, v{vT2}\nv_lshl_add_u32 v{d}, v{vT3}, 6, v{vT}")
            else:
                a(f"v_xor_b32 v{vT3}, s{nb[1:]}, v{vT2}\nv_lshl_add_u32 v{d}, v{vT3}, 6, v{vT}")
    def loader_wait(lbl, tail=(8, 0)):
        a(f"""s_cmp_lt_u32 s{sC}, 6
        s_cbranch_scc1 {lbl}_w8
        s_cmp_eq_u32 s{sC}, 6
        s_cbranch_scc1 {lbl}_w4
        s_waitcnt vmcnt({tail[1]})
        s_branch {lbl}_wd
        {lbl}_w4:
        s_waitcnt vmcnt({tail[0]})
        s_branch {lbl}_wd
        {lbl}_w8:
        s_waitcnt vmcnt(16)
        {lbl}_wd:
        s_waitcnt lgkmcnt(0)
        s_barrier""")
    a(f"""s_cmp_eq_u32 s{sW}, 5
    s_cbranch_scc0 {pfx}_npad
    s_lshl_b32 s{sT}, s2, 8
    s_cmp_ge_u32 s{sT}, 32768
    s_cselect_b32 s{sT2}, {hex(2*1024*1024)}, 0
    s_add_u32 s{sT}, s{sT}, s{sT2}
    s_add_u32 s{sT}, s{sT}, {hex(WS_H1 - 32768)}
    v_mov_b32 v12, 0
    v_mov_b32 v13, 0
    v_mov_b32 v14, 0
    v_mov_b32 v15, 0
    v_lshlrev_b32 v16, 4, v{vL}
    s_mov_b64 exec, 0xffff
    buffer_store_dwordx4 v[12:15], v16, s[{sWS}:{sWS+3}], s{sT} offen
    s_mov_b64 exec, -1""")
    a.label(f"{pfx}_npad")
    a(f"s_cmp_eq_u32 s{sTyp}, 0\ns_cbranch_scc0 {pfx}_lb")
    a(f"s_cmp_eq_u32 s2, 0\ns_cbranch_scc0 {pfx}_nzf\ns_cmp_eq_u32 s{sW}, 4\ns_cbranch_scc0 {pfx}_nzf")
    a(f"""v_mov_b32 v12, 0
    v_mov_b32 v13, 0
    v_mov_b32 v14, 0
    v_mov_b32 v15, 0
    v_lshlrev_b32 v16, 4, v{vL}
    s_mov_b32 s{sT}, {hex(WS_FLAGS)}
    """)
    for j in range(3):
        for o in range(4): a(f"buffer_store_dwordx4 v[12:15], v16, s[{sWS}:{sWS+3}], s{sT} offen offset:{o*1024}")
        if j < 2: a(f"s_add_u32 s{sT}, s{sT}, 4096\ns_nop 0")
    a.label(f"{pfx}_nzf")
    srd(a, sDB, 56, 57, 256)
    G = 40
    st = []
    def S_(x): st.extend([l.strip() for l in x.split("\n") if l.strip()])
    for p in range(4): S_(f"v_lshlrev_b32 v{G+2*p}, 16, v{36+p}\nv_and_b32 v{G+2*p+1}, 0xffff0000, v{36+p}")
    for i in range(4):
        for p in range(4):
            x = 20 + 4*i + p
            S_(f"v_lshlrev_b32 v60, 16, v{x}\nv_and_b32 v61, 0xffff0000, v{x}")
            if p == 0:
                S_(f"v_add_f32 v{48+i}, v60, v61\nv_mul_f32 v{52+i}, v60, v60\nv_mul_f32 v{56+i}, v60, v{G}")
                S_(f"v_fmac_f32 v{52+i}, v61, v61\nv_fmac_f32 v{56+i}, v61, v{G+1}")
            else:
                S_(f"v_add_f32 v{48+i}, v{48+i}, v60\nv_fmac_f32 v{52+i}, v60, v60\nv_fmac_f32 v{56+i}, v60, v{G+2*p}")
                S_(f"v_add_f32 v{48+i}, v{48+i}, v61\nv_fmac_f32 v{52+i}, v61, v61\nv_fmac_f32 v{56+i}, v61, v{G+2*p+1}")
    n1 = len(st)
    S_("s_nop 1")
    for mod in ["row_shr:1 row_mask:0xf bank_mask:0xf bound_ctrl:1", "row_shr:2 row_mask:0xf bank_mask:0xf bound_ctrl:1",
                "row_shr:4 row_mask:0xf bank_mask:0xf bound_ctrl:1", "row_shr:8 row_mask:0xf bank_mask:0xf bound_ctrl:1",
                "row_bcast:15 row_mask:0xa bank_mask:0xf", "row_bcast:31 row_mask:0xc bank_mask:0xf"]:
        for r in range(48, 60): S_(f"v_add_f32_dpp v{r}, v{r}, v{r} {mod}")
    S_("s_nop 1")
    for i in range(4):
        S_(f"""v_mul_f32 v{48+i}, {hex(f2u(1/512))}, v{48+i}
        v_mul_f32 v{52+i}, {hex(f2u(1/512))}, v{52+i}
        v_mul_f32 v{56+i}, {hex(f2u(-1.4426950408889634))}, v{56+i}""")
    for i in range(4): S_(f"v_fma_f32 v{52+i}, -v{48+i}, v{48+i}, v{52+i}\nv_exp_f32 v{56+i}, v{56+i}")
    for i in range(4): S_(f"v_max_f32 v{52+i}, 0, v{52+i}\nv_add_f32 v{56+i}, 1.0, v{56+i}")
    for i in range(4): S_(f"v_add_f32 v{52+i}, {hex(f2u(1e-5))}, v{52+i}\nv_rcp_f32 v{56+i}, v{56+i}")
    for i in range(4): S_(f"v_rsq_f32 v{60+2*i}, v{52+i}")
    S_("s_nop 0")
    for i in range(4): S_(f"v_mul_f32 v{61+2*i}, v{48+i}, v{60+2*i}")
    for i in range(4): S_(f"v_sub_f32 v{61+2*i}, 0, v{61+2*i}")
    S_(f"""s_lshl_b32 s61, s51, 3
    s_add_u32 s61, s61, {hex(WS_XST)}
    s_lshl_b32 s62, s51, 2
    s_add_u32 s62, s62, {hex(WS_G)}
    v_mov_b32 v{vT}, 0
    s_mov_b32 exec_lo, 0
    s_mov_b32 exec_hi, 0x80000000
    buffer_store_dwordx4 v[60:63], v{vT}, s[{sWS}:{sWS+3}], s61 offen sc1
    buffer_store_dwordx4 v[64:67], v{vT}, s[{sWS}:{sWS+3}], s61 offen offset:16 sc1
    buffer_store_dwordx4 v[56:59], v{vT}, s[{sWS}:{sWS+3}], s62 offen sc1
    s_mov_b64 exec, -1""")
    prof_stamp(a, 0)
    def la_iter(c, extra=None, vm=16):
        a(f"s_waitcnt vmcnt({vm})\ns_barrier")
        if c < 5:
            dma_all()
            a(f"s_add_u32 s{sSlotD}, s{sSlotD}, 16384\ns_and_b32 s{sSlotD}, s{sSlotD}, 0xffff")
        for x in (extra or []): a(x)
    a("s_waitcnt vmcnt(16)")
    for x in st: a(x)
    a("s_waitcnt vmcnt(11)\ns_barrier")
    for _ in range(2):
        dma_all()
        a(f"s_add_u32 s{sSlotD}, s{sSlotD}, 16384\ns_and_b32 s{sSlotD}, s{sSlotD}, 0xffff")
    la_iter(1, vm=16)
    a(f"""s_cmp_eq_u32 s{sW}, 4
    s_cbranch_scc0 {pfx}_la_nf
    s_lshl_b32 s{sT}, s{sRB}, 4
    s_add_u32 s{sT}, s{sT}, s{sJ}
    v_mov_b32 v{vT}, 0
    v_mov_b32 v{vT2}, 1
    s_mov_b64 exec, 1
    buffer_store_byte v{vT2}, v{vT}, s[{sDB}:{sDB+3}], s{sT} offen sc1
    s_mov_b64 exec, -1""")
    a.label(f"{pfx}_la_nf")
    la_iter(2, vm=16)
    la_iter(3, vm=16)
    la_iter(4, vm=16)
    NPF = 0 if X.get("nopf") or os.environ.get("NOPF") else 8
    if NPF:
        a(f"""s_load_dwordx2 s[64:65], s[0:1], {KA['w2']}
        s_load_dwordx2 s[66:67], s[0:1], {KA['w3']}
        s_load_dwordx2 s[68:69], s[0:1], {KA['w4']}
        s_load_dwordx2 s[70:71], s[0:1], {KA['wo']}
        s_lshl_b32 s72, s{sRB}, 3
        s_add_u32 s72, s72, s{sJ}
        s_lshl_b32 s72, s72, 2
        s_add_u32 s72, s72, s{sTB}
        s_lshl_b32 s72, s72, 10
        v_lshlrev_b32 v12, 4, v{vL}
        s_waitcnt lgkmcnt(0)""")
        def pf(lo, hi, size, n):
            a(f"s_mov_b32 s76, s{lo}\ns_mov_b32 s77, s{hi}\ns_mov_b32 s78, {size}\ns_mov_b32 s79, 0x20000\ns_mov_b32 s73, s72")
            for j in range(n):
                a(f"buffer_load_dwordx4 v[16:19], v12, s[76:79], s73 offen")
                if j + 1 < n: a("s_add_u32 s73, s73, 0x80000")
        pf(64, 65, 512*512*2, 1); pf(66, 67, 512*1376*2, 3); pf(68, 69, 1376*512*2, 3); pf(70, 71, 512*512*2, 1)
    la_iter(5, vm=16 + NPF)
    la_iter(6, vm=8 + NPF)
    la_iter(7, vm=0 + NPF)
    prof_stamp(a, 1); prof_stamp(a, 2); prof_stamp(a, 3)
    prof_end(a, 2, sW, 8, sWS, vtmp=20)
    a("s_endpgm")
    a.label(f"{pfx}_lb")
    w_addrs(vWa0, [0, 1], 8192)
    vc = [24, 25, 26, 27]; vG = 44; vU = 52
    for r in vc: a(f"v_mov_b32 v{r}, 0")
    srd(a, sDB, 56, 57, 256)
    a(f"s_lshl_b32 s60, s{sRB}, 4\nv_mov_b32 v30, 0")
    a(f"""s_lshl_b32 s62, s{sRB}, 10
    s_add_u32 s62, s62, {hex(WS_XST)}
    v_lshlrev_b32 v34, 4, v{vL}
    s_mov_b32 s63, 0""")
    prof_stamp(a, 0)
    a("s_waitcnt vmcnt(8) lgkmcnt(0)\ns_barrier")
    dma_all()
    a(f"s_add_u32 s{sSlotD}, s{sSlotD}, 16384\ns_branch {pfx}_sl0")
    a.label(f"{pfx}_sl")
    loader_wait(f"{pfx}_s", tail=(8, 0))
    a.label(f"{pfx}_sl0")
    a(f"s_lshl_b32 s{sT}, s{sTB}, 11\ns_add_u32 s{sT}, s{sT}, s{sSlot}")
    for nb in range(2):
        a(f"v_add_u32 v54, s{sT}, v{vWa0[nb]}")
        a(f"ds_read_b64_tr_b16 {vr(vG+4*nb,2)}, v54\nds_read_b64_tr_b16 {vr(vG+4*nb+2,2)}, v54 offset:512")
    ops = ["s_waitcnt lgkmcnt(0)"]
    for nb in range(2):
        for i in range(4):
            x = vG + 4*nb + i
            ops += [f"v_lshlrev_b32 v{vU}, 16, v{x}", f"v_and_b32 v{vU+1}, 0xffff0000, v{x}",
                    f"v_add_f32 v{vc[2*nb]}, v{vc[2*nb]}, v{vU}", f"v_add_f32 v{vc[2*nb+1]}, v{vc[2*nb+1]}, v{vU+1}"]
    a(f"s_cmp_ge_u32 s{sC}, 5\ns_cbranch_scc1 {pfx}_s_nd")
    for x in dma_begin(): a(x)
    step = max(1, len(ops) // 8); k = 0
    for i in range(8):
        for x in (dma_one(i) if not X.get("nodma") else []): a(x)
        hi = len(ops) if i == 7 else min(len(ops), k + step)
        for x in ops[k:hi]: a(x)
        k = hi
    a(f"s_add_u32 s{sSlotD}, s{sSlotD}, 16384\ns_and_b32 s{sSlotD}, s{sSlotD}, 0xffff\ns_branch {pfx}_s_nx")
    a.label(f"{pfx}_s_nd")
    a(f"s_cmp_eq_u32 s{sC}, {X.get('fc', 6)}\ns_cbranch_scc0 {pfx}_s_nf\ns_cmp_eq_u32 s{sW}, 4\ns_cbranch_scc0 {pfx}_s_nf")
    a(f"buffer_load_dwordx2 v[32:33], v30, s[{sDB}:{sDB+3}], s60 offen sc1")
    a.label(f"{pfx}_s_nf")
    a(f"""s_cmp_eq_u32 s{sC}, {X.get('fc', 6) + 1}
    s_cbranch_scc0 {pfx}_s_ng
    s_cmp_eq_u32 s{sW}, 4
    s_cbranch_scc0 {pfx}_s_ng
    s_waitcnt vmcnt(0)
    v_and_b32 v32, v32, v33
    s_nop 0
    v_readfirstlane_b32 s{sT}, v32
    s_cmp_eq_u32 s{sT}, 0x01010101
    s_cbranch_scc0 {pfx}_s_ng
    s_mov_b32 s63, 1
    buffer_load_dwordx4 v[28:31], v34, s[{sWS}:{sWS+3}], s62 offen sc1""")
    a.label(f"{pfx}_s_ng")
    for x in ops: a(x)
    a.label(f"{pfx}_s_nx")
    a(f"""s_add_u32 s{sSlot}, s{sSlot}, 16384
    s_and_b32 s{sSlot}, s{sSlot}, 0xffff
    s_add_u32 s{sC}, s{sC}, 1
    s_cmp_lt_u32 s{sC}, 8
    s_cbranch_scc1 {pfx}_sl""")
    prof_stamp(a, 1)
    a(f"""
    v_add_f32 v24, v24, v25
    v_add_f32 v26, v26, v27
    v_lshlrev_b32 v55, 2, v{vL}
    s_lshl_b32 s{sT}, s{sTB}, 8
    s_add_u32 s{sT}, s{sT}, {K1_ST + 1280}
    v_permlane32_swap_b32 v24, v26
    v_add_u32 v54, s{sT}, v55
    s_nop 0
    v_add_f32 v24, v24, v26
    s_nop 0
    ds_write_b32 v54, v24
    s_waitcnt lgkmcnt(0)
    s_barrier                                  ; F1
    s_cmp_eq_u32 s{sW}, 4
    s_cbranch_scc0 {pfx}_pdone
    v_add_u32 v54, {K1_ST + 1280}, v55
    ds_read_b32 v36, v54
    ds_read_b32 v37, v54 offset:256
    ds_read_b32 v38, v54 offset:512
    ds_read_b32 v39, v54 offset:768
    s_cmp_eq_u32 s63, 1
    s_cbranch_scc1 {pfx}_pdone0
    s_branch {pfx}_pchk
    """)
    a.label(f"{pfx}_poll")
    a(f"""s_sleep 1
    buffer_load_dwordx2 v[32:33], v30, s[{sDB}:{sDB+3}], s60 offen sc1
    s_waitcnt vmcnt(0)""")
    a.label(f"{pfx}_pchk")
    a(f"""v_and_b32 v32, v32, v33
    s_nop 0
    v_readfirstlane_b32 s{sT}, v32
    s_cmp_eq_u32 s{sT}, 0x01010101
    s_cbranch_scc0 {pfx}_poll
    buffer_load_dwordx4 v[28:31], v34, s[{sWS}:{sWS+3}], s62 offen sc1""")
    a.label(f"{pfx}_pdone0")
    a(f"""s_waitcnt lgkmcnt(0)
    v_add_f32 v36, v36, v37
    v_add_f32 v38, v38, v39
    v_add_u32 v54, {K1_ST + 1024}, v55
    v_add_f32 v36, v36, v38
    v_add_u32 v55, {K1_ST}, v34
    ds_write_b32 v54, v36
    s_waitcnt vmcnt(0)
    ds_write_b128 v55, v[28:31]""")
    a.label(f"{pfx}_pdone")
    a("s_waitcnt lgkmcnt(0)\ns_barrier")
    prof_stamp(a, 2); prof_stamp(a, 3)
    prof_end(a, 2, sW, 8, sWS, vtmp=20)
    a("s_endpgm")
    a.label(f"{pfx}_gemm")
    vXa0 = [8, 9, 10, 11]; vWa0 = 12; vXa = [13, 14, 15, 16]; vWa = 17
    vXf = [20, 28, 36, 44]; vWf = [52, 60, 68, 76]; vA = [[84, 100], [116, 132]]
    a(f"""s_lshr_b32 s{sWR}, s{sW}, 1
    s_and_b32 s{sWC}, s{sW}, 1
    s_waitcnt lgkmcnt(0)""")
    if os.environ.get("TLBW"):
        gran = int(os.environ["TLBW"])
        a(f"""s_cmp_lt_u32 s2, 8
        s_cbranch_scc0 {pfx}_ntlb
        s_mov_b32 s64, s42
        s_mov_b32 s65, s43
        s_mov_b32 s66, {hex(WS_USED)}
        s_mov_b32 s67, 0x20000
        v_lshlrev_b32 v152, {gran}, v0""")
        n = max(1, (WS_USED >> gran) // 256 + 1)
        for j in range(n):
            a(f"s_mov_b32 s{sT}, {j * 256 << gran}\nbuffer_load_dword v153, v152, s[64:67], s{sT} offen")
        a.label(f"{pfx}_ntlb")
    srd(a, sX, 36, 37, 2048*512*2)
    srd(a, sWS, 42, 43, WS_USED)
    a(f"""
    v_and_b32 v{vT}, 31, v{vL}               ; t
    v_lshrrev_b32 v{vT2}, 5, v{vL}           ; h
    v_lshrrev_b32 v{vT3}, 1, v{vT}
    v_and_b32 v{vT3}, 7, v{vT3}              ; f
    v_xor_b32 v{vT3}, v{vT3}, v{vT2}         ; f ^ h
    s_lshl_b32 s{sT}, s{sWR}, 13
    v_lshlrev_b32 v{vT}, 7, v{vT}
    v_add_u32 v{vT}, s{sT}, v{vT}            ; row*128
    """)
    for ks in range(4):
        a(f"v_xor_b32 v{vXa0[ks]}, {2*ks}, v{vT3}\nv_lshl_add_u32 v{vXa0[ks]}, v{vXa0[ks]}, 4, v{vT}")
    w_addrs([vWa0], [f"s{sWC}"], 0)
    for i in range(64): a(f"v_mov_b32 v{84+i}, 0")
    for b in (2, 3):
        for i in range(8): a(f"v_mov_b32 v{vXf[b]+i}, 0\nv_mov_b32 v{vWf[b]+i}, 0")
    a(f"s_mov_b32 s{sC}, 0")
    def reads(ks, slot):
        L = [f"ds_read_b128 {vr(vXf[ks]+4*t,4)}, v{vXa0[ks]} offset:{slot*16384 + t*4096}" for t in range(2)]
        for s_ in range(2):
            for jj in range(2):
                L.append(f"ds_read_b64_tr_b16 {vr(vWf[ks]+4*s_+2*jj,2)}, v{vWa0} offset:{slot*16384 + s_*8192 + ks*2048 + jj*512}")
        return L
    def mfmas(ks, typ):
        L = []
        for t in range(2):
            for s_ in range(2):
                x, w = vr(vXf[ks] + 4*t, 4), vr(vWf[ks] + 4*s_, 4)
                ops = f"{x}, {w}" if (typ == 1 and s_ == 0) else f"{w}, {x}"
                L.append(f"v_mfma_f32_32x32x16_bf16 {vr(vA[t][s_],16)}, {ops}, {vr(vA[t][s_],16)}")
        return L
    def interleave(m, r, split):
        k = 0
        if X.get("nomfma"): m = ["s_nop 0"] * 4
        if X.get("noread"): r = []
        for j in range(4):
            a(m[j])
            for _ in range(split[j]):
                if k < len(r): a(r[k]); k += 1
    def gemm_loop(typ):
        p = f"{pfx}_g{typ}"
        sp = X.get("split", [2, 2, 2, 0]); spl = X.get("splitl", [3, 3, 0, 0])
        prof_stamp(a, 0)
        a.L.append(".p2align 6")
        a.label(p)
        for slot in range(4):
            a("s_waitcnt lgkmcnt(0)\ns_barrier")
            interleave(mfmas(2, typ), reads(0, slot), sp)
            interleave(mfmas(3, typ), reads(1, slot), sp)
            a("s_waitcnt lgkmcnt(6)")
            interleave(mfmas(0, typ), reads(2, slot), sp)
            a("s_waitcnt lgkmcnt(6)")
            m = mfmas(1, typ)
            if slot == 3:
                interleave(m[:4], reads(3, slot), spl) if False else None
                a(m[0] if not X.get("nomfma") else "s_nop 0")
                rr = [] if X.get("noread") else reads(3, slot)
                for r in rr[:3]: a(r)
                a(m[1] if not X.get("nomfma") else "s_nop 0")
                for r in rr[3:]: a(r)
                a(f"s_add_u32 s{sC}, s{sC}, 1\ns_cmp_lt_u32 s{sC}, 2")
                a(m[2] if not X.get("nomfma") else "s_nop 0")
                a(m[3] if not X.get("nomfma") else "s_nop 0")
                a(f"s_cbranch_scc1 {p}")
            else:
                interleave(m, reads(3, slot), spl)
        prof_stamp(a, 1)
        a("s_waitcnt lgkmcnt(0)")
        if typ == 1: a("s_barrier")
        for m in mfmas(2, typ) + mfmas(3, typ): a(m)
    S = f"s[{sWS}:{sWS+3}]"
    vLa = 2; vKo = 3; vVo = 4
    def epi_common():
        a(f"""
        v_lshlrev_b32 v{vLa}, 4, v{vL}            ; lane*16
        v_and_b32 v5, 31, v{vL}                   ; t / n
        v_lshrrev_b32 v6, 5, v{vL}                ; h
        s_lshl_b32 s36, s{sRB}, 2
        s_lshl_b32 s{sT}, s{sWR}, 1
        s_add_u32 s36, s36, s{sT}
        s_lshl_b32 s37, s{sJ}, 2
        s_lshl_b32 s{sT}, s{sWC}, 1
        s_add_u32 s37, s37, s{sT}
        s_lshl_b32 s38, s37, 16
        s_lshl_b32 s{sT2}, s36, 10
        s_add_u32 s38, s38, s{sT2}
        """)
    a(f"s_cmp_eq_u32 s{sTyp}, 0\ns_cbranch_scc0 {pfx}_gB")
    gemm_loop(0)
    epi_common()
    a(f"""
    v_and_b32 v7, 19, v5
    v_bfe_u32 v8, v5, 2, 1
    v_lshl_or_b32 v7, v8, 3, v7
    v_bfe_u32 v8, v5, 3, 1
    v_lshl_or_b32 v7, v8, 2, v7               ; pi(t)
    v_lshl_add_u32 v7, v6, 5, v7
    v_lshlrev_b32 v{vKo}, 4, v7               ; (h*32 + pi(t))*16
    s_mov_b32 s{sT2}, {hex(f2u(QSCALE))}
    s_nop 7
    """)
    prof_stamp(a, 2)
    for t in range(2):
        A = vA[t][1]
        for i in range(8): a(f"v_cvt_pk_bf16_f32 v{20+8*t+i}, v{A+2*i}, v{A+2*i+1}")
        for hh in range(2):
            a(f"s_add_u32 s{sT}, s38, {hex(WS_KF + hh*65536 + t*1024)}\nbuffer_store_dwordx4 {vr(20+8*t+4*hh,4)}, v{vKo}, {S}, s{sT} offen {SF}")
    for t in range(2):
        A = vA[t][0]
        for i in range(16): a(f"v_mul_f32 v{A+i}, s{sT2}, v{A+i}")
        for i in range(8): a(f"v_cvt_pk_bf16_f32 v{36+8*t+i}, v{A+2*i}, v{A+2*i+1}")
        for hh in range(2):
            a(f"s_add_u32 s{sT}, s38, {hh*65536 + t*1024}\nbuffer_store_dwordx4 {vr(36+8*t+4*hh,4)}, v{vLa}, {S}, s{sT} offen {SF}")
    prof_stamp(a, 3)
    prof_end(a, 2, sW, 8, sWS, vtmp=20)
    a("s_endpgm")
    a.label(f"{pfx}_gB")
    gemm_loop(1)
    epi_common()
    a(f"""
    v_lshrrev_b32 v7, 4, v5                   ; n>>4
    v_lshlrev_b32 v7, 16, v7
    v_lshl_add_u32 v7, v6, 8, v7
    v_and_b32 v8, 15, v5
    v_lshl_add_u32 v{vVo}, v8, 4, v7          ; (n>>4)*65536 + h*256 + d*16
    s_lshl_b32 s39, s36, 15                   ; tblock*32*1024
    s_lshl_b32 s{sT2}, s37, 10
    s_add_u32 s39, s39, s{sT2}
    s_add_u32 s39, s39, {hex(WS_H1)}
    s_lshl_b32 s{sT2}, s{sWR}, 9
    s_add_u32 s{sT2}, s{sT2}, {K1_ST}
    v_lshl_add_u32 v9, v5, 3, s{sT2}
    s_lshl_b32 s{sT2}, s{sWC}, 7
    s_add_u32 s{sT2}, s{sT2}, {K1_ST + 1024}
    v_lshl_add_u32 v10, v6, 4, s{sT2}
    s_nop 4
    """)
    for t in range(2):
        A = vA[t][0]
        for i in range(8): a(f"v_cvt_pk_bf16_f32 v{20+8*t+i}, v{A+2*i}, v{A+2*i+1}")
        a(f"s_add_u32 s{sT}, s38, {hex(WS_VF + t*1024)}")
        a(f"buffer_store_dwordx4 {vr(20+8*t,4)}, v{vVo}, {S}, s{sT} offen {SF}")
        a(f"buffer_store_dwordx4 {vr(24+8*t,4)}, v{vVo}, {S}, s{sT} offen offset:512 {SF}")
    a("s_barrier")
    prof_stamp(a, 2)
    a("ds_read_b64 v[12:13], v9\nds_read_b64 v[14:15], v9 offset:256")
    for i in range(4): a(f"ds_read_b128 {vr(36+4*i,4)}, v10 offset:{32*i}")
    gelu_consts(a, 52)
    a("s_waitcnt lgkmcnt(0)")
    for t in range(2):
        h = vA[t][1]
        emit_interleaved(a, [ln_pk(h + 2*i, 36 + 2*i, 12 + 2*t) for i in range(8)])
        for g in range(0, 16, 8):
            emit_interleaved(a, [gelu_pk(h + g + 2*i, 60 + 2*i, 52) for i in range(4)])
        for i in range(8): a(f"v_cvt_pk_bf16_f32 v{72+i}, v{h+2*i}, v{h+2*i+1}")
        a(f"s_add_u32 s{sT}, s39, {t*32768}")
        a(f"buffer_store_dwordx4 {vr(72,4)}, v{vLa}, {S}, s{sT} offen {SF}")
        a(f"buffer_store_dwordx4 {vr(76,4)}, v{vLa}, {S}, s{sT} offen offset:1024 {SF}")
        a("s_nop 1")
    prof_stamp(a, 3)
    prof_end(a, 2, sW, 8, sWS, vtmp=20)
    a("s_endpgm")
    return 156
```
